```python
import torch

def _softmax(x, axis=-1):
    return torch.softmax(x, dim=axis)
def _gelu(x):
    return torch.nn.functional.gelu(x, approximate="tanh")
def _silu(x):
    return torch.nn.functional.silu(x)
def _sigmoid(x):
    return torch.sigmoid(x)
def _layernorm(x, axis=-1, eps=1e-5):
    m = x.mean(dim=axis, keepdim=True)
    v = x.var(dim=axis, keepdim=True, unbiased=False)
    return (x - m) / torch.sqrt(v + eps)
def _scatter_add(tgt, idx, src, axis=0):
    return tgt.clone().index_add_(axis, idx, src)
def _segment_sum(src, seg, n):
    out = torch.zeros((n,) + src.shape[1:], dtype=src.dtype)
    return out.index_add_(0, seg, src)
def _pad(x, pw):
    flat = tuple(v for pair in reversed(pw) for v in pair)
    return torch.nn.functional.pad(x, flat)

kernel_name = 'concat_heads__spectral_fnet__softmax_full_mha__prompt'

def setup_inputs():

    _w = (lambda a: (lambda t: t.to(torch.bfloat16) if t.is_floating_point() else t)(torch.as_tensor(a)))
    def _A_setup():
        B, S, D = 1, 2048, 512
        ns = torch.arange(S)[:, None] * torch.arange(S)[None, :]
        nd = torch.arange(D)[:, None] * torch.arange(D)[None, :]
        Ws_re = torch.cos(-2.0 * torch.pi * ns / S).to(float)
        Ws_im = torch.sin(-2.0 * torch.pi * ns / S).to(float)
        Wd_re = torch.cos(-2.0 * torch.pi * nd / D).to(float)
        Wd_im = torch.sin(-2.0 * torch.pi * nd / D).to(float)
        return {
            "x": _w((lambda *s: torch.randn(*s, dtype=torch.bfloat16) * 0.05)(B, S, D)),
            "dft_seq_re": _w(Ws_re),
            "dft_seq_im": _w(Ws_im),
            "dft_hid_re": _w(Wd_re),
            "dft_hid_im": _w(Wd_im),
        }
    _A_in = _A_setup()

    def _B_setup():
        B, S, D = 1, 2048, 512
        return {
            "x": _w((lambda *s: torch.randn(*s, dtype=torch.bfloat16) * 0.2)(B, S, D)),
            "wqkv": _w((lambda *s: torch.randn(*s, dtype=torch.bfloat16) * 0.8)(D, 3 * D)),
            "wo": _w((lambda *s: torch.randn(*s, dtype=torch.bfloat16) * 0.2)(D, D)),
        }
    _B_in = _B_setup()

    return {
        "A_x": _A_in["x"],
        "A_dft_seq_re": _A_in["dft_seq_re"],
        "A_dft_seq_im": _A_in["dft_seq_im"],
        "A_dft_hid_re": _A_in["dft_hid_re"],
        "A_dft_hid_im": _A_in["dft_hid_im"],
        "B_x": _B_in["x"],
        "B_wqkv": _B_in["wqkv"],
        "B_wo": _B_in["wo"],
    }

def reference(A_x, A_dft_seq_re, A_dft_seq_im, A_dft_hid_re, A_dft_hid_im, B_x, B_wqkv, B_wo):
    def _A_ref(x, dft_seq_re, dft_seq_im, dft_hid_re, dft_hid_im):
        a = torch.einsum("bsd,ed->bse", x, dft_hid_re)
        b = torch.einsum("bsd,ed->bse", x, dft_hid_im)
        y = torch.einsum("ts,bse->bte", dft_seq_re, a) - torch.einsum("ts,bse->bte", dft_seq_im, b)
        return y

    def _B_ref(x, wqkv, wo):
        B, S, D = x.shape
        H = 32; Dh = D // H
        qkv = (lambda x, *d: x.permute(*d))((x @ wqkv).reshape(B, S, 3, H, Dh), 2, 0, 3, 1, 4)
        q, k, v = qkv[0], qkv[1], qkv[2]
        scale = Dh ** -0.5
        scores = torch.einsum("bhqd,bhkd->bhqk", q, k) * scale
        p = _softmax(scores, axis=-1)
        o = torch.einsum("bhqk,bhkd->bhqd", p, v)
        return (lambda x, *d: x.permute(*d))(o, 0, 2, 1, 3).reshape(B, S, D) @ wo

    a = _A_ref(A_x, A_dft_seq_re, A_dft_seq_im, A_dft_hid_re, A_dft_hid_im)
    b = _B_ref(B_x, B_wqkv, B_wo)
    return torch.concatenate([a, b], axis=-1)
```

```python
import math, struct, sys

NAME = 'concat_heads__spectral_fnet__softmax_full_mha__prompt'
QF, KV, EO, OF, RR, WS_SIZE = 0, 0x200000, 0x600000, 0x700000, 0x900000, 0xA00000
OFFS = 48.0
CSCALE = 0.25 * math.log2(math.e)


def f2u(x):
    return struct.unpack('<I', struct.pack('<f', x))[0]


class A:
    def __init__(self):
        self.l = []

    def __call__(self, s):
        for ln in s.strip('\n').split('\n'):
            ln = ln.strip()
            if not ln:
                continue
            self.l.append(ln if ln.endswith(':') or ln.startswith('.') else '    ' + ln)

    def text(self):
        return '\n'.join(self.l) + '\n'


def vr(b, n=4):
    return f'v[{b}:{b + n - 1}]'


def srd(a, d, lo, size):
    a(f'''s_mov_b32 s{d}, s{lo}
          s_mov_b32 s{d + 1}, s{lo + 1}
          s_mov_b32 s{d + 2}, {size}
          s_mov_b32 s{d + 3}, 0x20000''')


def prologue(a, tag):
    a(f'''s_cmp_ge_u32 s2, 256
          s_cbranch_scc1 L_{tag}_end
          s_load_dwordx16 s[36:51], s[0:1], 0
          s_load_dwordx4 s[52:55], s[0:1], 64
          s_load_dwordx2 s[56:57], s[0:1], 80
          v_lshrrev_b32 v1, 6, v0
          v_and_b32 v0, 63, v0
          v_readfirstlane_b32 s3, v1
          s_and_b32 s60, s2, 7
          s_lshr_b32 s61, s2, 3         ; idx''')


def swap23(a, d, s, t):
    a(f'''v_lshrrev_b32 v{t}, 1, v{s}
          v_xor_b32 v{t}, v{t}, v{s}
          v_and_b32 v{t}, 4, v{t}
          v_mul_u32_u24 v{t}, 3, v{t}
          v_xor_b32 v{d}, v{t}, v{s}''')


def phase1(a):
    a('''s_lshr_b32 s62, s60, 1
         s_and_b32 s63, s60, 1
         s_lshl_b32 s63, s63, 3
         s_and_b32 s4, s61, 7
         s_add_u32 s63, s63, s4
         s_lshr_b32 s64, s61, 3
         s_lshl_b32 s65, s64, 1
         s_add_u32 s65, s65, s4
         s_and_b32 s65, s65, 7
         s_waitcnt lgkmcnt(0)
         s_cmp_eq_u32 s62, 3
         s_cselect_b32 s8, s36, s46
         s_cselect_b32 s9, s37, s47
         s_mov_b32 s10, 0x200000
         s_mov_b32 s11, 0x20000
         s_cmp_lt_u32 s64, 2
         s_cselect_b32 s4, s42, s44
         s_cselect_b32 s5, s43, s45
         s_lshl_b32 s6, s62, 10
         s_lshl_b32 s7, s64, 8
         s_add_u32 s6, s6, s7
         s_and_b32 s7, s7, 256
         s_cmp_eq_u32 s62, 3
         s_cselect_b32 s12, s4, s48
         s_cselect_b32 s13, s5, s49
         s_cselect_b32 s66, 1, 3
         s_cselect_b32 s67, s7, s6
         s_lshl_b32 s14, s66, 19
         s_mov_b32 s15, 0x20000
         s_lshl_b32 s66, s66, 10''')
    srd(a, 16, 56, WS_SIZE)
    a('''s_cmp_ge_u32 s3, 4
         s_cbranch_scc0 L_p1_compute''')
    a('''s_sub_u32 s68, s3, 4
         v_lshrrev_b32 v1, 3, v0          ; l>>3
         v_and_b32 v2, 7, v0              ; l&7
         s_lshl_b32 s4, s63, 7
         s_lshl_b32 s5, s68, 5
         s_add_u32 s69, s4, s5
         s_lshl_b32 s4, s63, 6
         s_lshr_b32 s5, s68, 1
         s_lshl_b32 s5, s5, 5
         s_add_u32 s4, s4, s5
         s_cmp_eq_u32 s62, 3
         s_cselect_b32 s69, s4, s69
         s_cselect_b32 s70, s68, 0
         s_and_b32 s70, s70, 1
         s_cmp_ge_u32 s62, 2
         s_cselect_b32 s71, 12, 0''')
    for i in range(4):
        d = 4 + i
        a(f'''v_add_u32 v3, {8 * i}, v1            ; rho
              v_lshrrev_b32 v8, 1, v3
              v_xor_b32 v9, v8, v3
              v_and_b32 v9, 4, v9
              v_mul_u32_u24 v9, 3, v9
              v_and_b32 v9, s71, v9
              v_xor_b32 v9, v9, v3
              v_add_u32 v9, s69, v9
              v_sub_u32 v10, 0x800, v9         ; 2048 - s
              v_cmp_eq_u32 vcc, 0, v9
              v_mov_b32 v11, 0x400
              s_nop 0
              v_cndmask_b32 v10, v10, v11, vcc
              s_cmp_eq_u32 s70, 1
              s_cselect_b64 vcc, -1, 0
              v_and_b32 v8, 7, v8
              v_xor_b32 v8, v8, v2
              v_cndmask_b32 v9, v9, v10, vcc
              v_lshlrev_b32 v8, 4, v8
              v_lshl_add_u32 v{d}, v9, 10, v8''')
    a('''v_lshrrev_b32 v1, 4, v0
         v_and_b32 v2, 15, v0
         v_lshlrev_b32 v3, 2, v1
         v_xor_b32 v2, v2, v3
         v_lshlrev_b32 v2, 4, v2
         s_lshl_b32 s4, s68, 4
         v_add_u32 v1, s4, v1
         v_mul_lo_u32 v1, v1, s66
         v_add3_u32 v12, v1, v2, s67
         v_and_b32 v1, 3, v0
         v_lshlrev_b32 v1, 6, v1
         v_add_u32 v2, s4, v0
         v_lshl_add_u32 v13, v2, 8, v1
         v_add_u32 v13, 16384, v13
         v_and_b32 v1, 1, v0
         v_lshlrev_b32 v1, 15, v1
         v_or_b32 v14, 0x3f80, v1
         s_lshl_b32 s72, s66, 2           ; 4*pitch
         s_lshl_b32 s73, s66, 6           ; 64*pitch
         s_lshl_b32 s74, s68, 12
         s_cmp_eq_u32 s62, 3
         s_cselect_b32 s75, s64, 0        ; ==2 -> patch''')

    def issue(stage):
        slot = stage & 3
        a(f'''s_add_u32 s4, s65, {stage}
              s_and_b32 s4, s4, 7
              s_lshl_b32 s5, s4, 7
              s_mul_i32 s6, s4, s73''')
        for i in range(4):
            a(f'''s_add_u32 m0, s74, {slot * 32768 + i * 1024}
                  s_nop 0
                  buffer_load_dwordx4 v{4 + i}, s[8:11], s5 offen lds
                  s_add_u32 m0, s74, {slot * 32768 + 16384 + i * 1024}
                  s_nop 0
                  buffer_load_dwordx4 v12, s[12:15], s6 offen lds''')
            if i < 3:
                a('s_add_u32 s6, s6, s72')

    for s in range(4):
        issue(s)
    for c in range(8):
        n = [24, 16, 16, 16, 16, 16, 8, 0][c]
        a(f'''s_waitcnt vmcnt({n})
              s_cmp_eq_u32 s75, 2
              s_cbranch_scc0 L_p1_nopatch{c}
              s_mov_b64 exec, 0xffff
              v_add_u32 v1, {(c & 3) * 32768}, v13
              ds_write_b16 v1, v14
              s_mov_b64 exec, -1
              s_waitcnt lgkmcnt(0)
              L_p1_nopatch{c}:
              s_barrier''')
        if 1 <= c <= 4:
            issue(c + 3)
    a('s_branch L_p1_done')

    a('''L_p1_compute:
         s_and_b32 s68, s3, 1             ; wr
         s_lshr_b32 s69, s3, 1            ; wc
         v_and_b32 v1, 31, v0
         v_lshrrev_b32 v2, 5, v0          ; h
         v_lshrrev_b32 v3, 1, v1
         v_and_b32 v3, 7, v3
         v_xor_b32 v3, v3, v2
         v_lshlrev_b32 v3, 4, v3
         v_lshl_add_u32 v3, v1, 7, v3
         s_lshl_b32 s4, s68, 13
         v_add_u32 v4, s4, v3
         v_xor_b32 v5, 32, v4
         v_xor_b32 v6, 64, v4
         v_xor_b32 v7, 96, v4
         v_bfe_u32 v10, v0, 2, 2          ; r
         v_lshl_add_u32 v11, v2, 3, v10   ; 8h + r
         v_lshlrev_b32 v11, 8, v11
         s_lshl_b32 s4, s69, 1
         v_xor_b32 v10, s4, v10
         v_lshl_add_u32 v11, v10, 6, v11
         v_bfe_u32 v10, v0, 4, 1
         v_lshl_add_u32 v11, v10, 5, v11
         v_and_b32 v10, 3, v0
         v_lshl_add_u32 v11, v10, 3, v11
         v_add_u32 v8, 16384, v11
         v_xor_b32 v9, 64, v8''')
    for i in range(64):
        a(f'v_mov_b32 v{64 + i}, 0')
    for i in range(16):
        a(f'v_mov_b32 v{32 + i}, 0')

    def reads(ks, st):
        b = 16 + 16 * st
        a(f'''ds_read_b128 {vr(b)}, v{4 + ks}
              ds_read_b64_tr_b16 {vr(b + 8, 2)}, v8 offset:{ks * 4096}
              ds_read_b64_tr_b16 {vr(b + 10, 2)}, v8 offset:{ks * 4096 + 1024}
              ds_read_b128 {vr(b + 4)}, v{4 + ks} offset:4096
              ds_read_b64_tr_b16 {vr(b + 12, 2)}, v9 offset:{ks * 4096}
              ds_read_b64_tr_b16 {vr(b + 14, 2)}, v9 offset:{ks * 4096 + 1024}''')

    def mfmas(st, T):
        b = 16 + 16 * st
        for rt, ct in ((0, 0), (1, 0), (0, 1), (1, 1)):
            acc = vr(64 + 32 * rt + 16 * ct, 16)
            x, w = vr(b + 4 * rt), vr(b + 8 + 4 * ct)
            a(f'v_mfma_f32_32x32x16_bf16 {acc}, {w if T else x}, {x if T else w}, {acc}')

    def loop(T, tag):
        a(f'''s_mov_b32 s70, 8
              L_p1_loop{tag}:
              s_barrier''')
        for ks in range(4):
            reads(ks, ks & 1)
            mfmas((ks & 1) ^ 1, T)
            a('s_waitcnt lgkmcnt(0)')
        for r in range(4, 10):
            a(f'''v_add_u32 v{r}, 0x8000, v{r}
                  v_and_b32 v{r}, 0x1ffff, v{r}''')
        a(f'''s_sub_u32 s70, s70, 1
              s_cmp_lg_u32 s70, 0
              s_cbranch_scc1 L_p1_loop{tag}''')
        mfmas(1, T)

    a('''s_cmp_ge_u32 s62, 2
         s_cbranch_scc1 L_p1_N''')
    loop(True, 'T')
    a(f'''s_cmp_eq_u32 s62, 0
          s_cselect_b32 s70, {f2u(CSCALE)}, 1.0
          s_cselect_b32 s71, 16, 17
          s_cselect_b32 s72, 10, 11
          s_cselect_b32 s73, {QF}, {KV}
          s_lshl_b32 s4, s64, 3
          s_lshl_b32 s5, s69, 2
          s_add_u32 s4, s4, s5             ; head0
          s_lshl_b32 s4, s4, s71
          s_lshl_b32 s5, s63, 2
          s_lshl_b32 s6, s68, 1
          s_add_u32 s5, s5, s6             ; tile0
          s_lshl_b32 s5, s5, s72
          s_add_u32 s73, s73, s4
          s_add_u32 s73, s73, s5
          s_lshl_b32 s74, 1, s71
          s_lshl_b32 s75, 1, s72
          v_lshlrev_b32 v1, 4, v0
          v_add_u32 v2, s75, v1
          s_nop 4''')
    for ct in range(2):
        for hh in range(2):
            for rt in range(2):
                src = 64 + 32 * rt + 16 * ct + 8 * hh
                dst = 16 + 4 * (4 * ct + 2 * hh + rt)
                for i in range(8):
                    a(f'v_mul_f32 v{src + i}, s70, v{src + i}')
                for i in range(4):
                    a(f'v_cvt_pk_bf16_f32 v{dst + i}, v{src + 2 * i}, v{src + 2 * i + 1}')
                a(f'buffer_store_dwordx4 {vr(dst)}, v{1 + rt}, s[16:19], s73 offen sc1')
            a('s_add_u32 s73, s73, s74')
    a('''s_branch L_p1_done
         L_p1_N:''')
    loop(False, 'N')
    a('''s_cmp_eq_u32 s62, 3
         s_cbranch_scc1 L_p1_epiA''')
    a(f'''s_lshl_b32 s4, s64, 3
          s_lshl_b32 s5, s69, 2
          s_add_u32 s4, s4, s5
          s_lshl_b32 s4, s4, 17
          s_lshl_b32 s5, s63, 2
          s_lshl_b32 s6, s68, 1
          s_add_u32 s5, s5, s6
          s_lshl_b32 s5, s5, 11
          s_add_u32 s73, s4, s5
          s_add_u32 s73, s73, {KV + 1024}
          v_and_b32 v1, 15, v0''')
    swap23(a, 1, 1, 2)
    a('''v_lshlrev_b32 v1, 4, v1
         v_bfe_u32 v2, v0, 4, 1
         v_lshl_add_u32 v1, v2, 17, v1
         v_lshrrev_b32 v2, 5, v0
         v_lshl_add_u32 v1, v2, 9, v1
         s_nop 2''')
    for ct in range(2):
        for rt in range(2):
            for g in range(2):
                src = 64 + 32 * rt + 16 * ct + 8 * g
                dst = 16 + 4 * (4 * ct + 2 * rt + g)
                for i in range(4):
                    a(f'v_cvt_pk_bf16_f32 v{dst + i}, v{src + 2 * i}, v{src + 2 * i + 1}')
                a(f'buffer_store_dwordx4 {vr(dst)}, v1, s[16:19], s73 offen offset:{rt * 2048 + g * 256} sc1')
        a('s_add_u32 s73, s73, 0x40000')
    a('''s_branch L_p1_done
         L_p1_epiA:''')
    a(f'''s_cmp_lt_u32 s64, 2
          s_cselect_b32 s70, 1.0, -1.0
          v_mov_b32 v10, s70
          v_mov_b32 v11, s70
          s_lshl_b32 s4, s64, 1
          s_add_u32 s4, s4, s69
          v_and_b32 v1, 31, v0
          s_cmp_eq_u32 s4, 4
          s_cselect_b32 s5, 1, 0
          s_mov_b32 vcc_lo, s5
          s_mov_b32 vcc_hi, s5
          v_mov_b32 v3, 1.0
          v_cndmask_b32 v10, v10, v3, vcc
          s_lshl_b32 s5, s63, 1
          s_add_u32 s5, s5, s68
          s_cmp_eq_u32 s5, 0
          s_cbranch_scc0 L_p1_noR
          s_lshl_b32 s6, s4, 8
          s_add_u32 s6, s6, {RR}
          v_lshlrev_b32 v2, 2, v1
          s_mov_b32 exec_hi, 0
          buffer_store_dword v96, v2, s[16:19], s6 offen sc1
          buffer_store_dword v112, v2, s[16:19], s6 offen offset:128 sc1
          s_nop 1
          v_mov_b32 v96, 0
          v_mov_b32 v112, 0
          s_mov_b64 exec, -1
          L_p1_noR:
          s_lshl_b32 s4, s4, 17
          s_lshl_b32 s5, s5, 11
          s_add_u32 s73, s4, s5
          s_add_u32 s73, s73, {EO}
          v_lshlrev_b32 v1, 4, v0''')
    for ct in range(2):
        for g in range(2):
            s0, s1 = 64 + 16 * ct + 8 * g, 96 + 16 * ct + 8 * g
            dst = 16 + 4 * (2 * ct + g)
            for i in range(8):
                a(f'v_fmac_f32 v{s0 + i}, v{10 + ct}, v{s1 + i}')
            for i in range(4):
                a(f'v_cvt_pk_bf16_f32 v{dst + i}, v{s0 + 2 * i}, v{s0 + 2 * i + 1}')
            a(f'buffer_store_dwordx4 {vr(dst)}, v1, s[16:19], s73 offen offset:{g * 1024} sc1')
        a('s_add_u32 s73, s73, 0x10000')
    a('L_p1_done:')


SA, SB, NM, OO, QQ, KF, V0, V1, IDX, KA, VA, VINC = 0, 16, 32, 48, 64, 68, 72, 76, 80, 81, 82, 83
LN = 84
PF = 128
ONES = 0x20000


def tile(a, X, Y, p):
    e = lambda i: a(f'v_exp_f32 v{X + i}, v{X + i}')
    o = p * 2048
    e(0); e(1)
    a(f'''s_waitcnt lgkmcnt(2)
          v_smfmac_f32_32x32x32_bf16 {vr(OO, 16)}, {vr(V1)}, {vr(Y + 8, 8)}, v{IDX}
          ds_read_b128 {vr(V1)}, v{VA} offset:{o + 1024 + 256}''')
    e(2); e(3); e(4)
    a(f'''s_waitcnt lgkmcnt(2)
          v_mfma_f32_32x32x16_bf16 {vr(Y, 16)}, {vr(KF)}, {vr(QQ)}, {vr(NM, 16)}
          ds_read_b128 {vr(KF)}, v{KA} offset:{o + 4096}''')
    for i in range(5, 10):
        e(i)
    a(f'''s_waitcnt lgkmcnt(2)
          v_smfmac_f32_32x32x32_bf16 {vr(OO, 16)}, {vr(V0)}, {vr(X, 8)}, v{IDX}
          ds_read_b128 {vr(V0)}, v{VA} offset:{o + 2048 + 1024}''')
    for i in range(10, 16):
        e(i)


def phase2(a):
    a(f'''s_lshl_b32 s62, s60, 2
          s_and_b32 s4, s61, 3
          s_add_u32 s62, s62, s4
          s_lshr_b32 s63, s61, 2
          s_lshl_b32 s64, s63, 3
          s_add_u32 s64, s64, s3
          s_mov_b32 s65, s62
          s_mov_b32 s66, s63               ; et = j
          v_mov_b32 v{LN}, v0
          v_lshlrev_b32 v{KA}, 4, v0
          s_waitcnt lgkmcnt(0)''')
    srd(a, 16, 56, WS_SIZE)
    srd(a, 20, 52, 0x400000)
    srd(a, 24, 38, 0x800000)
    srd(a, 28, 40, 0x800000)
    a(f'''s_lshl_b32 s4, s62, 16
          s_lshl_b32 s5, s64, 10
          s_add_u32 s4, s4, s5
          buffer_load_dwordx4 {vr(QQ)}, v{KA}, s[16:19], s4 offen sc1
          s_lshl_b32 s67, s62, 17
          s_add_u32 s67, s67, {KV}
          s_lshl_b32 s5, s3, 11
          s_add_u32 s6, s67, s5''')
    for c in range(8):
        a(f'''s_add_u32 s4, s63, {c}
              s_and_b32 s4, s4, 7
              s_lshl_b32 s4, s4, 14
              s_add_u32 s4, s4, s6
              s_add_u32 m0, s5, {c * 16384}
              s_nop 0
              buffer_load_dwordx4 v{KA}, s[16:19], s4 offen sc1 lds
              buffer_load_dwordx4 v{KA}, s[16:19], s4 offen offset:1024 sc1 lds''')
    a(f'''s_lshl_b32 s4, s3, 10
          s_add_u32 s4, s4, {ONES}
          v_add_u32 v1, s4, v{KA}
          v_mov_b32 v4, 0x3f803f80
          v_mov_b32 v5, v4
          v_mov_b32 v6, v4
          v_mov_b32 v7, v4
          ds_write_b128 v1, v[4:7]
          v_and_b32 v1, 16, v{LN}
          v_cmp_ne_u32 vcc, 0, v1
          v_and_b32 v2, 15, v{LN}
          v_lshlrev_b32 v2, 4, v2
          v_add_u32 v2, {ONES}, v2
          v_cndmask_b32 v{VA}, v{KA}, v2, vcc
          v_mov_b32 v2, 0x1000
          v_cndmask_b32 v{VINC}, v2, 0, vcc
          v_mov_b32 v{IDX}, 0xdddddddd''')
    for i in range(16):
        a(f'v_mov_b32 v{OO + i}, 0')
    for i in range(8):
        a(f'v_mov_b32 v{SB + 8 + i}, 0')
    for i in range(4):
        a(f'v_mov_b32 v{V1 + i}, 0')
    a(f'''v_and_b32 v1, 31, v{LN}
          s_lshl_b32 s4, s65, 5
          v_add_u32 v1, s4, v1
          v_lshlrev_b32 v1, 12, v1
          v_lshrrev_b32 v2, 5, v{LN}
          v_lshl_add_u32 v1, v2, 4, v1
          s_lshl_b32 s4, s3, 8
          v_add_u32 v85, s4, v1
          v_lshlrev_b32 v86, 4, v{LN}
          s_lshl_b32 s68, s66, 16
          s_lshl_b32 s4, s3, 13
          s_add_u32 s68, s68, s4
          s_add_u32 s68, s68, {EO}
          s_add_u32 s69, s68, 0x80000
          s_add_u32 s70, s68, 0x1000
          s_add_u32 s71, s69, 0x1000''')
    a(f'''s_waitcnt vmcnt(14) lgkmcnt(0)
          s_barrier
          ds_read_b128 {vr(KF)}, v{KA}
          s_waitcnt lgkmcnt(0)
          v_mfma_f32_32x32x16_bf16 {vr(SA, 16)}, {vr(KF)}, {vr(QQ)}, 0
          s_nop 11''')
    a(f'v_max3_f32 v87, v{SA}, v{SA + 1}, v{SA + 2}')
    for i in range(3, 15, 2):
        a(f'v_max3_f32 v87, v87, v{SA + i}, v{SA + i + 1}')
    a(f'''v_max_f32 v87, v87, v{SA + 15}
          v_mov_b32 v88, v87
          s_nop 1
          v_permlane32_swap_b32 v87, v88
          v_max_f32 v87, v87, v88
          v_sub_f32 v{NM}, {f2u(-OFFS)}, v87''')
    for i in range(1, 16):
        a(f'v_mov_b32 v{NM + i}, v{NM}')
    a(f'''s_nop 1
          v_mfma_f32_32x32x16_bf16 {vr(SA, 16)}, {vr(KF)}, {vr(QQ)}, {vr(NM, 16)}
          ds_read_b128 {vr(KF)}, v{KA} offset:2048
          ds_read_b128 {vr(V0)}, v{VA} offset:1024
          s_mov_b32 s72, 3
          s_mov_b32 s73, 0
          s_nop 7
          .p2align 6
          L_at_loop:''')
    tile(a, SA, SB, 0)
    tile(a, SB, SA, 1)
    a(f'''v_add_u32 v{KA}, 0x1000, v{KA}
          v_add_u32 v{VA}, v{VINC}, v{VA}
          s_sub_u32 s72, s72, 1
          s_cmp_lg_u32 s72, 0
          s_cbranch_scc1 L_at_loop''')
    segs = []
    segs.append((8, 's_waitcnt vmcnt(10)\ns_barrier'))
    first = True
    for g in range(8):
        code = 's_waitcnt vmcnt(0)\ns_barrier\n' if first else ''
        first = False
        if g < 4:
            for i in range(4):
                ks = 4 * (g & 1) + i
                code += f'buffer_load_dwordx4 {vr(PF + 32 * (g >> 1) + 4 * ks)}, v85, s[{24 + 4 * (g >> 1)}:{27 + 4 * (g >> 1)}], 0 offen offset:{ks * 32}\n'
        else:
            gg = g - 4
            for i in range(4):
                ks = 4 * (gg & 1) + i
                so = 68 + (gg >> 1) + 2 * (gg & 1)
                code += f'buffer_load_dwordx4 {vr(PF + 64 + 32 * (gg >> 1) + 4 * ks)}, v86, s[16:19], s{so} offen offset:{i * 1024} sc1\n'
        segs.append((2 if g < 7 else 7, code))
    assert 3 + sum(n for n, _ in segs) == 32
    for k, (n, code) in enumerate(segs):
        a(f'''s_cmp_eq_u32 s73, {k}
              s_cbranch_scc0 L_at_seg{k + 1}''')
        a(code)
        a(f'''s_mov_b32 s72, {n}
              s_mov_b32 s73, {k + 1}
              s_branch L_at_loop
              L_at_seg{k + 1}:''')
    a(f'''s_waitcnt lgkmcnt(0)
          v_smfmac_f32_32x32x32_bf16 {vr(OO, 16)}, {vr(V1)}, {vr(SB + 8, 8)}, v{IDX}
          s_mov_b32 s4, {f2u(2.0 ** 120)}
          s_nop 11
          v_max3_f32 v1, abs(v{OO}), abs(v{OO + 1}), abs(v{OO + 2})
          v_max3_f32 v1, v1, abs(v{OO + 3}), abs(v{OO + 4})
          v_max3_f32 v1, v1, abs(v{OO + 5}), abs(v{OO + 6})
          v_max3_f32 v1, v1, abs(v{OO + 7}), abs(v{OO + 8})
          v_add_f32 v2, v{OO}, v{OO + 1}
          v_add_f32 v3, v{OO + 2}, v{OO + 3}
          v_add_f32 v4, v{OO + 4}, v{OO + 5}
          v_add_f32 v5, v{OO + 6}, v{OO + 7}
          v_add_f32 v2, v2, v3
          v_add_f32 v4, v4, v5
          v_add_f32 v2, v2, v4
          v_add_f32 v2, v2, v{OO + 8}
          v_cmp_ngt_f32 vcc, s4, v1
          v_cmp_u_f32 s[6:7], v2, v2
          s_or_b64 vcc, vcc, s[6:7]
          s_cbranch_vccnz L_at_fallback
          L_at_final:
          v_rcp_f32 v1, v{OO + 8}
          s_lshl_b32 s4, s64, 15
          s_lshl_b32 s5, s62, 10
          s_add_u32 s4, s4, s5
          s_add_u32 s4, s4, {OF}''')
    for i in range(8):
        a(f'v_mul_f32 v{OO + i}, v1, v{OO + i}')
    for i in range(4):
        a(f'v_cvt_pk_bf16_f32 v{4 + i}, v{OO + 2 * i}, v{OO + 2 * i + 1}')
    a('buffer_store_dwordx4 v[4:7], v86, s[16:19], s4 offen sc1')
    a2_tail(a)
    a('s_endpgm')
    fallback(a)


def fallback(a):
    a(f'''L_at_fallback:
          s_waitcnt vmcnt(0)
          v_mov_b32 v87, 0xff800000
          s_mov_b32 s4, s67
          s_mov_b32 s5, 64
          L_fb_max:
          buffer_load_dwordx4 {vr(KF)}, v86, s[16:19], s4 offen sc1
          s_waitcnt vmcnt(0)
          v_mfma_f32_32x32x16_bf16 {vr(SA, 16)}, {vr(KF)}, {vr(QQ)}, 0
          s_nop 11''')
    for i in range(0, 16, 2):
        a(f'v_max3_f32 v87, v87, v{SA + i}, v{SA + i + 1}')
    a(f'''s_add_u32 s4, s4, 2048
          s_sub_u32 s5, s5, 1
          s_cmp_lg_u32 s5, 0
          s_cbranch_scc1 L_fb_max
          v_mov_b32 v88, v87
          s_nop 1
          v_permlane32_swap_b32 v87, v88
          v_max_f32 v87, v87, v88
          v_sub_f32 v{NM}, 0, v87''')
    for i in range(1, 16):
        a(f'v_mov_b32 v{NM + i}, v{NM}')
    for i in range(16):
        a(f'v_mov_b32 v{OO + i}, 0')
    for i in range(8):
        a(f'v_mov_b32 v{V0 + i}, 0x3f803f80')
    a(f'''s_mov_b32 s4, s67
          s_mov_b32 s5, 64
          s_mov_b32 s6, 0xffff
          s_mov_b32 s7, 0xffff
          L_fb_pv:
          buffer_load_dwordx4 {vr(KF)}, v86, s[16:19], s4 offen sc1
          s_mov_b64 exec, s[6:7]
          buffer_load_dwordx4 {vr(V0)}, v86, s[16:19], s4 offen offset:1024 sc1
          buffer_load_dwordx4 {vr(V1)}, v86, s[16:19], s4 offen offset:1280 sc1
          s_mov_b64 exec, -1
          s_waitcnt vmcnt(0)
          v_mfma_f32_32x32x16_bf16 {vr(SA, 16)}, {vr(KF)}, {vr(QQ)}, {vr(NM, 16)}
          s_nop 11''')
    for i in range(16):
        a(f'v_exp_f32 v{SA + i}, v{SA + i}')
    a(f'''s_nop 1
          v_smfmac_f32_32x32x32_bf16 {vr(OO, 16)}, {vr(V0)}, {vr(SA, 8)}, v{IDX}
          v_smfmac_f32_32x32x32_bf16 {vr(OO, 16)}, {vr(V1)}, {vr(SA + 8, 8)}, v{IDX}
          s_add_u32 s4, s4, 2048
          s_sub_u32 s5, s5, 1
          s_cmp_lg_u32 s5, 0
          s_cbranch_scc1 L_fb_pv
          s_nop 11
          s_branch L_at_final''')


def a2_tail(a):
    CC, SS, X3, X4 = 16, 32, 48, 64
    C, S, E, O = PF, PF + 32, PF + 64, PF + 96
    a(f'''v_and_b32 v10, 31, v{LN}
          s_lshl_b32 s4, s66, 5
          v_add_u32 v10, s4, v10           ; e
          v_lshlrev_b32 v11, 2, v10
          s_mov_b32 s5, {RR}
          v_mov_b32 v12, 0
          buffer_load_dword v8, v11, s[16:19], s5 offen sc1
          buffer_load_dword v9, v12, s[16:19], s5 offen offset:1024 sc1
          s_waitcnt vmcnt(3)
          s_cmp_eq_u32 s65, 0
          s_cbranch_scc0 L_a2_nopatch
          s_mov_b32 s6, 1
          s_mov_b32 s7, 1
          s_mov_b64 exec, s[6:7]''')
    for i in range(32):
        a(f'v_mov_b32 v{S + i}, 0xbf803f80')
    a('''s_mov_b64 exec, -1
         s_nop 1''')
    for ks in range(8):
        a(f'v_mfma_f32_32x32x16_bf16 {vr(X4, 16)}, {vr(S + 4 * ks)}, {vr(E + 4 * ks)}, {vr(X4, 16) if ks else 0}')
    a('''L_a2_nopatch:
         s_cmp_eq_u32 s66, 0
         s_cbranch_scc0 L_a2_nox3''')
    for ks in range(8):
        a(f'v_mfma_f32_32x32x16_bf16 {vr(X3, 16)}, {vr(C + 4 * ks)}, {vr(O + 4 * ks)}, {vr(X3, 16) if ks else 0}')
    a('L_a2_nox3:')
    for ks in range(8):
        a(f'v_mfma_f32_32x32x16_bf16 {vr(CC, 16)}, {vr(C + 4 * ks)}, {vr(E + 4 * ks)}, {vr(CC, 16) if ks else 0}')
    for ks in range(8):
        a(f'v_mfma_f32_32x32x16_bf16 {vr(SS, 16)}, {vr(S + 4 * ks)}, {vr(O + 4 * ks)}, {vr(SS, 16) if ks else 0}')
    a(f'''s_barrier
          s_lshl_b32 s4, s3, 13
          v_add_u32 v1, s4, v86
          s_lshl_b32 s4, s3, 7
          s_add_u32 s4, s4, 0x10000
          v_lshrrev_b32 v2, 5, v{LN}
          v_lshl_add_u32 v2, v2, 4, s4     ; X3p + h*16
          v_lshl_add_u32 v3, v{LN}, 2, s4  ; X4p - 0x400 + lane*4
          s_nop 4''')
    for q in range(4):
        a(f'ds_write_b128 v1, {vr(CC + 4 * q)} offset:{q * 1024}')
    a('''s_mov_b32 s6, 1
         s_mov_b32 s7, 1
         s_mov_b64 exec, s[6:7]''')
    for q in range(4):
        a(f'ds_write_b128 v2, {vr(X3 + 4 * q)} offset:{q * 32}')
    a(f'''s_mov_b32 exec_lo, -1
          s_mov_b32 exec_hi, 0
          ds_write_b32 v3, v{X4} offset:1024
          s_mov_b64 exec, -1''')
    for q in range(4):
        a(f'ds_write_b128 v1, {vr(SS + 4 * q)} offset:{4096 + q * 1024}')
    a(f'''s_lshr_b32 s4, s3, 1
          s_and_b32 s5, s3, 1
          s_lshl_b32 s6, s4, 10
          s_lshl_b32 s7, s5, 3
          s_add_u32 s6, s6, s7
          v_add_u32 v1, s6, v86
          s_lshl_b32 s6, s4, 3
          s_lshl_b32 s7, s5, 1
          s_add_u32 s6, s6, s7
          v_lshrrev_b32 v2, 5, v{LN}
          v_lshl_add_u32 v13, v2, 2, s6
          v_lshlrev_b32 v2, 2, v13
          v_add_u32 v2, 0x10000, v2
          v_and_b32 v3, 31, v{LN}
          v_lshlrev_b32 v3, 2, v3
          v_add_u32 v3, 0x10400, v3
          s_waitcnt lgkmcnt(0)
          s_barrier''')
    for w in range(8):
        a(f'''ds_read_b64 {vr(128 + 2 * w, 2)}, v1 offset:{w * 8192}
              ds_read_b64 {vr(144 + 2 * w, 2)}, v1 offset:{w * 8192 + 4096}''')
    for w in range(8):
        a(f'''ds_read_b64 {vr(160 + 2 * w, 2)}, v2 offset:{w * 128}
              ds_read_b32 v{176 + w}, v3 offset:{w * 128}''')
    a(f'''s_lshl_b32 s4, s65, 5
          v_add_u32 v13, s4, v13           ; t0 (even), t1 = t0 + 1
          v_cmp_eq_u32 s[74:75], 0, v13    ; t0 == 0
          v_cmp_eq_u32 s[76:77], 0, v10    ; e == 0
          v_sub_u32 v14, 0x800, v13
          v_mov_b32 v15, 0x400
          v_cndmask_b32 v15, v14, v15, s[74:75]
          v_subrev_u32 v14, 1, v14
          v_sub_u32 v16, 0x200, v10
          v_mov_b32 v17, 0x100
          v_cndmask_b32 v16, v16, v17, s[76:77]   ; col2
          v_lshlrev_b32 v17, 1, v10
          v_lshlrev_b32 v16, 1, v16
          v_lshl_add_u32 v20, v13, 11, v17        ; (t0, e)   ; t1: +2048
          v_lshl_add_u32 v21, v13, 11, v16        ; (t0, col2)
          v_lshl_add_u32 v22, v15, 11, v17        ; (row2(t0), e)
          v_lshl_add_u32 v23, v15, 11, v16
          v_lshl_add_u32 v24, v14, 11, v17        ; (row2(t1), e)
          v_lshl_add_u32 v25, v14, 11, v16
          s_waitcnt lgkmcnt(0) vmcnt(0)''')
    for base, n, st in ((128, 2, 2), (144, 2, 2), (160, 2, 2), (176, 1, 1)):
        for step in (4, 2, 1):
            for w in range(step):
                for i in range(n):
                    a(f'v_add_f32 v{base + st * w + i}, v{base + st * w + i}, v{base + st * (w + step) + i}')
    a('''v_add_f32 v128, v128, v8
         v_sub_f32 v129, v129, v8
         v_add_f32 v160, v160, v9
         v_sub_f32 v161, v161, v9
         v_add_f32 v176, v176, v8
         v_add_f32 v177, v144, v9          ; corner
         s_or_b64 s[78:79], s[74:75], s[76:77]
         s_and_b64 s[80:81], s[74:75], s[76:77]
         v_cndmask_b32 v144, v144, 0, s[78:79]
         v_cndmask_b32 v145, v145, 0, s[76:77]
         v_sub_f32 v30, v128, v144         ; v11(t0)
         v_add_f32 v31, v128, v144         ; plus(t0)
         v_sub_f32 v32, v129, v145         ; v11(t1)
         v_add_f32 v33, v129, v145         ; plus(t1) = v21(t1)
         v_cndmask_b32 v34, v31, v160, s[76:77]    ; v12(t0)
         v_cndmask_b32 v35, v31, v176, s[74:75]    ; v21(t0)
         v_cndmask_b32 v36, v30, v160, s[76:77]
         v_cndmask_b32 v36, v36, v176, s[74:75]
         v_cndmask_b32 v36, v36, v177, s[80:81]    ; v22(t0)
         v_cndmask_b32 v37, v33, v161, s[76:77]    ; v12(t1)
         v_cndmask_b32 v38, v32, v161, s[76:77]    ; v22(t1)
         v_cvt_pk_bf16_f32 v40, v30, v32
         v_cvt_pk_bf16_f32 v41, v34, v37
         v_cvt_pk_bf16_f32 v42, v35, v33
         v_cvt_pk_bf16_f32 v43, v36, v38
         buffer_store_short v40, v20, s[20:23], 0 offen
         buffer_store_short_d16_hi v40, v20, s[20:23], 0 offen offset:2048
         buffer_store_short v41, v21, s[20:23], 0 offen
         buffer_store_short_d16_hi v41, v21, s[20:23], 0 offen offset:2048
         buffer_store_short v42, v22, s[20:23], 0 offen
         buffer_store_short_d16_hi v42, v24, s[20:23], 0 offen
         buffer_store_short v43, v23, s[20:23], 0 offen
         buffer_store_short_d16_hi v43, v25, s[20:23], 0 offen''')


def phase3(a):
    a('''s_lshl_b32 s62, s60, 3
         s_and_b32 s4, s61, 7
         s_add_u32 s62, s62, s4
         s_lshr_b32 s63, s61, 3
         v_lshlrev_b32 v2, 4, v0
         v_lshrrev_b32 v1, 4, v0
         v_and_b32 v3, 15, v0
         v_lshlrev_b32 v4, 2, v1
         v_xor_b32 v3, v3, v4
         v_lshlrev_b32 v3, 4, v3
         v_lshl_add_u32 v3, v1, 10, v3
         s_waitcnt lgkmcnt(0)''')
    srd(a, 16, 56, WS_SIZE)
    srd(a, 20, 52, 0x400000)
    srd(a, 32, 50, 0x80000)
    a(f'''s_lshl_b32 s5, s62, 15
          s_lshl_b32 s6, s3, 10
          s_add_u32 s5, s5, s6
          s_add_u32 s5, s5, {OF}
          s_lshl_b32 s7, s63, 8
          s_lshl_b32 s4, s3, 14
          s_add_u32 s7, s7, s4
          s_lshl_b32 s64, s3, 12''')
    for st in range(4):
        a(f'''s_add_u32 m0, s6, {0x20000 + st * 8192}
              s_nop 0
              buffer_load_dwordx4 v2, s[16:19], s5 offen sc1 lds
              s_add_u32 s5, s5, 8192''')
        for i in range(4):
            a(f'''s_add_u32 m0, s64, {st * 32768 + i * 1024}
                  s_add_u32 s4, s7, {st * 131072 + i * 4096}
                  buffer_load_dwordx4 v3, s[32:35], s4 offen lds''')
    a('''v_lshrrev_b32 v4, 5, v0          ; h
         v_bfe_u32 v10, v0, 2, 2          ; r
         v_lshl_add_u32 v11, v4, 3, v10
         v_lshlrev_b32 v11, 8, v11
         s_and_b32 s4, s3, 3
         v_xor_b32 v10, s4, v10
         v_lshl_add_u32 v11, v10, 6, v11
         v_bfe_u32 v10, v0, 4, 1
         v_lshl_add_u32 v11, v10, 5, v11
         v_and_b32 v10, 1, v0
         v_lshl_add_u32 v11, v10, 4, v11
         v_bfe_u32 v10, v0, 1, 1
         v_lshl_add_u32 v8, v10, 3, v11
         v_add_u32 v9, 0x20000, v2''')
    for i in range(16):
        a(f'v_mov_b32 v{64 + i}, 0')
    for st in range(4):
        a(f'''s_waitcnt vmcnt({15 - 5 * st})
              s_barrier
              s_cmp_ge_u32 s3, 4
              s_cbranch_scc1 L_p3_skip{st}''')
        for ks in range(8):
            b = 16 + 4 * (ks & 3) * 2
            a(f'''ds_read_b128 {vr(b)}, v9 offset:{st * 8192 + ks * 1024}
                  ds_read_b64_tr_b16 {vr(b + 4, 2)}, v8 offset:{ks * 4096}
                  ds_read_b64_tr_b16 {vr(b + 6, 2)}, v8 offset:{ks * 4096 + 1024}''')
            if ks >= 3:
                p = 16 + 8 * ((ks - 3) & 3)
                a(f'''s_waitcnt lgkmcnt(9)
                      v_mfma_f32_32x32x16_bf16 v[64:79], {vr(p + 4)}, {vr(p)}, v[64:79]''')
        for ks in range(5, 8):
            p = 16 + 8 * (ks & 3)
            a(f'''s_waitcnt lgkmcnt({3 * (7 - ks)})
                  v_mfma_f32_32x32x16_bf16 v[64:79], {vr(p + 4)}, {vr(p)}, v[64:79]''')
        a(f'''v_add_u32 v8, 0x8000, v8
              L_p3_skip{st}:''')
    a('''s_cmp_ge_u32 s3, 4
         s_cbranch_scc1 L_p3_done
         v_and_b32 v1, 31, v0
         s_lshl_b32 s4, s62, 5
         v_add_u32 v1, s4, v1
         v_lshlrev_b32 v1, 11, v1
         v_lshl_add_u32 v1, v4, 4, v1
         s_lshl_b32 s4, s63, 8
         s_lshl_b32 s5, s3, 6
         s_add_u32 s4, s4, s5
         s_add_u32 s4, s4, 1024
         s_nop 4''')
    for i in range(8):
        a(f'v_cvt_pk_bf16_f32 v{16 + i}, v{64 + 2 * i}, v{65 + 2 * i}')
    a('''buffer_store_dwordx4 v[16:19], v1, s[20:23], s4 offen
         buffer_store_dwordx4 v[20:23], v1, s[20:23], s4 offen offset:32
         L_p3_done:''')


def kd(name, vgpr):
    return f'''.amdhsa_kernel {name}
  .amdhsa_next_free_vgpr {vgpr}
  .amdhsa_next_free_sgpr 96
  .amdhsa_accum_offset {vgpr}
  .amdhsa_group_segment_fixed_size 0
  .amdhsa_kernarg_size 88
  .amdhsa_user_sgpr_count 2
  .amdhsa_user_sgpr_kernarg_segment_ptr 1
  .amdhsa_system_sgpr_workgroup_id_x 1
.end_amdhsa_kernel
'''


def main(path):
    hdr = ''.join(l for l in open(f'cdna_kernels/{NAME}.s.ref') if l.startswith(';') and '@launch' not in l
                  and 'Override' not in l and 'grid=ceil' not in l)
    out = hdr
    out += '; @launch kernel=p1_kernel grid=(256,1,1) block=(512,1,1) lds=131072\n'
    out += '; @launch kernel=p2_kernel grid=(256,1,1) block=(512,1,1) lds=139264\n'
    out += '; @launch kernel=p3_kernel grid=(256,1,1) block=(512,1,1) lds=163840\n'
    out += '.amdgcn_target "amdgcn-amd-amdhsa--gfx950"\n.text\n'
    for tag, fn in (('p1', phase1), ('p2', phase2), ('p3', phase3)):
        a = A()
        prologue(a, tag)
        fn(a)
        a(f'L_{tag}_end:\ns_endpgm')
        out += f'.globl {tag}_kernel\n.p2align 8\n.type {tag}_kernel,@function\n{tag}_kernel:\n' + a.text()
    out += '.section .rodata,"a"\n'
    for tag, v in (('p1', 128), ('p2', 256), ('p3', 128)):
        out += '.p2align 6\n' + kd(f'{tag}_kernel', v)
    open(path, 'w').write(out)


if __name__ == '__main__':
    main(sys.argv[1] if len(sys.argv) > 1 else f'cdna_kernels/{NAME}.s')
```

```python
import math, struct, sys

NAME = 'concat_heads__spectral_fnet__softmax_full_mha__prompt'
QF, KV, EO, OF, WOF, RR, FLAGS, EPOCH, STAMP, WS_SIZE = (
    0, 0x200000, 0x600000, 0x700000, 0x900000, 0x980000, 0x990000, 0x9A0000, 0x9C0000, 0xA00000)
OFFS = 100.0
VLOG = 40
CSCALE = 0.25 * math.log2(math.e)
ONEBF = (127 + VLOG) << 7
SPIN = 400000
OPT = dict(stamps=False, cyc=False)


def f2u(x):
    return struct.unpack('<I', struct.pack('<f', x))[0]


class A:
    def __init__(self):
        self.l = []

    def __call__(self, s):
        for ln in s.strip('\n').split('\n'):
            ln = ln.strip()
            if not ln:
                continue
            self.l.append(ln if ln.endswith(':') or ln.startswith('.') else '    ' + ln)

    def text(self):
        return '\n'.join(self.l) + '\n'


def vr(b, n=4):
    return f'v[{b}:{b + n - 1}]'


def srd(a, d, lo, size):
    a(f'''s_mov_b32 s{d}, s{lo}
          s_mov_b32 s{d + 1}, s{lo + 1}
          s_mov_b32 s{d + 2}, {size}
          s_mov_b32 s{d + 3}, 0x20000''')


STV = 126


def stamp(a, slot):
    if not OPT['stamps']:
        return
    a(f'''{'s_memtime' if OPT['cyc'] else 's_memrealtime'} s[94:95]
          s_waitcnt lgkmcnt(0)
          v_writelane_b32 v{STV}, s94, {slot}''')


def stamp_dump(a):
    if not OPT['stamps']:
        return
    a(f'''v_mbcnt_lo_u32_b32 v{STV + 1}, -1, 0
          v_mbcnt_hi_u32_b32 v{STV + 1}, -1, v{STV + 1}
          v_lshlrev_b32 v{STV + 1}, 2, v{STV + 1}
          s_lshl_b32 s92, s2, 3
          s_add_u32 s92, s92, s3
          s_lshl_b32 s92, s92, 7
          s_add_u32 s92, s92, {STAMP}
          s_mov_b32 exec_hi, 0
          buffer_store_dword v{STV}, v{STV + 1}, s[16:19], s92 offen sc1
          s_mov_b64 exec, -1''')


SA, SB, NMA, NMB, OA, OB, QA, QB, KF, V0, V1 = 0, 16, 32, 48, 64, 80, 96, 100, 104, 108, 112
IDX, KA, VA, VINC, L16, WSA, LN, T0, T1, T2 = 116, 117, 118, 119, 120, 121, 122, 123, 124, 125
A2C, A2S, A2E, A2O, WO = 128, 144, 160, 176, 192
ONES, MRG, WST = 0x20000, 0x22800, 0x27000
LDS_BYTES = 0x28000


def prologue(a):
    a(f'''s_cmp_ge_u32 s2, 256
          s_cbranch_scc1 L_end
          s_load_dwordx16 s[36:51], s[0:1], 0
          s_load_dwordx4 s[52:55], s[0:1], 64
          s_load_dwordx2 s[56:57], s[0:1], 80
          v_lshrrev_b32 v1, 6, v0
          v_and_b32 v0, 63, v0
          v_readfirstlane_b32 s3, v1
          s_and_b32 s60, s2, 7
          s_lshr_b32 s61, s2, 3
          v_mov_b32 v{LN}, v0
          v_lshlrev_b32 v{L16}, 4, v0
          s_lshr_b32 s62, s60, 1
          s_and_b32 s63, s60, 1
          s_lshl_b32 s63, s63, 3
          s_and_b32 s4, s61, 7
          s_add_u32 s63, s63, s4
          s_lshr_b32 s64, s61, 3
          s_lshl_b32 s65, s64, 1
          s_add_u32 s65, s65, s4
          s_and_b32 s65, s65, 7
          s_lshl_b32 s76, s60, 2
          s_and_b32 s5, s61, 3
          s_add_u32 s76, s76, s5           ; head
          s_lshr_b32 s77, s61, 2           ; j
          s_and_b32 s78, s3, 3             ; q pair
          s_lshr_b32 s79, s3, 2
          s_lshl_b32 s80, s60, 3
          s_add_u32 s80, s80, s4           ; qt
          s_mov_b32 s81, s64               ; nb
          s_cmp_eq_u32 s62, 3
          s_cselect_b32 s66, 1, 3
          s_lshl_b32 s14, s66, 19
          s_lshl_b32 s66, s66, 10          ; W pitch
          s_lshl_b32 s6, s62, 10
          s_lshl_b32 s7, s64, 8
          s_add_u32 s6, s6, s7
          s_and_b32 s7, s7, 256
          s_cmp_eq_u32 s62, 3
          s_cselect_b32 s67, s7, s6
          s_mov_b32 s10, 0x200000
          s_mov_b32 s11, 0x20000
          s_mov_b32 s15, 0x20000''')


def srds(a):
    a('''s_waitcnt lgkmcnt(0)
         s_cmp_lt_u32 s64, 2
         s_cselect_b32 s4, s42, s44
         s_cselect_b32 s5, s43, s45
         s_cmp_eq_u32 s62, 3
         s_cselect_b32 s8, s36, s46
         s_cselect_b32 s9, s37, s47
         s_cselect_b32 s12, s4, s48
         s_cselect_b32 s13, s5, s49''')


def srds_late(a):
    srd(a, 16, 56, WS_SIZE)
    srd(a, 32, 50, 0x80000)


def srds_attn(a):
    srd(a, 20, 52, 0x400000)
    srd(a, 24, 38, 0x800000)
    srd(a, 28, 40, 0x800000)


def o_offset(a):
    a(f'''s_lshl_b32 s4, s77, 3
          s_lshl_b32 s5, s78, 1
          s_add_u32 s4, s4, s5
          s_add_u32 s4, s4, s79
          s_lshl_b32 s4, s4, 15
          s_lshl_b32 s5, s76, 10
          s_add_u32 s4, s4, s5
          s_add_u32 s82, s4, {OF}''')


def epoch_load(a):
    a(f'''v_mov_b32 v20, 0
          s_mov_b32 s4, {EPOCH}
          buffer_load_dword v21, v20, s[16:19], s4 offen sc1''')


def p1_loader(a):
    a('''s_sub_u32 s68, s3, 4             ; lw
         v_lshrrev_b32 v1, 3, v0
         v_and_b32 v2, 7, v0
         v_lshrrev_b32 v3, 4, v0
         v_xor_b32 v2, v2, v3
         v_lshlrev_b32 v2, 4, v2
         v_xor_b32 v9, 64, v2
         s_cmp_eq_u32 s62, 3
         s_cbranch_scc1 L_p1_rowsA
         s_lshl_b32 s4, s63, 7
         s_lshl_b32 s5, s68, 5
         s_add_u32 s4, s4, s5
         v_add_u32 v1, s4, v1
         v_lshl_add_u32 v4, v1, 10, v2
         v_lshl_add_u32 v5, v1, 10, v9
         v_add_u32 v5, 0x2000, v5
         v_add_u32 v6, 0x4000, v4
         v_add_u32 v7, 0x4000, v5
         s_branch L_p1_rowsdone
         L_p1_rowsA:
         s_lshl_b32 s4, s63, 5
         s_lshr_b32 s5, s68, 1
         s_lshl_b32 s5, s5, 4
         s_add_u32 s4, s4, s5
         v_add_u32 v1, s4, v1
         s_and_b32 s5, s68, 1
         s_lshl_b32 s6, s5, 10            ; B
         s_lshl_b32 s7, s5, 9
         v_cmp_eq_u32 vcc, 0, v1
         v_mov_b32 v10, s7
         v_add_u32 v11, s6, v1            ; B + s'
         v_cndmask_b32 v10, 0, v10, vcc
         s_add_u32 s6, s6, 1024
         v_sub_u32 v12, s6, v1            ; B + 1024 - s'
         v_add_u32 v13, 8, v11
         v_subrev_u32 v14, 8, v12
         v_sub_u32 v11, v11, v10
         v_sub_u32 v12, v12, v10
         v_lshl_add_u32 v4, v11, 10, v2
         v_lshl_add_u32 v5, v13, 10, v9
         v_lshl_add_u32 v6, v12, 10, v2
         v_lshl_add_u32 v7, v14, 10, v9
         L_p1_rowsdone:
         v_and_b32 v2, 15, v0
         v_lshlrev_b32 v9, 2, v3
         v_xor_b32 v2, v2, v9
         v_lshlrev_b32 v2, 4, v2
         s_lshl_b32 s4, s68, 4
         v_add_u32 v3, s4, v3
         v_mul_lo_u32 v3, v3, s66
         v_add3_u32 v8, v3, v2, s67
         v_xor_b32 v9, 32, v8
         s_lshl_b32 s72, s66, 2           ; 4*pitch
         s_lshl_b32 s73, s66, 6           ; 64*pitch
         s_lshl_b32 s74, s68, 12''')
    srds(a)

    def issue(stage):
        slot = stage & 3
        a(f'''s_add_u32 s4, s65, {stage}
              s_and_b32 s4, s4, 7
              s_lshl_b32 s5, s4, 7
              s_mul_i32 s6, s4, s73''')
        for i in range(4):
            a(f'''s_add_u32 m0, s74, {slot * 32768 + i * 1024}
                  s_nop 0
                  buffer_load_dwordx4 v{4 + i}, s[8:11], s5 offen lds
                  s_add_u32 m0, s74, {slot * 32768 + 16384 + i * 1024}
                  s_nop 0
                  buffer_load_dwordx4 v{8 + (i >> 1)}, s[12:15], s6 offen lds''')
            if i < 3:
                a('s_add_u32 s6, s6, s72')

    stamp(a, 0)
    issue(0)
    issue(1)
    srds_late(a)
    a('''v_and_b32 v1, 3, v0
         v_lshlrev_b32 v1, 1, v1
         v_bfe_u32 v2, v0, 3, 1
         v_or_b32 v1, v1, v2
         v_lshlrev_b32 v1, 5, v1
         s_lshl_b32 s4, s68, 4
         v_add_u32 v2, s4, v0
         v_lshl_add_u32 v13, v2, 8, v1
         v_add_u32 v13, 16384, v13
         v_and_b32 v1, 1, v0
         v_lshlrev_b32 v1, 15, v1
         v_or_b32 v14, 0x3f80, v1
         s_cmp_eq_u32 s62, 3
         s_cselect_b32 s75, s64, 0        ; ==2 -> patch''')
    for c in range(8):
        a(f'''s_waitcnt vmcnt({[8, 8, 8, 8, 9, 8, 8, 0][c]})
              s_cmp_eq_u32 s75, 2
              s_cbranch_scc0 L_p1_nopatch{c}
              s_mov_b64 exec, 0xffff
              v_add_u32 v1, {(c & 3) * 32768}, v13
              ds_write_b16 v1, v14
              s_mov_b64 exec, -1
              s_waitcnt lgkmcnt(0)
              L_p1_nopatch{c}:
              s_barrier''')
        if c in (0, 1, 7):
            stamp(a, {0: 1, 1: 2, 7: 3}[c])
        if c == 3:
            o_offset(a)
            epoch_load(a)
        if c == 5:
            a('''v_readfirstlane_b32 s58, v21
                 s_nop 0
                 s_add_u32 s58, s58, 1''')
        if c <= 5:
            issue(c + 2)
    a('s_barrier')
    a(f'''v_and_b32 v1, 11, v0
          v_cmp_eq_u32 vcc, 0, v1
          v_mov_b32 v2, {ONEBF * 0x10001}
          s_mul_i32 s4, s68, 2560
          v_cndmask_b32 v4, 0, v2, vcc
          v_mov_b32 v5, v4
          v_mov_b32 v6, v4
          v_mov_b32 v7, v4
          s_add_u32 s4, s4, {ONES}
          v_add_u32 v1, s4, v{L16}
          ds_write_b128 v1, v[4:7]
          ds_write_b128 v1, v[4:7] offset:1024
          ds_write_b128 v1, v[4:7] offset:1536''')


def p1_compute(a):
    srds_late_done = False
    a('''s_and_b32 s68, s3, 1             ; wr
         s_lshr_b32 s69, s3, 1            ; wc
         v_and_b32 v1, 15, v0
         v_lshrrev_b32 v2, 4, v0          ; g
         v_lshrrev_b32 v3, 1, v1
         v_xor_b32 v3, v3, v2
         v_lshlrev_b32 v3, 4, v3
         v_lshl_add_u32 v3, v1, 7, v3
         s_lshl_b32 s4, s68, 13
         v_add_u32 v4, s4, v3
         v_xor_b32 v5, 64, v4
         v_bfe_u32 v10, v0, 2, 2          ; r
         v_lshl_add_u32 v11, v2, 3, v10   ; 8g + r
         v_lshlrev_b32 v11, 8, v11
         v_lshlrev_b32 v10, 1, v10
         v_and_b32 v12, 1, v2
         v_or_b32 v10, v10, v12           ; z
         s_lshl_b32 s4, s69, 2
         v_xor_b32 v10, s4, v10
         v_lshl_add_u32 v11, v10, 5, v11
         v_and_b32 v10, 3, v0
         v_lshl_add_u32 v11, v10, 3, v11
         v_add_u32 v6, 16384, v11
         v_xor_b32 v7, 32, v6
         v_xor_b32 v8, 64, v6
         v_xor_b32 v9, 96, v6''')
    for i in range(32):
        a(f'v_mov_b64 {vr(128 + 2 * i, 2)}, 0')
    o_offset(a)
    a(f'''v_mov_b32 v16, -1
          v_mov_b32 v17, -1
          v_mov_b32 v18, -1
          v_mov_b32 v19, -1
          s_lshl_b32 s6, s3, 13
          v_lshlrev_b32 v22, 7, v0
          v_add_u32 v22, s6, v22
          v_min_u32 v22, L_code_end - L_pc - 4, v22
          v_lshrrev_b32 v1, 2, v0
          v_and_b32 v2, 3, v0
          v_lshlrev_b32 v3, 4, v2
          v_lshl_add_u32 v1, v1, 10, v3
          v_lshrrev_b32 v3, 4, v0
          v_bfe_u32 v10, v0, 2, 2
          v_lshl_add_u32 v3, v3, 3, v10
          v_lshlrev_b32 v3, 6, v3
          v_lshl_add_u32 v3, v2, 3, v3
          v_add_u32 v3, {WST}, v3
          s_lshr_b32 s70, s2, 4
          s_and_b32 s71, s2, 15
          s_lshl_b32 s72, s70, 15
          s_lshl_b32 s73, s71, 6
          s_add_u32 s72, s72, s73
          s_add_u32 s73, s72, 0x4000
          s_lshl_b32 s71, s71, 15
          s_lshl_b32 s70, s70, 10
          s_add_u32 s70, s70, s71
          s_add_u32 s70, s70, {WOF}
          s_add_u32 s71, s70, 0x4000
          s_add_u32 s74, s82, 0x8000
          s_getpc_b64 s[6:7]
          L_pc:
          global_load_dword v23, v22, s[6:7]
          s_waitcnt lgkmcnt(0)''')
    srds_late(a)
    stamp(a, 0)
    epoch_load(a)
    a(f'''s_cmp_eq_u32 s3, 3
          s_cbranch_scc0 L_p1_nowo1
          s_mov_b32 m0, {WST}
          s_nop 0
          buffer_load_dwordx4 v1, s[32:35], s72 offen lds
          s_mov_b32 m0, {WST + 1024}
          s_nop 0
          buffer_load_dwordx4 v1, s[32:35], s73 offen lds
          L_p1_nowo1:
          buffer_store_dwordx4 v[16:19], v{L16}, s[16:19], s82 offen sc1
          buffer_store_dwordx4 v[16:19], v{L16}, s[16:19], s74 offen sc1
          s_waitcnt vmcnt(2)
          v_readfirstlane_b32 s58, v21
          s_cmp_eq_u32 s3, 3
          s_cbranch_scc0 L_p1_nowo2
          ds_read_b64_tr_b16 v[24:25], v3
          ds_read_b64_tr_b16 v[26:27], v3 offset:256
          ds_read_b64_tr_b16 v[28:29], v3 offset:32
          ds_read_b64_tr_b16 v[30:31], v3 offset:288
          s_waitcnt lgkmcnt(0)
          buffer_store_dwordx4 v[24:27], v{L16}, s[16:19], s70 offen sc1
          buffer_store_dwordx4 v[28:31], v{L16}, s[16:19], s71 offen sc1
          L_p1_nowo2:
          s_add_u32 s58, s58, 1''')

    def rset(st):
        return 32 + 32 * st

    def reads(st, slot, ks):
        b = rset(st)
        L = []
        for i in range(4):
            L.append(f'ds_read_b128 {vr(b + 4 * i)}, v{4 + ks} offset:{slot * 32768 + i * 2048}')
            L.append(f'ds_read_b64_tr_b16 {vr(b + 16 + 4 * i, 2)}, v{6 + i} offset:{slot * 32768 + ks * 8192}')
            L.append(f'ds_read_b64_tr_b16 {vr(b + 18 + 4 * i, 2)}, v{6 + i} offset:{slot * 32768 + ks * 8192 + 1024}')
        return L

    def step(st, T, rd, extra=()):
        b = rset(st)
        rd = list(rd)
        extra = list(extra)
        order = [(rt, ct) for ct in range(4) for rt in range(4)]
        for n, (rt, ct) in enumerate(order):
            acc = vr(128 + 16 * rt + 4 * ct)
            x, w = vr(b + 4 * rt), vr(b + 16 + 4 * ct)
            a(f'v_mfma_f32_16x16x32_bf16 {acc}, {w if T else x}, {x if T else w}, {acc}')
            for _ in range(2):
                if rd:
                    a(rd.pop(0))
            if not rd and n >= 7 and extra:
                a(extra.pop(0))
        a('s_waitcnt lgkmcnt(0)')

    def loop(T, tag):
        a('s_barrier')
        for r in reads(0, 0, 0):
            a(r)
        a(f'''s_mov_b32 s70, 4
              s_waitcnt lgkmcnt(0)
              .p2align 3
              L_p1_loop{tag}:''')
        step(0, T, reads(1, 0, 1))
        a('s_barrier')
        step(1, T, reads(0, 1, 0))
        step(0, T, reads(1, 1, 1), [f'v_xor_b32 v{r}, 0x10000, v{r}' for r in range(4, 10)])
        a('s_barrier')
        step(1, T, reads(0, 0, 0), ['s_sub_u32 s70, s70, 1', 's_cmp_lg_u32 s70, 0'])
        a(f's_cbranch_scc1 L_p1_loop{tag}')
        stamp(a, 3)

    a('''s_cmp_ge_u32 s62, 2
         s_cbranch_scc1 L_p1_N''')
    loop(True, 'T')
    a('''s_branch L_p1_epi
         L_p1_N:''')
    loop(False, 'N')
    a('''s_cmp_eq_u32 s62, 3
         s_cbranch_scc1 L_p1_epiA
         L_p1_epi:''')
    a(f'''s_cmp_eq_u32 s62, 2
          s_cselect_b32 s70, {f2u(2.0 ** VLOG)}, 1.0
          s_cselect_b32 s73, 1024, 0
          s_cselect_b32 s7, 12, 0
          s_add_u32 s73, s73, {KV}
          s_cmp_eq_u32 s62, 0
          s_cselect_b32 s70, {f2u(CSCALE)}, s70
          s_cselect_b32 s71, 16, 17
          s_cselect_b32 s72, 10, 11
          s_cselect_b32 s73, {QF}, s73
          s_lshl_b32 s4, s64, 3
          s_lshl_b32 s5, s69, 2
          s_add_u32 s4, s4, s5             ; head0
          s_lshl_b32 s4, s4, s71
          s_lshl_b32 s5, s63, 2
          s_lshl_b32 s6, s68, 1
          s_add_u32 s5, s5, s6             ; tile0
          s_lshl_b32 s5, s5, s72
          s_add_u32 s73, s73, s4
          s_add_u32 s73, s73, s5
          s_lshl_b32 s74, 1, s71
          s_lshl_b32 s75, 1, s72
          v_lshrrev_b32 v1, 1, v0
          v_xor_b32 v1, v1, v0
          v_and_b32 v1, 4, v1
          v_mul_u32_u24 v1, 3, v1
          v_and_b32 v1, s7, v1
          v_xor_b32 v1, v1, v0
          v_lshlrev_b32 v1, 4, v1
          v_add_u32 v2, s75, v1''')
    for ct in range(4):
        for rp in range(2):
            d = 32 + 4 * (2 * ct + rp)
            for u in range(2):
                src = 128 + 16 * (2 * rp + u) + 4 * ct
                for i in range(4):
                    a(f'v_mul_f32 v{src + i}, s70, v{src + i}')
            for u in range(2):
                src = 128 + 16 * (2 * rp + u) + 4 * ct
                for i in range(2):
                    a(f'v_cvt_pk_bf16_f32 v{d + 2 * u + i}, v{src + 2 * i}, v{src + 2 * i + 1}')
            a(f'''s_nop 1
                  v_permlane16_swap_b32 v{d}, v{d + 2}
                  v_permlane16_swap_b32 v{d + 1}, v{d + 3}
                  buffer_store_dwordx4 {vr(d)}, v{1 + rp}, s[16:19], s73 offen sc1''')
        if ct < 3:
            a('s_add_u32 s73, s73, s74')
    a('''s_branch L_p1_cdone
         L_p1_epiA:''')
    a(f'''s_cmp_lt_u32 s64, 2
          s_cselect_b32 s70, 1.0, -1.0
          v_mov_b32 v10, s70
          v_mov_b32 v11, s70
          s_lshl_b32 s4, s64, 1
          s_add_u32 s4, s4, s69
          s_cmp_eq_u32 s4, 4
          s_cselect_b32 s5, 0x10001, 0
          s_mov_b32 vcc_lo, s5
          s_mov_b32 vcc_hi, s5
          v_mov_b32 v3, 1.0
          v_cndmask_b32 v10, v10, v3, vcc
          s_lshl_b32 s5, s63, 1
          s_add_u32 s5, s5, s68
          s_cmp_eq_u32 s5, 0
          s_cbranch_scc0 L_p1_noR
          s_lshl_b32 s6, s4, 8
          s_add_u32 s6, s6, {RR}
          v_lshlrev_b32 v2, 2, v0
          s_mov_b64 exec, 0xffff''')
    for ct in range(4):
        a(f'''v_fma_f32 v{12 + ct}, v{10 if ct == 0 else 11}, v{176 + 4 * ct}, v{160 + 4 * ct}
              v_mov_b32 v{160 + 4 * ct}, 0
              v_mov_b32 v{176 + 4 * ct}, 0
              buffer_store_dword v{12 + ct}, v2, s[16:19], s6 offen offset:{ct * 64} sc1''')
    a(f'''s_mov_b64 exec, -1
          L_p1_noR:
          s_lshr_b32 s6, s64, 1
          s_lshl_b32 s6, s6, 19
          s_and_b32 s4, s4, 3
          s_lshl_b32 s4, s4, 16
          s_lshl_b32 s5, s5, 10
          s_add_u32 s73, s4, s5
          s_add_u32 s73, s73, s6
          s_add_u32 s73, s73, {EO}
          s_add_u32 s74, s73, 0x40000''')
    for cp in range(2):
        for u in range(2):
            ct = 2 * cp + u
            sg = 10 if ct == 0 else 11
            for i in range(4):
                a0, a1, a2, a3 = (128 + 16 * k + 4 * ct + i for k in range(4))
                a(f'''v_fmac_f32 v{a0}, v{sg}, v{a3}
                      v_fmac_f32 v{a1}, v{sg}, v{a2}''')
            for i in range(4):
                a0, a1, a2, a3 = (128 + 16 * k + 4 * ct + i for k in range(4))
                a(f'''v_fma_f32 v{a2}, v{sg}, v{a1}, v{a0}
                      v_fma_f32 v{a3}, -v{sg}, v{a1}, v{a0}''')
        for par in range(2):
            d = 32 + 4 * (2 * cp + par)
            for u in range(2):
                src = 160 + 16 * par + 4 * (2 * cp + u)
                for i in range(2):
                    a(f'v_cvt_pk_bf16_f32 v{d + 2 * u + i}, v{src + 2 * i}, v{src + 2 * i + 1}')
            a(f'''s_nop 1
                  v_permlane16_swap_b32 v{d}, v{d + 2}
                  v_permlane16_swap_b32 v{d + 1}, v{d + 3}
                  buffer_store_dwordx4 {vr(d)}, v{L16}, s[16:19], s{73 + par} offen sc1''')
        if cp == 0:
            a('''s_add_u32 s73, s73, 0x8000
                 s_add_u32 s74, s74, 0x8000''')
    a('L_p1_cdone:')


def attn_setup(a):
    srds_attn(a)
    a(f'''s_lshl_b32 s4, s79, 16
          v_add_u32 v{KA}, s4, v{L16}
          v_and_b32 v1, 16, v{LN}
          v_cmp_ne_u32 vcc, 0, v1
          v_and_b32 v2, 15, v{LN}
          v_lshlrev_b32 v2, 4, v2
          v_add_u32 v2, {ONES}, v2
          v_cndmask_b32 v{VA}, v{KA}, v2, vcc
          v_mov_b32 v2, 0x2000
          v_cndmask_b32 v{VINC}, v2, 0, vcc
          v_mov_b32 v{IDX}, 0xdddddddd
          v_and_b32 v1, 31, v{LN}
          s_and_b32 s4, s76, 15
          s_lshl_b32 s4, s4, 6
          s_lshr_b32 s83, s76, 4           ; p
          s_add_u32 s84, s4, s83
          v_lshl_add_u32 v1, v1, 1, s84
          v_lshlrev_b32 v1, 12, v1
          v_lshrrev_b32 v2, 5, v{LN}
          v_lshl_add_u32 v1, v2, 4, v1
          s_lshl_b32 s4, s3, 7
          v_add_u32 v{WSA}, s4, v1
          s_lshl_b32 s85, s83, 18
          s_lshl_b32 s4, s77, 15
          s_add_u32 s85, s85, s4
          s_lshl_b32 s4, s3, 12
          s_add_u32 s85, s85, s4
          s_add_u32 s85, s85, {EO}         ; E fragments
          s_add_u32 s86, s85, 0x80000      ; O fragments
          s_lshl_b32 s87, s81, 3
          s_add_u32 s87, s87, s3
          s_lshl_b32 s87, s87, 14
          s_add_u32 s87, s87, {WOF}
          s_lshl_b32 s88, s76, 17
          s_add_u32 s88, s88, {KV}
          s_lshl_b32 s4, s79, 16
          s_add_u32 s89, s88, s4
          s_lshl_b32 s90, s77, 2
          s_add_u32 s90, s90, s78          ; 4j + qp
          s_lshl_b32 s91, s78, 11
          s_add_u32 s91, s91, s4''')
    for i in range(16):
        a(f'v_mov_b64 {vr(OA + 2 * i, 2)}, 0')


def kv_dma(c):
    return [f's_add_u32 s4, s90, {4 * c + 1}',
            's_and_b32 s4, s4, 31',
            's_lshl_b32 s4, s4, 11',
            's_add_u32 s4, s4, s89',
            f's_add_u32 m0, s91, {(4 * c + 1) * 2048}',
            's_nop 0',
            f'buffer_load_dwordx4 v{L16}, s[16:19], s4 offen sc1 lds',
            f'buffer_load_dwordx4 v{L16}, s[16:19], s4 offen offset:1024 sc1 lds']


def sync1(a):
    a(f'''s_waitcnt vmcnt(0) lgkmcnt(0)
          s_barrier''')
    stamp(a, 4)
    a(f'''s_cmp_eq_u32 s3, 0
          s_cbranch_scc0 L_s1_noflag
          s_lshl_b32 s4, s64, 6
          s_lshl_b32 s5, s62, 4
          s_add_u32 s4, s4, s5
          s_add_u32 s4, s4, s63
          s_lshl_b32 s4, s4, 4
          s_add_u32 s4, s4, {FLAGS}
          v_mov_b32 v1, 0
          v_mov_b32 v2, s58
          s_mov_b64 exec, 1
          buffer_store_dword v2, v1, s[16:19], s4 offen sc1
          s_mov_b64 exec, -1
          L_s1_noflag:
          s_cmp_eq_u32 s3, 4
          s_cbranch_scc0 L_s1_wait
          s_lshr_b32 s4, s76, 3
          s_lshl_b32 s4, s4, 10
          s_add_u32 s4, s4, {FLAGS}
          s_mov_b32 s5, {SPIN}
          s_mov_b32 exec_hi, 0xffff
          L_s1_poll:
          buffer_load_dword v2, v{L16}, s[16:19], s4 offen sc1
          s_waitcnt vmcnt(0)
          v_cmp_ne_u32 vcc, s58, v2
          s_sub_u32 s5, s5, 1
          s_cbranch_scc1 L_s1_pdone
          s_cbranch_vccnz L_s1_poll
          L_s1_pdone:
          s_mov_b64 exec, -1
          L_s1_wait:
          s_barrier''')
    stamp(a, 5)


def unit(a, tau, b, side, last=False, pre='', prio=True):
    X, Y = (SB, SA) if b else (SA, SB)
    OX, OY = (OB, OA) if b else (OA, OB)
    QY, NY = (QA, NMA) if b else (QB, NMB)
    vo = (tau & 3) * 2048
    side = list(side)
    e = lambda i: a(f'v_exp_f32 v{X + i}, v{X + i}')
    if prio:
        a('s_setprio 0')
    e(0); e(1)
    if b:
        a('s_waitcnt lgkmcnt(0)')
    if b or tau > 0:
        a(f'v_smfmac_f32_32x32x32_bf16 {vr(OY, 16)}, {vr(V1)}, {vr(Y + 8, 8)}, v{IDX}')
    if not b:
        a(f'ds_read_b128 {vr(V1)}, v{VA} offset:{vo + 1280}')
    e(2); e(3); e(4)
    if not (b and last):
        a(f'v_mfma_f32_32x32x16_bf16 {vr(Y, 16)}, {vr(KF)}, {vr(QY)}, {vr(NY, 16)}')
    if not b and not last:
        a(f'ds_read_b128 {vr(KF)}, v{KA} offset:{(tau + 1) * 2048}')
    if prio:
        a('s_setprio 1')
    for i in range(5, 10):
        e(i)
    if not b:
        a(f's_waitcnt lgkmcnt({1 if last else 2})')
    a(f'v_smfmac_f32_32x32x32_bf16 {vr(OX, 16)}, {vr(V0)}, {vr(X, 8)}, v{IDX}')
    if b and not last:
        a(f'ds_read_b128 {vr(V0)}, v{VA} offset:{vo + 2048 + 1024}')
        if (tau & 3) == 3:
            a(f'v_add_u32 v{VA}, v{VINC}, v{VA}')
    for i in range(10, 16):
        e(i)
        if i == 12:
            for s in side:
                a(s)


def attention(a):
    a(f'''s_lshl_b32 s4, s76, 16
          s_lshl_b32 s5, s90, 11
          s_add_u32 s4, s4, s5
          buffer_load_dwordx4 {vr(QA)}, v{L16}, s[16:19], s4 offen sc1
          buffer_load_dwordx4 {vr(QB)}, v{L16}, s[16:19], s4 offen offset:1024 sc1
          s_lshl_b32 s4, s77, 13
          s_and_b32 s5, s78, 1
          s_lshl_b32 s5, s5, 10
          s_add_u32 s4, s4, s5
          s_add_u32 s4, s4, s89
          s_lshl_b32 s6, s79, 16
          s_add_u32 m0, s6, s5
          s_nop 0
          buffer_load_dwordx4 v{L16}, s[16:19], s4 offen sc1 lds''')
    for s in kv_dma(0) + kv_dma(1):
        a(s)
    a(f'''s_waitcnt vmcnt(4)
          s_barrier''')
    stamp(a, 6)
    a(f'''ds_read_b128 {vr(V1)}, v{L16}
          ds_read_b128 {vr(KF)}, v{KA}
          ds_read_b128 {vr(V0)}, v{VA} offset:1024
          s_waitcnt lgkmcnt(2)
          v_mfma_f32_32x32x16_bf16 {vr(SA, 16)}, {vr(V1)}, {vr(QA)}, 0
          v_mfma_f32_32x32x16_bf16 {vr(SB, 16)}, {vr(V1)}, {vr(QB)}, 0
          s_nop 10''')
    for S, NM, t in ((SA, NMA, T0), (SB, NMB, T1)):
        a(f'v_max3_f32 v{t}, v{S}, v{S + 1}, v{S + 2}')
        for i in range(3, 15, 2):
            a(f'v_max3_f32 v{t}, v{t}, v{S + i}, v{S + i + 1}')
        a(f'''v_max_f32 v{t}, v{t}, v{S + 15}
              v_mov_b32 v{T2}, v{t}
              s_nop 1
              v_permlane32_swap_b32 v{t}, v{T2}
              v_max_f32 v{t}, v{t}, v{T2}
              v_sub_f32 v{NM}, {f2u(-OFFS)}, v{t}
              v_sub_f32 v{NM + 1}, {f2u(-OFFS)}, v{t}''')
        for i in range(2, 16, 2):
            a(f'v_mov_b64 {vr(NM + i, 2)}, {vr(NM, 2)}')
        if S == SA:
            a(f'''s_waitcnt lgkmcnt(0)
                  s_nop 0
                  v_mfma_f32_32x32x16_bf16 {vr(SA, 16)}, {vr(KF)}, {vr(QA)}, {vr(NMA, 16)}''')
    a('''s_waitcnt vmcnt(2)
         s_barrier''')
    stamp(a, 7)

    side = {}

    def put(tau, b, ins):
        side.setdefault((tau, b), []).extend(ins)

    put(0, 0, kv_dma(2)); put(1, 0, kv_dma(3))
    put(4, 0, kv_dma(4)); put(5, 0, kv_dma(5)); put(6, 0, kv_dma(6))
    put(7, 0, ['s_cmp_eq_u32 s78, 3', 's_cbranch_scc1 L_at_no7'] + kv_dma(7) + ['L_at_no7:'])
    flag_loads = [f'buffer_load_dword v{A2E + i}, v{L16}, s[16:19], s92 offen offset:{i * 1024} sc1' for i in range(4)]
    put(8, 0, [f's_mov_b32 s92, {FLAGS}'] + flag_loads)
    put(10, 0, ['s_waitcnt vmcnt(0)', 'L_at_fchk:',
                f'v_cmp_ne_u32 vcc, s58, v{A2E}', f'v_cmp_ne_u32 s[4:5], s58, v{A2E + 1}',
                f'v_cmp_ne_u32 s[6:7], s58, v{A2E + 2}', f'v_cmp_ne_u32 s[62:63], s58, v{A2E + 3}',
                's_or_b64 vcc, vcc, s[4:5]', 's_or_b64 s[6:7], s[6:7], s[62:63]', 's_or_b64 vcc, vcc, s[6:7]',
                's_cbranch_vccnz L_at_fretry', 'L_at_fok:'])
    put(10, 1, ['s_or_b32 s4, s2, s3', 's_cmp_eq_u32 s4, 0', 's_cbranch_scc0 L_at_noepoch',
                f's_mov_b32 s4, {EPOCH}', 's_mov_b64 exec, 1',
                f'buffer_store_dword v{A2E}, v{L16}, s[16:19], s4 offen sc1',
                's_mov_b64 exec, -1', 'L_at_noepoch:'])
    loads = []
    for m in range(2):
        for ks in range(4):
            loads.append(f'buffer_load_dwordx4 {vr(A2C + 16 * m + 4 * ks)}, v{WSA}, s[{24 + 4 * m}:{27 + 4 * m}], 0 offen offset:{ks * 32}')
    for m in range(2):
        for ks in range(4):
            loads.append(f'buffer_load_dwordx4 {vr(A2E + 16 * m + 4 * ks)}, v{L16}, s[16:19], s{85 + m} offen offset:{ks * 1024} sc1')
    for ks in range(16):
        pre = 's_add_u32 s87, s87, 0x1000\n' if ks and ks % 4 == 0 else ''
        loads.append(pre + f'buffer_load_dwordx4 {vr(WO + 4 * ks)}, v{L16}, s[16:19], s87 offen offset:{(ks & 3) * 1024} sc1')
    u = 22
    for k in range(0, 8, 2):
        put(u >> 1, u & 1, loads[k:k + 2]); u += 1
    for ld in loads[8:]:
        put(u >> 1, u & 1, [ld]); u += 1
    put(u >> 1, u & 1, [f'v_and_b32 v{T0}, 31, v{LN}', f'v_lshlrev_b32 v{T0}, 2, v{T0}', f'v_mov_b32 v{T1}, 0',
                        's_lshl_b32 s4, s77, 7', 's_lshl_b32 s5, s83, 10', 's_add_u32 s4, s4, s5',
                        f's_add_u32 s4, s4, {RR}', f's_mov_b32 s5, {RR + 1024}',
                        f'buffer_load_dword v{T0}, v{T0}, s[16:19], s4 offen sc1',
                        f'buffer_load_dword v{T1}, v{T1}, s[16:19], s5 offen sc1'])
    assert u < 60
    a('.p2align 3')
    for tau in range(32):
        if tau in (4, 8):
            a('s_waitcnt vmcnt(0)\ns_barrier')
            stamp(a, 8 if tau == 4 else 9)
        for b in range(2):
            unit(a, tau, b, side.get((tau, b), []), last=(tau == 31))
    a(f'''s_setprio 0
          s_lshl_b32 s70, s3, 8
          v_smfmac_f32_32x32x32_bf16 {vr(OB, 16)}, {vr(V1)}, {vr(SB + 8, 8)}, v{IDX}''')
    stamp(a, 10)
    a(f'''s_mul_i32 s4, s3, 2304
          s_add_u32 s4, s4, {MRG}
          s_xor_b32 s5, s3, 4
          s_mul_i32 s5, s5, 2304
          s_add_u32 s5, s5, {MRG}
          v_add_u32 v0, s4, v{L16}
          v_lshl_add_u32 v1, v{LN}, 2, s4
          v_add_u32 v2, s5, v{L16}
          v_lshl_add_u32 v3, v{LN}, 2, s5
          s_cmp_eq_u32 s79, 0
          s_cbranch_scc1 L_mg_k0
          ds_write_b128 v0, {vr(OA)}
          ds_write_b128 v0, {vr(OA + 4)} offset:1024
          ds_write_b32 v1, v{OA + 8} offset:2048
          s_nop 1''')
    for i in range(0, 8, 2):
        a(f'v_mov_b64 {vr(OA + i, 2)}, {vr(OB + i, 2)}')
    a(f'''v_mov_b32 v{OA + 8}, v{OB + 8}
          v_mov_b64 {vr(QA, 2)}, {vr(QB, 2)}
          v_mov_b64 {vr(QA + 2, 2)}, {vr(QB + 2, 2)}
          s_branch L_mg_j
          L_mg_k0:
          s_nop 2
          ds_write_b128 v0, {vr(OB)}
          ds_write_b128 v0, {vr(OB + 4)} offset:1024
          ds_write_b32 v1, v{OB + 8} offset:2048
          L_mg_j:
          s_waitcnt lgkmcnt(0)
          s_barrier
          ds_read_b128 v[4:7], v2
          ds_read_b128 v[8:11], v2 offset:1024
          ds_read_b32 v12, v3 offset:2048
          s_mov_b32 s4, {f2u(2.0 ** 120)}
          s_waitcnt lgkmcnt(0)''')
    for i in range(9):
        a(f'v_add_f32 v{OA + i}, v{OA + i}, v{4 + i}')
    a(f'''v_max3_f32 v1, abs(v{OA}), abs(v{OA + 1}), abs(v{OA + 2})
          v_max3_f32 v1, v1, abs(v{OA + 3}), abs(v{OA + 4})
          v_max3_f32 v1, v1, abs(v{OA + 5}), abs(v{OA + 6})
          v_max3_f32 v1, v1, abs(v{OA + 7}), abs(v{OA + 8})
          v_add_f32 v2, v{OA}, v{OA + 1}
          v_add_f32 v3, v{OA + 2}, v{OA + 3}
          v_add_f32 v4, v{OA + 4}, v{OA + 5}
          v_add_f32 v5, v{OA + 6}, v{OA + 7}
          v_add_f32 v2, v2, v3
          v_add_f32 v4, v4, v5
          v_add_f32 v2, v2, v4
          v_add_f32 v2, v2, v{OA + 8}
          v_cmp_ngt_f32 vcc, s4, v1
          v_cmp_u_f32 s[6:7], v2, v2
          s_or_b64 vcc, vcc, s[6:7]
          s_cbranch_vccnz L_fallback
          L_at_final:
          v_rcp_f32 v1, v{OA + 8}
          s_nop 0''')
    for i in range(8):
        a(f'v_mul_f32 v{OA + i}, v1, v{OA + i}')
    for i in range(4):
        a(f'v_cvt_pk_bf16_f32 v{OB + i}, v{OA + 2 * i}, v{OA + 2 * i + 1}')
    for i in range(4):
        a(f'v_min_u32 v{OB + i}, -2, v{OB + i}')
    a(f'buffer_store_dwordx4 {vr(OB)}, v{L16}, s[16:19], s82 offen sc1')
    stamp(a, 11)
    return flag_loads


def cold_paths(a, flag_loads):
    a(f'''L_at_fretry:
          s_mov_b32 s93, {SPIN}
          L_at_fretry2:''')
    for s in flag_loads:
        a(s)
    a(f'''s_waitcnt vmcnt(0)
          v_cmp_ne_u32 vcc, s58, v{A2E}
          v_cmp_ne_u32 s[4:5], s58, v{A2E + 1}
          v_cmp_ne_u32 s[6:7], s58, v{A2E + 2}
          v_cmp_ne_u32 s[62:63], s58, v{A2E + 3}
          s_or_b64 vcc, vcc, s[4:5]
          s_or_b64 s[6:7], s[6:7], s[62:63]
          s_or_b64 vcc, vcc, s[6:7]
          s_cbranch_vccz L_at_fok
          s_sub_u32 s93, s93, 1
          s_cbranch_scc0 L_at_fretry2
          s_branch L_at_fok''')
    a(f'''L_fallback:
          s_waitcnt vmcnt(0)
          v_mov_b32 v{SB}, 0xff800000
          s_mov_b32 s4, s88
          s_mov_b32 s5, 64
          L_fb_max:
          buffer_load_dwordx4 {vr(KF)}, v{L16}, s[16:19], s4 offen sc1
          s_waitcnt vmcnt(0)
          v_mfma_f32_32x32x16_bf16 {vr(SA, 16)}, {vr(KF)}, {vr(QA)}, 0
          s_nop 11''')
    for i in range(0, 16, 2):
        a(f'v_max3_f32 v{SB}, v{SB}, v{SA + i}, v{SA + i + 1}')
    a(f'''s_add_u32 s4, s4, 2048
          s_sub_u32 s5, s5, 1
          s_cmp_lg_u32 s5, 0
          s_cbranch_scc1 L_fb_max
          v_mov_b32 v{SB + 1}, v{SB}
          s_nop 1
          v_permlane32_swap_b32 v{SB}, v{SB + 1}
          v_max_f32 v{SB}, v{SB}, v{SB + 1}
          v_sub_f32 v{NMA}, 0, v{SB}''')
    for i in range(1, 16):
        a(f'v_mov_b32 v{NMA + i}, v{NMA}')
    for i in range(16):
        a(f'v_mov_b32 v{OA + i}, 0')
    for i in range(8):
        a(f'v_mov_b32 v{V0 + i}, {ONEBF * 0x10001}')
    a(f'''s_mov_b32 s4, s88
          s_mov_b32 s5, 64
          s_mov_b32 s6, 0xffff
          s_mov_b32 s7, 0xffff
          L_fb_pv:
          buffer_load_dwordx4 {vr(KF)}, v{L16}, s[16:19], s4 offen sc1
          s_mov_b64 exec, s[6:7]
          buffer_load_dwordx4 {vr(V0)}, v{L16}, s[16:19], s4 offen offset:1024 sc1
          buffer_load_dwordx4 {vr(V1)}, v{L16}, s[16:19], s4 offen offset:1280 sc1
          s_mov_b64 exec, -1
          s_waitcnt vmcnt(0)
          v_mfma_f32_32x32x16_bf16 {vr(SA, 16)}, {vr(KF)}, {vr(QA)}, {vr(NMA, 16)}
          s_nop 11''')
    for i in range(16):
        a(f'v_exp_f32 v{SA + i}, v{SA + i}')
    a(f'''s_nop 1
          v_smfmac_f32_32x32x32_bf16 {vr(OA, 16)}, {vr(V0)}, {vr(SA, 8)}, v{IDX}
          v_smfmac_f32_32x32x32_bf16 {vr(OA, 16)}, {vr(V1)}, {vr(SA + 8, 8)}, v{IDX}
          s_add_u32 s4, s4, 2048
          s_sub_u32 s5, s5, 1
          s_cmp_lg_u32 s5, 0
          s_cbranch_scc1 L_fb_pv
          s_nop 11
          s_branch L_at_final''')


def tail(a):
    CC, SS, X3, X4 = 0, 16, 32, 48
    OST = 0x18000
    a(f'''s_waitcnt vmcnt(1)
          s_cmp_eq_u32 s76, 0
          s_cbranch_scc0 L_a2_nopatch
          s_mov_b32 s6, 1
          s_mov_b32 s7, 1
          s_mov_b64 exec, s[6:7]''')
    for i in range(16):
        a(f'v_mov_b32 v{A2S + i}, 0xbf803f80')
    a('''s_mov_b64 exec, -1
         s_nop 1''')
    mm = lambda D, x, y: [a(f'v_mfma_f32_32x32x16_bf16 {vr(D, 16)}, {vr(x + 4 * ks)}, {vr(y + 4 * ks)}, {vr(D, 16) if ks else 0}') for ks in range(4)]
    mm(X4, A2S, A2E)
    a('''L_a2_nopatch:
         s_cmp_eq_u32 s77, 0
         s_cbranch_scc0 L_a2_nox3''')
    mm(X3, A2C, A2O)
    a('L_a2_nox3:')
    mm(CC, A2C, A2E)
    mm(SS, A2S, A2O)
    a(f'''s_lshl_b32 s4, s3, 13
          v_add_u32 v64, s4, v{L16}
          s_lshl_b32 s4, s3, 7
          s_add_u32 s4, s4, 0x10000
          v_lshrrev_b32 v67, 5, v{LN}
          v_lshl_add_u32 v65, v67, 4, s4   ; X3p + h*16
          v_lshl_add_u32 v66, v{LN}, 2, s4 ; X4p - 0x400 + lane*4
          s_mov_b32 s6, 1
          s_mov_b32 s7, 1''')
    for q in range(4):
        a(f'ds_write_b128 v64, {vr(CC + 4 * q)} offset:{q * 1024}')
    a('s_mov_b64 exec, s[6:7]')
    for q in range(4):
        a(f'ds_write_b128 v65, {vr(X3 + 4 * q)} offset:{q * 32}')
    a(f'''s_mov_b32 exec_lo, -1
          s_mov_b32 exec_hi, 0
          ds_write_b32 v66, v{X4} offset:1024
          s_mov_b64 exec, -1''')
    for q in range(4):
        a(f'ds_write_b128 v64, {vr(SS + 4 * q)} offset:{4096 + q * 1024}')
    a(f'''s_lshr_b32 s4, s3, 1
          s_and_b32 s5, s3, 1
          s_lshl_b32 s6, s4, 10
          s_lshl_b32 s7, s5, 3
          s_add_u32 s6, s6, s7
          v_add_u32 v68, s6, v{L16}
          s_lshl_b32 s6, s4, 3
          s_lshl_b32 s7, s5, 1
          s_add_u32 s6, s6, s7
          v_lshl_add_u32 v73, v67, 2, s6
          v_lshlrev_b32 v69, 2, v73
          v_add_u32 v69, 0x10000, v69
          v_and_b32 v71, 31, v{LN}
          v_lshlrev_b32 v70, 2, v71
          v_add_u32 v70, 0x10400, v70
          s_lshl_b32 s4, s80, 15
          s_lshl_b32 s5, s3, 12
          s_add_u32 s70, s4, s5
          s_add_u32 s70, s70, {OF}
          s_waitcnt lgkmcnt(0)
          s_barrier''')
    stamp(a, 12)
    for w in range(8):
        a(f'''ds_read_b64 {vr(128 + 2 * w, 2)}, v68 offset:{w * 8192}
              ds_read_b64 {vr(144 + 2 * w, 2)}, v68 offset:{w * 8192 + 4096}''')
    for w in range(8):
        a(f'''ds_read_b64 {vr(160 + 2 * w, 2)}, v69 offset:{w * 128}
              ds_read_b32 v{176 + w}, v70 offset:{w * 128}''')
    a(f'''s_lshl_b32 s4, s77, 5
          v_add_u32 v71, s4, v71           ; e
          v_lshl_add_u32 v73, v73, 1, s84  ; t0 ; t1 = t0 + 2
          v_cmp_eq_u32 s[74:75], 0, v73
          v_cmp_eq_u32 s[64:65], 0, v71
          v_sub_u32 v14, 0x800, v73
          v_mov_b32 v15, 0x400
          v_cndmask_b32 v15, v14, v15, s[74:75]
          v_subrev_u32 v14, 2, v14
          v_sub_u32 v16, 0x200, v71
          v_mov_b32 v17, 0x100
          v_cndmask_b32 v16, v16, v17, s[64:65]   ; col2
          v_lshlrev_b32 v17, 1, v71
          v_lshlrev_b32 v16, 1, v16
          v_lshl_add_u32 v20, v73, 11, v17
          v_lshl_add_u32 v21, v73, 11, v16
          v_lshl_add_u32 v22, v15, 11, v17
          v_lshl_add_u32 v23, v15, 11, v16
          v_lshl_add_u32 v24, v14, 11, v17
          v_lshl_add_u32 v25, v14, 11, v16
          s_cmp_eq_u32 s83, 0
          s_cselect_b64 vcc, -1, 0
          v_cndmask_b32 v8, 0, v{T0}, vcc
          v_cndmask_b32 v9, 0, v{T1}, vcc
          v_cndmask_b32 v10, v{T0}, 0, vcc
          s_mov_b32 s71, 4096
          s_waitcnt lgkmcnt(0)''')
    for base, n, st in ((128, 2, 2), (144, 2, 2), (160, 2, 2), (176, 1, 1)):
        for step in (4, 2, 1):
            for w in range(step):
                for i in range(n):
                    a(f'v_add_f32 v{base + st * w + i}, v{base + st * w + i}, v{base + st * (w + step) + i}')
    gather = [f'buffer_load_dwordx4 {vr(48 + 4 * i)}, v{L16}, s[16:19], s70 offen offset:{i * 1024} sc1' for i in range(4)]
    for g in gather:
        a(g)
    a('''v_add_f32 v128, v128, v8
         v_sub_f32 v129, v129, v8
         v_add_f32 v160, v160, v9
         v_sub_f32 v161, v161, v9
         v_add_f32 v176, v176, v8
         v_add_f32 v177, v144, v9          ; corner
         v_sub_f32 v144, v144, v10
         v_add_f32 v145, v145, v10
         s_or_b64 s[66:67], s[74:75], s[64:65]
         s_and_b64 s[68:69], s[74:75], s[64:65]
         v_cndmask_b32 v144, v144, 0, s[66:67]
         v_cndmask_b32 v145, v145, 0, s[64:65]
         v_sub_f32 v30, v128, v144
         v_add_f32 v31, v128, v144
         v_sub_f32 v32, v129, v145
         v_add_f32 v33, v129, v145
         v_cndmask_b32 v34, v31, v160, s[64:65]
         v_cndmask_b32 v35, v31, v176, s[74:75]
         v_cndmask_b32 v36, v30, v160, s[64:65]
         v_cndmask_b32 v36, v36, v176, s[74:75]
         v_cndmask_b32 v36, v36, v177, s[68:69]
         v_cndmask_b32 v37, v33, v161, s[64:65]
         v_cndmask_b32 v38, v32, v161, s[64:65]
         v_cvt_pk_bf16_f32 v40, v30, v32
         v_cvt_pk_bf16_f32 v41, v34, v37
         v_cvt_pk_bf16_f32 v42, v35, v33
         v_cvt_pk_bf16_f32 v43, v36, v38
         buffer_store_short v40, v20, s[20:23], 0 offen
         buffer_store_short_d16_hi v40, v20, s[20:23], s71 offen
         buffer_store_short v41, v21, s[20:23], 0 offen
         buffer_store_short_d16_hi v41, v21, s[20:23], s71 offen
         buffer_store_short v42, v22, s[20:23], 0 offen
         buffer_store_short_d16_hi v42, v24, s[20:23], 0 offen
         buffer_store_short v43, v23, s[20:23], 0 offen
         buffer_store_short_d16_hi v43, v25, s[20:23], 0 offen''')
    stamp(a, 13)
    a(f'''s_lshl_b32 s5, s3, 12
          s_add_u32 s5, s5, {OST}
          v_add_u32 v64, s5, v{L16}
          v_lshrrev_b32 v65, 4, v{LN}      ; g
          v_and_b32 v66, 15, v{LN}
          v_lshlrev_b32 v67, 4, v66
          v_lshl_add_u32 v67, v65, 9, v67
          v_add_u32 v67, {OST}, v67
          v_and_b32 v68, 31, v{LN}
          s_lshl_b32 s4, s80, 5
          v_add_u32 v68, s4, v68
          v_lshlrev_b32 v68, 11, v68
          v_lshrrev_b32 v65, 5, v{LN}
          v_lshl_add_u32 v68, v65, 4, v68
          s_lshl_b32 s4, s81, 8
          s_lshl_b32 s5, s3, 5
          s_add_u32 s72, s4, s5
          s_add_u32 s72, s72, 1024
          s_mov_b32 s5, {SPIN}
          s_waitcnt vmcnt(8)
          L_op_chk:
          v_max3_u32 v1, v48, v49, v50''')
    for i in range(51, 63, 2):
        a(f'v_max3_u32 v1, v1, v{i}, v{i + 1}')
    a('''v_max_u32 v1, v1, v63
         v_cmp_eq_u32 vcc, -1, v1
         s_cbranch_vccz L_op_ok
         s_sub_u32 s5, s5, 1
         s_cbranch_scc1 L_op_ok''')
    for g in gather:
        a(g)
    a('''s_waitcnt vmcnt(0)
         s_branch L_op_chk
         L_op_ok:''')
    for i in range(4):
        a(f'ds_write_b128 v64, {vr(48 + 4 * i)} offset:{i * 1024}')
    a('''s_waitcnt lgkmcnt(0)
         s_barrier''')
    stamp(a, 14)
    NB = 12
    rd = lambda n: a(f'ds_read_b128 {vr(4 * (n % NB))}, v67 offset:{(n >> 1) * 2048 + (n & 1) * 256}')
    for n in range(NB - 2):
        rd(n)
    for n in range(32):
        nxt = n + NB - 2
        if nxt < 32:
            rd(nxt)
        out = min(31, nxt) - n
        acc = vr(72 + 4 * (n & 1))
        a(f'''s_waitcnt lgkmcnt({out})
              v_mfma_f32_16x16x32_bf16 {acc}, {vr(WO + 4 * (n >> 1))}, {vr(4 * (n % NB))}, {acc if n >= 2 else 0}''')
    a('''s_nop 7
         v_cvt_pk_bf16_f32 v80, v72, v73
         v_cvt_pk_bf16_f32 v81, v74, v75
         v_cvt_pk_bf16_f32 v82, v76, v77
         v_cvt_pk_bf16_f32 v83, v78, v79
         s_nop 1
         v_permlane16_swap_b32 v80, v82
         v_permlane16_swap_b32 v81, v83
         buffer_store_dwordx4 v[80:83], v68, s[20:23], s72 offen''')
    stamp(a, 15)
    if OPT['stamps']:
        a('s_waitcnt vmcnt(0)')
    stamp(a, 16)
    stamp_dump(a)


def build():
    a = A()
    prologue(a)
    a('''s_cmp_ge_u32 s3, 4
         s_cbranch_scc0 L_p1_compute''')
    p1_loader(a)
    a('''s_branch L_p1_join
         L_p1_compute:''')
    p1_compute(a)
    a('L_p1_join:')
    attn_setup(a)
    sync1(a)
    fl = attention(a)
    tail(a)
    a('''L_end:
         s_endpgm''')
    cold_paths(a, fl)
    a('L_code_end:')
    a('s_endpgm')
    return a.text()


def main(path):
    hdr = ''.join(l for l in open(f'cdna_kernels/{NAME}.s.ref') if l.startswith(';') and '@launch' not in l)
    out = hdr + f'; @launch grid=(256,1,1) block=(512,1,1) lds={LDS_BYTES}\n'
    out += f'''.amdgcn_target "amdgcn-amd-amdhsa--gfx950"
.text
.globl {NAME}_kernel
.p2align 8
.type {NAME}_kernel,@function
{NAME}_kernel:
'''
    out += build()
    out += f'''.section .rodata,"a"
.p2align 6
.amdhsa_kernel {NAME}_kernel
  .amdhsa_next_free_vgpr 256
  .amdhsa_next_free_sgpr 96
  .amdhsa_accum_offset 256
  .amdhsa_group_segment_fixed_size 0
  .amdhsa_kernarg_size 88
  .amdhsa_user_sgpr_count 2
  .amdhsa_user_sgpr_kernarg_segment_ptr 1
  .amdhsa_system_sgpr_workgroup_id_x 1
.end_amdhsa_kernel
'''
    open(path, 'w').write(out)


if __name__ == '__main__':
    for x in sys.argv[1:]:
        if x.startswith('--'):
            k, _, v = x[2:].partition('=')
            OPT[k] = (int(v) if v.lstrip('-').isdigit() else v) if v else True
    args = [x for x in sys.argv[1:] if not x.startswith('--')]
    main(args[0] if args else f'cdna_kernels/{NAME}.s')
```

```python
import math, struct, sys

NAME = 'concat_heads__spectral_fnet__softmax_full_mha__prompt'
QF, KV, EO, OF, WOF, RR, FLAGS, EPOCH, STAMP, WS_SIZE = (
    0, 0x200000, 0x600000, 0x700000, 0x900000, 0x980000, 0x990000, 0x9A0000, 0x9C0000, 0xB00000)
PFLAGS = 0xA00000
OFFS = 100.0
VLOG = 40
CSCALE = 0.25 * math.log2(math.e)
ONEBF = (127 + VLOG) << 7
SPIN = 400000
OPT = dict(stamps=False, cyc=False)


def f2u(x):
    return struct.unpack('<I', struct.pack('<f', x))[0]


class A:
    def __init__(self):
        self.l = []

    def __call__(self, s):
        for ln in s.strip('\n').split('\n'):
            ln = ln.strip()
            if not ln:
                continue
            self.l.append(ln if ln.endswith(':') or ln.startswith('.') else '    ' + ln)

    def text(self):
        return '\n'.join(self.l) + '\n'


def vr(b, n=4):
    return f'v[{b}:{b + n - 1}]'


def srd(a, d, lo, size):
    a(f'''s_mov_b32 s{d}, s{lo}
          s_mov_b32 s{d + 1}, s{lo + 1}
          s_mov_b32 s{d + 2}, {size}
          s_mov_b32 s{d + 3}, 0x20000''')


STV = 126


def stamp(a, slot):
    if not OPT['stamps']:
        return
    a(f'''{'s_memtime' if OPT['cyc'] else 's_memrealtime'} s[94:95]
          s_waitcnt lgkmcnt(0)
          v_writelane_b32 v{STV}, s94, {slot}''')


def stamp_dump(a):
    if not OPT['stamps']:
        return
    a(f'''v_mbcnt_lo_u32_b32 v{STV + 1}, -1, 0
          v_mbcnt_hi_u32_b32 v{STV + 1}, -1, v{STV + 1}
          v_lshlrev_b32 v{STV + 1}, 2, v{STV + 1}
          s_lshl_b32 s92, s2, 3
          s_add_u32 s92, s92, s3
          s_lshl_b32 s92, s92, 7
          s_add_u32 s92, s92, {STAMP}
          s_mov_b32 exec_hi, 0
          buffer_store_dword v{STV}, v{STV + 1}, s[16:19], s92 offen sc1
          s_mov_b64 exec, -1''')


SA, SB, NMA, NMB, OA, OB, QA, QB, KF, V0, V1 = 0, 16, 32, 48, 64, 80, 96, 100, 104, 108, 112
IDX, KA, VA, VINC, L16, WSA, LN, T0, T1, T2 = 116, 117, 118, 119, 120, 121, 122, 123, 124, 125
A2C, A2S, A2E, A2O, WO = 128, 144, 160, 176, 192
ONES, MRG, WST, CNT = 0x20000, 0x22800, 0x27000, 0x27800
QST = MRG
LDS_BYTES = 0x28000


def prologue(a):
    a(f'''s_cmp_ge_u32 s2, 256
          s_cbranch_scc1 L_end
          s_load_dwordx16 s[36:51], s[0:1], 0
          s_load_dwordx4 s[52:55], s[0:1], 64
          s_load_dwordx2 s[56:57], s[0:1], 80
          v_lshrrev_b32 v1, 6, v0
          v_and_b32 v0, 63, v0
          v_readfirstlane_b32 s3, v1
          s_and_b32 s60, s2, 7
          s_lshr_b32 s61, s2, 3
          v_mov_b32 v{LN}, v0
          v_lshlrev_b32 v{L16}, 4, v0
          ; phase-1 roles: s62 kind, s63 rb, s64 cb, s65 rot
          s_lshr_b32 s62, s60, 1
          s_and_b32 s63, s60, 1
          s_lshl_b32 s63, s63, 3
          s_and_b32 s4, s61, 7
          s_add_u32 s63, s63, s4
          s_lshr_b32 s64, s61, 3
          s_lshl_b32 s65, s64, {1 if OPT.get('rot', 3) == 7 else 0}
          s_add_u32 s65, s65, s4
          s_and_b32 s65, s65, 7
          s_lshl_b32 s5, s60, 2
          s_lshr_b32 s59, {OPT.get('flip', 0)}, s5
          s_and_b32 s59, s59, 7
          s_lshl_b32 s76, s60, 2
          s_and_b32 s5, s61, 3
          s_add_u32 s76, s76, s5           ; head
          s_lshr_b32 s77, s61, 2           ; j
          s_and_b32 s78, s3, 3             ; q pair
          s_lshr_b32 s79, s3, 2
          s_lshl_b32 s80, s60, 3
          s_add_u32 s80, s80, s4           ; qt
          s_mov_b32 s81, s64               ; nb
          s_cmp_eq_u32 s62, 3
          s_cselect_b32 s66, 1, 3
          s_lshl_b32 s14, s66, 19
          s_lshl_b32 s66, s66, 10          ; W pitch
          s_lshl_b32 s6, s62, 10
          s_lshl_b32 s7, s64, 8
          s_add_u32 s6, s6, s7
          s_and_b32 s7, s7, 256
          s_cmp_eq_u32 s62, 3
          s_cselect_b32 s67, s7, s6
          s_mov_b32 s10, 0x200000
          s_mov_b32 s11, 0x20000
          s_mov_b32 s15, 0x20000''')


def srds(a):
    a('''s_waitcnt lgkmcnt(0)
         s_cmp_lt_u32 s64, 2
         s_cselect_b32 s4, s42, s44
         s_cselect_b32 s5, s43, s45
         s_cmp_eq_u32 s62, 3
         s_cselect_b32 s8, s36, s46
         s_cselect_b32 s9, s37, s47
         s_cselect_b32 s12, s4, s48
         s_cselect_b32 s13, s5, s49''')


def srds_late(a):
    srd(a, 16, 56, WS_SIZE)
    srd(a, 32, 50, 0x80000)


def srds_attn(a):
    srd(a, 20, 52, 0x400000)
    srd(a, 24, 38, 0x800000)
    srd(a, 28, 40, 0x800000)


def o_offset(a):
    a(f'''s_lshl_b32 s4, s77, 3
          s_lshl_b32 s5, s78, 1
          s_add_u32 s4, s4, s5
          s_add_u32 s4, s4, s79
          s_lshl_b32 s4, s4, 15
          s_lshl_b32 s5, s76, 10
          s_add_u32 s4, s4, s5
          s_add_u32 s82, s4, {OF}''')


def epoch_load(a):
    a(f'''s_add_u32 s4, s56, {EPOCH}
          s_addc_u32 s5, s57, 0
          s_load_dword s58, s[4:5], 0''')


def p1_loader(a):
    a('''s_sub_u32 s68, s3, 4             ; lw
         v_lshrrev_b32 v1, 3, v0
         v_and_b32 v2, 7, v0
         v_lshrrev_b32 v3, 4, v0
         v_xor_b32 v2, v2, v3
         v_lshlrev_b32 v2, 4, v2
         v_xor_b32 v9, 64, v2
         s_cmp_eq_u32 s62, 3
         s_cbranch_scc1 L_p1_rowsA
         s_lshl_b32 s4, s63, 7
         s_lshl_b32 s5, s68, 5
         s_add_u32 s4, s4, s5
         v_add_u32 v1, s4, v1
         v_lshl_add_u32 v4, v1, 10, v2
         v_lshl_add_u32 v5, v1, 10, v9
         v_add_u32 v5, 0x2000, v5
         v_add_u32 v6, 0x4000, v4
         v_add_u32 v7, 0x4000, v5
         s_branch L_p1_rowsdone
         L_p1_rowsA:
         s_lshl_b32 s4, s63, 5
         s_lshr_b32 s5, s68, 1
         s_lshl_b32 s5, s5, 4
         s_add_u32 s4, s4, s5
         v_add_u32 v1, s4, v1
         s_and_b32 s5, s68, 1
         s_lshl_b32 s6, s5, 10            ; B
         s_lshl_b32 s7, s5, 9
         v_cmp_eq_u32 vcc, 0, v1
         v_mov_b32 v10, s7
         v_add_u32 v11, s6, v1            ; B + s'
         v_cndmask_b32 v10, 0, v10, vcc
         s_add_u32 s6, s6, 1024
         v_sub_u32 v12, s6, v1            ; B + 1024 - s'
         v_add_u32 v13, 8, v11
         v_subrev_u32 v14, 8, v12
         v_sub_u32 v11, v11, v10
         v_sub_u32 v12, v12, v10
         v_lshl_add_u32 v4, v11, 10, v2
         v_lshl_add_u32 v5, v13, 10, v9
         v_lshl_add_u32 v6, v12, 10, v2
         v_lshl_add_u32 v7, v14, 10, v9
         L_p1_rowsdone:
         v_and_b32 v2, 15, v0
         v_lshlrev_b32 v9, 2, v3
         v_xor_b32 v2, v2, v9
         v_lshlrev_b32 v2, 4, v2
         s_lshl_b32 s4, s68, 4
         v_add_u32 v3, s4, v3
         v_mul_lo_u32 v3, v3, s66
         v_add3_u32 v8, v3, v2, s67
         v_xor_b32 v9, 32, v8
         s_lshl_b32 s72, s66, 2           ; 4*pitch
         s_lshl_b32 s73, s66, 6           ; 64*pitch
         s_lshl_b32 s74, s68, 12''')
    srds(a)

    def issue(stage):
        slot = stage & 3
        rm = OPT.get('rot', 3)
        a(f'''s_add_u32 s4, s65, {stage}
              s_and_b32 s4, s4, {rm}
              s_or_b32 s4, s4, {stage & ~rm}
              s_xor_b32 s4, s4, s59
              s_lshl_b32 s5, s4, 7
              s_mul_i32 s6, s4, s73''')
        for i in range(4):
            a(f'''s_add_u32 m0, s74, {slot * 32768 + i * 1024}
                  s_nop 0
                  buffer_load_dwordx4 v{4 + i}, s[8:11], s5 offen lds
                  s_add_u32 m0, s74, {slot * 32768 + 16384 + i * 1024}
                  s_nop 0
                  buffer_load_dwordx4 v{8 + (i >> 1)}, s[12:15], s6 offen lds''')
            if i < 3:
                a('s_add_u32 s6, s6, s72')

    stamp(a, 0)
    issue(0)
    issue(1)
    stamp(a, 1)
    srds_late(a)
    epoch_load(a)
    o_offset(a)
    a(f'''v_and_b32 v1, 11, v0
          v_cmp_eq_u32 vcc, 0, v1
          v_mov_b32 v2, {ONEBF * 0x10001}
          s_mul_i32 s4, s68, 2560
          v_cndmask_b32 v16, 0, v2, vcc
          v_mov_b32 v17, v16
          v_mov_b32 v18, v16
          v_mov_b32 v19, v16
          s_add_u32 s4, s4, {ONES}
          v_add_u32 v1, s4, v{L16}
          ds_write_b128 v1, v[16:19]
          ds_write_b128 v1, v[16:19] offset:1024
          ds_write_b128 v1, v[16:19] offset:1536
          v_mov_b32 v1, {CNT}
          v_mov_b32 v2, 0
          ds_write_b32 v1, v2''')
    a('''v_and_b32 v1, 3, v0
         v_lshlrev_b32 v1, 1, v1
         v_bfe_u32 v2, v0, 3, 1
         v_or_b32 v1, v1, v2
         v_lshlrev_b32 v1, 5, v1
         s_lshl_b32 s4, s68, 4
         v_add_u32 v2, s4, v0
         v_lshl_add_u32 v13, v2, 8, v1
         v_add_u32 v13, 16384, v13
         v_and_b32 v1, 1, v0
         v_lshlrev_b32 v1, 15, v1
         v_or_b32 v14, 0x3f80, v1
         s_cmp_eq_u32 s62, 3
         s_cselect_b32 s75, s64, 0        ; ==2 -> patch''')
    for c in range(8):
        if c == 3:
            stamp(a, 28)
        a(f's_waitcnt vmcnt({[8, 8, 8, 8, 8, 8, 8, 0][c]})')
        if c in (0, 3):
            stamp(a, 2 if c == 0 else 29)
        a(f'''s_cmp_eq_u32 s75, 2
              s_cbranch_scc0 L_p1_nopatch{c}
              s_mov_b64 exec, 0xffff
              v_add_u32 v1, {(c & 3) * 32768}, v13
              ds_write_b16 v1, v14
              s_mov_b64 exec, -1
              s_waitcnt lgkmcnt(0)
              L_p1_nopatch{c}:
              s_barrier''')
        stamp(a, 17 + c)
        if c <= 5:
            issue(c + 2)
    attn_setup(a)
    a('s_barrier')
    stamp(a, 25)
    a(f'''s_lshr_b32 s4, s76, 3
          s_lshl_b32 s4, s4, 5
          s_add_u32 s4, s4, s61
          s_lshl_b32 s4, s4, 11
          s_add_u32 s4, s4, {PFLAGS}
          s_add_u32 s8, s56, s4
          s_addc_u32 s9, s57, 0
          s_mov_b32 s6, 1024
          s_lshl_b32 s70, s76, 16
          s_lshl_b32 s71, s77, 13
          s_add_u32 s70, s70, s71
          s_mov_b32 s71, {QST}
          s_cmp_eq_u32 s68, 1
          s_cselect_b32 s6, 0, s6
          s_cselect_b32 s70, s88, s70
          s_cselect_b32 s71, 0, s71
          s_cmp_eq_u32 s68, 2
          s_cselect_b32 s6, 1160, s6
          s_cselect_b32 s70, s89, s70
          s_cselect_b32 s71, 0x10000, s71
          s_mov_b32 s5, {SPIN}
          s_mov_b32 s59, s58
          s_mov_b32 m0, s71
          s_add_u32 s72, s70, 0x1000
          s_cmp_eq_u32 s68, 3
          s_barrier
          s_cbranch_scc0 L_s1_poll
          L_s1_poll7:                      ; wave 7: the other K, V blocks''')
    regs = [36, 40, 44, 48, 64, 72, 12]
    for i, r in enumerate(regs):
        a(f's_load_dwordx4 s[{r}:{r + 3}], s[8:9], {128 * (i + 1)} glc')
    a('''s_sub_u32 s5, s5, 1
         s_cbranch_scc1 L_p1_join
         s_mov_b64 s[6:7], 0
         s_waitcnt lgkmcnt(0)''')
    for r in regs:
        for h in (0, 2):
            a(f'''s_xor_b64 s[10:11], s[{r + h}:{r + h + 1}], s[58:59]
                  s_or_b64 s[6:7], s[6:7], s[10:11]''')
    a('''s_cbranch_scc1 L_s1_poll7
         s_branch L_p1_join
         L_s1_poll:
         s_load_dwordx2 s[10:11], s[8:9], s6 glc
         s_sub_u32 s5, s5, 1
         s_cbranch_scc1 L_s1_pdone
         s_waitcnt lgkmcnt(0)
         s_cmp_eq_u64 s[10:11], s[58:59]
         s_cbranch_scc0 L_s1_poll
         L_s1_pdone:''')
    stamp(a, 26)
    for i in range(4):
        a(f'buffer_load_dwordx4 v{L16}, s[16:19], s70 offen offset:{i * 1024} sc1 lds')
    a('''s_add_u32 m0, s71, 0x1000
         s_nop 0''')
    for i in range(4):
        a(f'buffer_load_dwordx4 v{L16}, s[16:19], s72 offen offset:{i * 1024} sc1 lds')
    a('s_waitcnt vmcnt(0)')


def p1_compute(a):
    a('''s_mul_i32 s4, s61, 6 * 128
         v_min_u32 v22, 5, v0
         v_lshl_add_u32 v22, v22, 7, s4
         s_cmp_eq_u32 s3, 0
         s_cbranch_scc0 L_p1_nopf
         v_min_u32 v22, L_code_end - L_pc - 4, v22
         s_getpc_b64 s[6:7]
         L_pc:
         global_load_dword v23, v22, s[6:7]
         L_p1_nopf:''')
    a('''s_and_b32 s68, s3, 1             ; wr
         s_lshr_b32 s69, s3, 1            ; wc
         v_and_b32 v1, 15, v0
         v_lshrrev_b32 v2, 4, v0          ; g
         v_lshrrev_b32 v3, 1, v1
         v_xor_b32 v3, v3, v2
         v_lshlrev_b32 v3, 4, v3
         v_lshl_add_u32 v3, v1, 7, v3
         s_lshl_b32 s4, s68, 13
         v_add_u32 v4, s4, v3
         v_xor_b32 v5, 64, v4
         v_bfe_u32 v10, v0, 2, 2          ; r
         v_lshl_add_u32 v11, v2, 3, v10   ; 8g + r
         v_lshlrev_b32 v11, 8, v11
         v_lshlrev_b32 v10, 1, v10
         v_and_b32 v12, 1, v2
         v_or_b32 v10, v10, v12           ; z
         s_lshl_b32 s4, s69, 2
         v_xor_b32 v10, s4, v10
         v_lshl_add_u32 v11, v10, 5, v11
         v_and_b32 v10, 3, v0
         v_lshl_add_u32 v11, v10, 3, v11
         v_add_u32 v6, 16384, v11
         v_xor_b32 v7, 32, v6
         v_xor_b32 v8, 64, v6
         v_xor_b32 v9, 96, v6''')
    for i in range(32):
        a(f'v_mov_b64 {vr(128 + 2 * i, 2)}, 0')
    o_offset(a)
    a(f'''v_lshrrev_b32 v1, 1, v0
          v_and_b32 v2, 1, v0
          v_lshlrev_b32 v3, 4, v2
          v_lshl_add_u32 v15, v1, 10, v3
          v_lshrrev_b32 v3, 4, v0
          v_bfe_u32 v10, v0, 2, 2
          v_lshl_add_u32 v3, v3, 3, v10
          v_lshlrev_b32 v3, 5, v3
          v_and_b32 v2, 3, v0
          v_lshl_add_u32 v3, v2, 3, v3
          s_lshl_b32 s71, s68, 10
          s_add_u32 s71, s71, {WST}
          v_add_u32 v20, s71, v3
          s_lshr_b32 s70, s2, 4
          s_and_b32 s6, s2, 15
          s_lshl_b32 s6, s6, 1
          s_add_u32 s6, s6, s68
          s_lshl_b32 s4, s70, 15
          s_lshl_b32 s5, s6, 5
          s_add_u32 s72, s4, s5
          s_lshl_b32 s6, s6, 14
          s_lshl_b32 s70, s70, 10
          s_add_u32 s70, s70, s6
          s_add_u32 s70, s70, {WOF}        ; destination
          s_mov_b32 m0, s71
          s_waitcnt lgkmcnt(0)''')
    stamp(a, 0)
    epoch_load(a)
    srds_late(a)
    if OPT.get('warm', 1):
        a(f'''s_cmp_eq_u32 s3, 1
              s_cbranch_scc0 L_p1_nowarm
              s_lshr_b32 s4, s76, 3
              s_lshl_b32 s4, s4, 5
              s_add_u32 s4, s4, s61
              s_lshl_b32 s4, s4, 11
              s_add_u32 s4, s4, {PFLAGS}
              v_lshlrev_b32 v1, 7, v0
              v_mov_b32 v2, 0
              s_mov_b64 exec, 0x3ff
              buffer_atomic_add v2, v1, s[16:19], s4 offen sc1
              s_mov_b64 exec, -1
              L_p1_nowarm:''')
    a(f'''s_cmp_ge_u32 s3, 2
          s_cbranch_scc0 L_p1_nowo
          buffer_load_dwordx4 v15, s[32:35], s72 offen lds
          s_waitcnt vmcnt(0)
          ds_read_b64_tr_b16 v[24:25], v20
          ds_read_b64_tr_b16 v[26:27], v20 offset:128
          s_waitcnt lgkmcnt(0)
          buffer_store_dwordx4 v[24:27], v{L16}, s[16:19], s70 offen sc1
          L_p1_nowo:''')

    def rset(st):
        return 32 + 32 * st

    def reads(st, slot, ks):
        b = rset(st)
        L = []
        for i in range(4):
            L.append(f'ds_read_b128 {vr(b + 4 * i)}, v{4 + ks} offset:{slot * 32768 + i * 2048}')
            L.append(f'ds_read_b64_tr_b16 {vr(b + 16 + 4 * i, 2)}, v{6 + i} offset:{slot * 32768 + ks * 8192}')
            L.append(f'ds_read_b64_tr_b16 {vr(b + 18 + 4 * i, 2)}, v{6 + i} offset:{slot * 32768 + ks * 8192 + 1024}')
        return L

    def step(st, T, rd, extra=()):
        b = rset(st)
        rd = list(rd)
        extra = list(extra)
        order = [(rt, ct) for ct in range(4) for rt in range(4)]
        for n, (rt, ct) in enumerate(order):
            acc = vr(128 + 16 * rt + 4 * ct)
            x, w = vr(b + 4 * rt), vr(b + 16 + 4 * ct)
            a(f'v_mfma_f32_16x16x32_bf16 {acc}, {w if T else x}, {x if T else w}, {acc}')
            for _ in range(2):
                if rd:
                    a(rd.pop(0))
            if not rd and n >= 7 and extra:
                a(extra.pop(0))
        a('s_waitcnt lgkmcnt(0)')

    def loop(T, tag):
        stamp(a, 2)
        a('s_barrier')
        stamp(a, 17)
        for r in reads(0, 0, 0):
            a(r)
        a(f'''s_mov_b32 s70, 4
              s_waitcnt lgkmcnt(0)
              .p2align 3
              L_p1_loop{tag}:''')
        step(0, T, reads(1, 0, 1))
        a('s_barrier')
        step(1, T, reads(0, 1, 0))
        step(0, T, reads(1, 1, 1), [f'v_xor_b32 v{r}, 0x10000, v{r}' for r in range(4, 10)])
        a('s_barrier')
        step(1, T, reads(0, 0, 0), ['s_sub_u32 s70, s70, 1', 's_cmp_lg_u32 s70, 0'])
        a(f's_cbranch_scc1 L_p1_loop{tag}')
        stamp(a, 3)

    a('''s_cmp_ge_u32 s62, 2
         s_cbranch_scc1 L_p1_N''')
    loop(True, 'T')
    a('''s_branch L_p1_epi
         L_p1_N:''')
    loop(False, 'N')
    a('''s_cmp_eq_u32 s62, 3
         s_cbranch_scc1 L_p1_epiA
         L_p1_epi:''')
    if OPT.get('xnb'):
        a(f'''s_and_b32 s4, s63, 7
              s_cmp_ge_u32 s4, {OPT['xnb']}
              s_cselect_b32 s4, s62, 0
              s_cmp_lg_u32 s4, 0
              s_cbranch_scc1 L_p1_cdone''')
    a(f'''s_cmp_eq_u32 s62, 2
          s_cselect_b32 s70, {f2u(2.0 ** VLOG)}, 1.0
          s_cselect_b32 s73, 1024, 0
          s_cselect_b32 s7, 12, 0
          s_add_u32 s73, s73, {KV}
          s_cmp_eq_u32 s62, 0
          s_cselect_b32 s70, {f2u(CSCALE)}, s70
          s_cselect_b32 s71, 16, 17
          s_cselect_b32 s72, 10, 11
          s_cselect_b32 s73, {QF}, s73
          s_lshl_b32 s4, s64, 3
          s_lshl_b32 s5, s69, 2
          s_add_u32 s4, s4, s5             ; head0
          s_lshl_b32 s4, s4, s71
          s_lshl_b32 s5, s63, 2
          s_lshl_b32 s6, s68, 1
          s_add_u32 s5, s5, s6             ; tile0
          s_lshl_b32 s5, s5, s72
          s_add_u32 s73, s73, s4
          s_add_u32 s73, s73, s5
          s_lshl_b32 s74, 1, s71
          s_lshl_b32 s75, 1, s72
          v_lshrrev_b32 v1, 1, v0
          v_xor_b32 v1, v1, v0
          v_and_b32 v1, 4, v1
          v_mul_u32_u24 v1, 3, v1
          v_and_b32 v1, s7, v1
          v_xor_b32 v1, v1, v0
          v_lshlrev_b32 v1, 4, v1
          v_add_u32 v2, s75, v1''')
    for ct in range(4):
        for rp in range(2):
            d = 32 + 4 * (2 * ct + rp)
            for u in range(2):
                src = 128 + 16 * (2 * rp + u) + 4 * ct
                for i in range(4):
                    a(f'v_mul_f32 v{src + i}, s70, v{src + i}')
            for u in range(2):
                src = 128 + 16 * (2 * rp + u) + 4 * ct
                for i in range(2):
                    a(f'v_cvt_pk_bf16_f32 v{d + 2 * u + i}, v{src + 2 * i}, v{src + 2 * i + 1}')
            a(f'''s_nop 1
                  v_permlane16_swap_b32 v{d}, v{d + 2}
                  v_permlane16_swap_b32 v{d + 1}, v{d + 3}
                  buffer_store_dwordx4 {vr(d)}, v{1 + rp}, s[16:19], s73 offen sc1''')
        if ct < 3:
            a('s_add_u32 s73, s73, s74')
    a('''s_branch L_p1_cdone
         L_p1_epiA:''')
    if OPT.get('xnb'):
        a('s_branch L_p1_cdone')
    a(f'''s_cmp_lt_u32 s64, 2
          s_cselect_b32 s70, 1.0, -1.0
          v_mov_b32 v10, s70
          v_mov_b32 v11, s70
          s_lshl_b32 s4, s64, 1
          s_add_u32 s4, s4, s69
          s_cmp_eq_u32 s4, 4
          s_cselect_b32 s5, 0x10001, 0
          s_mov_b32 vcc_lo, s5
          s_mov_b32 vcc_hi, s5
          v_mov_b32 v3, 1.0
          v_cndmask_b32 v10, v10, v3, vcc
          s_lshl_b32 s5, s63, 1
          s_add_u32 s5, s5, s68
          s_cmp_eq_u32 s5, 0
          s_cbranch_scc0 L_p1_noR
          s_lshl_b32 s6, s4, 8
          s_add_u32 s6, s6, {RR}
          v_lshlrev_b32 v2, 2, v0
          s_mov_b64 exec, 0xffff''')
    for ct in range(4):
        a(f'''v_fma_f32 v{12 + ct}, v{10 if ct == 0 else 11}, v{176 + 4 * ct}, v{160 + 4 * ct}
              v_mov_b32 v{160 + 4 * ct}, 0
              v_mov_b32 v{176 + 4 * ct}, 0
              buffer_store_dword v{12 + ct}, v2, s[16:19], s6 offen offset:{ct * 64} sc1''')
    a(f'''s_mov_b64 exec, -1
          L_p1_noR:
          s_lshr_b32 s6, s64, 1
          s_lshl_b32 s6, s6, 19
          s_and_b32 s4, s4, 3
          s_lshl_b32 s4, s4, 16
          s_lshl_b32 s5, s5, 10
          s_add_u32 s73, s4, s5
          s_add_u32 s73, s73, s6
          s_add_u32 s73, s73, {EO}
          s_add_u32 s74, s73, 0x40000''')
    for cp in range(2):
        for u in range(2):
            ct = 2 * cp + u
            sg = 10 if ct == 0 else 11
            for i in range(4):
                a0, a1, a2, a3 = (128 + 16 * k + 4 * ct + i for k in range(4))
                a(f'''v_fmac_f32 v{a0}, v{sg}, v{a3}
                      v_fmac_f32 v{a1}, v{sg}, v{a2}''')
            for i in range(4):
                a0, a1, a2, a3 = (128 + 16 * k + 4 * ct + i for k in range(4))
                a(f'''v_fma_f32 v{a2}, v{sg}, v{a1}, v{a0}
                      v_fma_f32 v{a3}, -v{sg}, v{a1}, v{a0}''')
        for par in range(2):
            d = 32 + 4 * (2 * cp + par)
            for u in range(2):
                src = 160 + 16 * par + 4 * (2 * cp + u)
                for i in range(2):
                    a(f'v_cvt_pk_bf16_f32 v{d + 2 * u + i}, v{src + 2 * i}, v{src + 2 * i + 1}')
            a(f'''s_nop 1
                  v_permlane16_swap_b32 v{d}, v{d + 2}
                  v_permlane16_swap_b32 v{d + 1}, v{d + 3}
                  buffer_store_dwordx4 {vr(d)}, v{L16}, s[16:19], s{73 + par} offen sc1''')
        if cp == 0:
            a('''s_add_u32 s73, s73, 0x8000
                 s_add_u32 s74, s74, 0x8000''')
    a('L_p1_cdone:')


def attn_setup(a):
    srds_attn(a)
    a('''s_waitcnt lgkmcnt(0)
         s_add_u32 s58, s58, 1            ; nonce''')
    a(f'''s_lshl_b32 s4, s79, 16
          v_add_u32 v{KA}, s4, v{L16}
          v_and_b32 v1, 16, v{LN}
          v_cmp_ne_u32 vcc, 0, v1
          v_and_b32 v2, 15, v{LN}
          v_lshlrev_b32 v2, 4, v2
          v_add_u32 v2, {ONES}, v2
          v_cndmask_b32 v{VA}, v{KA}, v2, vcc
          v_mov_b32 v2, 0x2000
          v_cndmask_b32 v{VINC}, v2, 0, vcc
          v_mov_b32 v{IDX}, 0xdddddddd
          v_and_b32 v1, 31, v{LN}
          s_and_b32 s4, s76, 15
          s_lshl_b32 s4, s4, 6
          s_lshr_b32 s83, s76, 4           ; p
          s_add_u32 s84, s4, s83
          v_lshl_add_u32 v1, v1, 1, s84
          v_lshlrev_b32 v1, 12, v1
          v_lshrrev_b32 v2, 5, v{LN}
          v_lshl_add_u32 v1, v2, 4, v1
          s_lshl_b32 s4, s3, 7
          v_add_u32 v{WSA}, s4, v1
          s_lshl_b32 s85, s83, 18
          s_lshl_b32 s4, s77, 15
          s_add_u32 s85, s85, s4
          s_lshl_b32 s4, s3, 12
          s_add_u32 s85, s85, s4
          s_add_u32 s85, s85, {EO}         ; E fragments
          s_add_u32 s86, s85, 0x80000      ; O fragments
          s_lshl_b32 s87, s81, 3
          s_add_u32 s87, s87, s3
          s_lshl_b32 s87, s87, 14
          s_add_u32 s87, s87, {WOF}
          s_lshl_b32 s88, s76, 17
          s_add_u32 s88, s88, {KV}
          s_lshl_b32 s4, s79, 16
          s_add_u32 s89, s88, s4
          s_lshl_b32 s91, s78, 11
          s_add_u32 s90, s89, s91
          s_add_u32 s5, s91, {QST}
          v_add_u32 v{T0}, s5, v{L16}
          s_add_u32 s91, s91, s4
          s_lshl_b32 s4, s64, 6
          s_lshl_b32 s5, s62, 4
          s_add_u32 s4, s4, s5
          s_add_u32 s4, s4, s63
          s_lshl_b32 s4, s4, 4
          s_add_u32 s93, s4, {FLAGS}''')
    for i in range(16):
        a(f'v_mov_b64 {vr(OA + 2 * i, 2)}, 0')


def kv_dma(c):
    return [f's_add_u32 s4, s90, {c * 8192}',
            f's_add_u32 m0, s91, {c * 8192}',
            's_nop 0',
            f'buffer_load_dwordx4 v{L16}, s[16:19], s4 offen sc1 lds',
            f'buffer_load_dwordx4 v{L16}, s[16:19], s4 offen offset:1024 sc1 lds']


def publish1(a):
    a(f'''s_cmp_eq_u32 s62, 3
          s_cbranch_scc1 L_p1_join
          s_and_b32 s4, s63, 7
          s_cmp_eq_u32 s63, 8
          s_cselect_b32 s4, 9, s4
          s_lshl_b32 s4, s4, 7
          s_and_b32 s5, s63, 8
          s_lshl_b32 s6, s62, 2
          s_add_u32 s5, s5, s6
          s_add_u32 s4, s4, s5
          s_sub_u32 s4, s4, 4
          s_and_b32 s5, s63, 1
          s_lshl_b32 s5, s5, 2
          s_lshr_b32 s6, s63, 1
          s_lshl_b32 s6, s6, 13
          s_add_u32 s5, s5, s6
          s_add_u32 s5, s5, 1024
          s_cmp_eq_u32 s62, 0
          s_cselect_b32 s4, s5, s4
          s_cselect_b32 s6, 15, -1
          s_lshl_b32 s5, s64, 16
          s_add_u32 s4, s4, s5
          s_add_u32 s4, s4, {PFLAGS}
          v_lshlrev_b32 v1, 11, v{LN}
          v_mov_b32 v2, s58
          v_mov_b32 v3, {CNT}
          v_mov_b32 v4, 1
          s_mov_b64 exec, 1
          s_waitcnt vmcnt(0)
          ds_add_rtn_u32 v4, v3, v4
          s_waitcnt lgkmcnt(0)
          v_readfirstlane_b32 s5, v4
          s_mov_b32 exec_lo, s6
          s_cmp_eq_u32 s5, 3
          s_cbranch_scc0 L_s1_noflag
          buffer_store_dword v2, v1, s[16:19], s4 offen sc1
          L_s1_noflag:
          s_mov_b64 exec, -1''')


def unit(a, tau, b, side, last=False, pre='', prio=True):
    X, Y = (SB, SA) if b else (SA, SB)
    OX, OY = (OB, OA) if b else (OA, OB)
    QY, NY = (QA, NMA) if b else (QB, NMB)
    vo = (tau & 3) * 2048
    side = list(side)
    e = lambda i: a(f'v_exp_f32 v{X + i}, v{X + i}')
    if prio:
        a('s_setprio 0')
    e(0); e(1)
    if b:
        a('s_waitcnt lgkmcnt(0)')
    if b or tau > 0:
        a(f'v_smfmac_f32_32x32x32_bf16 {vr(OY, 16)}, {vr(V1)}, {vr(Y + 8, 8)}, v{IDX}')
    if not b:
        a(f'ds_read_b128 {vr(V1)}, v{VA} offset:{vo + 1280}')
    e(2); e(3); e(4)
    if not (b and last):
        a(f'v_mfma_f32_32x32x16_bf16 {vr(Y, 16)}, {vr(KF)}, {vr(QY)}, {vr(NY, 16)}')
    if not b and not last:
        a(f'ds_read_b128 {vr(KF)}, v{KA} offset:{(tau + 1) * 2048}')
    if prio:
        a('s_setprio 1')
    for i in range(5, 10):
        e(i)
    if not b:
        a(f's_waitcnt lgkmcnt({1 if last else 2})')
    a(f'v_smfmac_f32_32x32x32_bf16 {vr(OX, 16)}, {vr(V0)}, {vr(X, 8)}, v{IDX}')
    if b and not last:
        a(f'ds_read_b128 {vr(V0)}, v{VA} offset:{vo + 2048 + 1024}')
        if (tau & 3) == 3:
            a(f'v_add_u32 v{VA}, v{VINC}, v{VA}')
    for i in range(10, 16):
        e(i)
        if i == 12:
            for s in side:
                a(s)


def attention(a):
    stamp(a, 4)
    a('s_barrier')
    stamp(a, 6)
    a(f'''ds_read_b128 {vr(QA)}, v{T0}
          ds_read_b128 {vr(V1)}, v{L16}
          ds_read_b128 {vr(QB)}, v{T0} offset:1024
          ds_read_b128 {vr(KF)}, v{KA}
          ds_read_b128 {vr(V0)}, v{VA} offset:1024''')
    for s_ in kv_dma(1):
        a(s_)
    a(f'''s_waitcnt lgkmcnt(3)
          v_mfma_f32_32x32x16_bf16 {vr(SA, 16)}, {vr(V1)}, {vr(QA)}, 0
          s_waitcnt lgkmcnt(2)
          v_mfma_f32_32x32x16_bf16 {vr(SB, 16)}, {vr(V1)}, {vr(QB)}, 0
          v_mov_b64 {vr(A2C, 2)}, -1
          v_mov_b64 {vr(A2C + 2, 2)}, -1''')
    for s_ in kv_dma(2):
        a(s_)
    a(f'''buffer_store_dwordx4 {vr(A2C)}, v{L16}, s[16:19], s82 offen sc1
          s_nop 1''')
    for S, NM, t in ((SA, NMA, T0), (SB, NMB, T1)):
        a(f'v_max3_f32 v{t}, v{S}, v{S + 1}, v{S + 2}')
        for i in range(3, 15, 2):
            a(f'v_max3_f32 v{t}, v{t}, v{S + i}, v{S + i + 1}')
        a(f'''v_max_f32 v{t}, v{t}, v{S + 15}
              v_mov_b32 v{T2}, v{t}
              s_nop 1
              v_permlane32_swap_b32 v{t}, v{T2}
              v_max_f32 v{t}, v{t}, v{T2}
              v_sub_f32 v{NM}, {f2u(-OFFS)}, v{t}
              v_sub_f32 v{NM + 1}, {f2u(-OFFS)}, v{t}''')
        for i in range(2, 16, 2):
            a(f'v_mov_b64 {vr(NM + i, 2)}, {vr(NM, 2)}')
        if S == SA:
            a(f'''s_waitcnt lgkmcnt(0)
                  s_nop 0
                  v_mfma_f32_32x32x16_bf16 {vr(SA, 16)}, {vr(KF)}, {vr(QA)}, {vr(NMA, 16)}''')
    stamp(a, 7)

    side = {}

    def put(tau, b, ins):
        side.setdefault((tau, b), []).extend(ins)

    put(3, 0, ['s_cmp_eq_u32 s3, 0', 's_cbranch_scc0 L_at_noflag2', f'v_mov_b32 v{T0}, s58', 's_mov_b64 exec, 1',
               f'buffer_store_dword v{T0}, v{L16}, s[16:19], s93 offen sc1', 's_mov_b64 exec, -1', 'L_at_noflag2:'])
    for c in range(3, 8):
        put(c, 1, kv_dma(c))
    flag_loads = [f'buffer_load_dword v{A2E + i}, v{L16}, s[16:19], s92 offen offset:{i * 1024} sc1' for i in range(4)]
    put(8, 0, [f's_mov_b32 s92, {FLAGS}'] + flag_loads)
    put(10, 0, ['s_waitcnt vmcnt(0)', 'L_at_fchk:',
                f'v_cmp_ne_u32 vcc, s58, v{A2E}', f'v_cmp_ne_u32 s[4:5], s58, v{A2E + 1}',
                f'v_cmp_ne_u32 s[6:7], s58, v{A2E + 2}', f'v_cmp_ne_u32 s[62:63], s58, v{A2E + 3}',
                's_or_b64 vcc, vcc, s[4:5]', 's_or_b64 s[6:7], s[6:7], s[62:63]', 's_or_b64 vcc, vcc, s[6:7]',
                's_cbranch_vccnz L_at_fretry', 'L_at_fok:'])
    put(10, 1, ['s_or_b32 s4, s2, s3', 's_cmp_eq_u32 s4, 0', 's_cbranch_scc0 L_at_noepoch',
                f's_mov_b32 s4, {EPOCH}', 's_mov_b64 exec, 1',
                f'buffer_store_dword v{A2E}, v{L16}, s[16:19], s4 offen sc1',
                's_mov_b64 exec, -1', 'L_at_noepoch:'])
    loads = []
    for m in range(2):
        for ks in range(4):
            loads.append(f'buffer_load_dwordx4 {vr(A2C + 16 * m + 4 * ks)}, v{WSA}, s[{24 + 4 * m}:{27 + 4 * m}], 0 offen offset:{ks * 32}')
    for m in range(2):
        for ks in range(4):
            loads.append(f'buffer_load_dwordx4 {vr(A2E + 16 * m + 4 * ks)}, v{L16}, s[16:19], s{85 + m} offen offset:{ks * 1024} sc1')
    for ks in range(16):
        pre = 's_add_u32 s87, s87, 0x1000\n' if ks and ks % 4 == 0 else ''
        loads.append(pre + f'buffer_load_dwordx4 {vr(WO + 4 * ks)}, v{L16}, s[16:19], s87 offen offset:{(ks & 3) * 1024} sc1')
    u = 22
    for k in range(0, 8, 2):
        put(u >> 1, u & 1, loads[k:k + 2]); u += 1
    for ld in loads[8:]:
        put(u >> 1, u & 1, [ld]); u += 1
    put(u >> 1, u & 1, [f'v_and_b32 v{T0}, 31, v{LN}', f'v_lshlrev_b32 v{T0}, 2, v{T0}', f'v_mov_b32 v{T1}, 0',
                        's_lshl_b32 s4, s77, 7', 's_lshl_b32 s5, s83, 10', 's_add_u32 s4, s4, s5',
                        f's_add_u32 s4, s4, {RR}', f's_mov_b32 s5, {RR + 1024}',
                        f'buffer_load_dword v{T0}, v{T0}, s[16:19], s4 offen sc1',
                        f'buffer_load_dword v{T1}, v{T1}, s[16:19], s5 offen sc1'])
    assert u < 60
    a('.p2align 3')
    for tau in range(32):
        if tau == 3:
            a('s_waitcnt vmcnt(0)\ns_barrier')
            stamp(a, 8)
        if tau == 11:
            a('s_barrier')
            stamp(a, 9)
        for b in range(2):
            unit(a, tau, b, side.get((tau, b), []), last=(tau == 31))
    a(f'''s_setprio 0
          s_lshl_b32 s70, s3, 8
          v_smfmac_f32_32x32x32_bf16 {vr(OB, 16)}, {vr(V1)}, {vr(SB + 8, 8)}, v{IDX}''')
    stamp(a, 10)
    a(f'''s_mul_i32 s4, s3, 2304
          s_add_u32 s4, s4, {MRG}
          s_xor_b32 s5, s3, 4
          s_mul_i32 s5, s5, 2304
          s_add_u32 s5, s5, {MRG}
          v_add_u32 v0, s4, v{L16}
          v_lshl_add_u32 v1, v{LN}, 2, s4
          v_add_u32 v2, s5, v{L16}
          v_lshl_add_u32 v3, v{LN}, 2, s5
          s_cmp_eq_u32 s79, 0
          s_cbranch_scc1 L_mg_k0
          ds_write_b128 v0, {vr(OA)}
          ds_write_b128 v0, {vr(OA + 4)} offset:1024
          ds_write_b32 v1, v{OA + 8} offset:2048
          s_nop 1''')
    for i in range(0, 8, 2):
        a(f'v_mov_b64 {vr(OA + i, 2)}, {vr(OB + i, 2)}')
    a(f'''v_mov_b32 v{OA + 8}, v{OB + 8}
          v_mov_b64 {vr(QA, 2)}, {vr(QB, 2)}
          v_mov_b64 {vr(QA + 2, 2)}, {vr(QB + 2, 2)}
          s_branch L_mg_j
          L_mg_k0:
          s_nop 2
          ds_write_b128 v0, {vr(OB)}
          ds_write_b128 v0, {vr(OB + 4)} offset:1024
          ds_write_b32 v1, v{OB + 8} offset:2048
          L_mg_j:
          s_waitcnt lgkmcnt(0)
          s_barrier
          ds_read_b128 v[4:7], v2
          ds_read_b128 v[8:11], v2 offset:1024
          ds_read_b32 v12, v3 offset:2048
          s_mov_b32 s4, {f2u(2.0 ** 120)}
          s_waitcnt lgkmcnt(0)''')
    for i in range(9):
        a(f'v_add_f32 v{OA + i}, v{OA + i}, v{4 + i}')
    a(f'''v_max3_f32 v1, abs(v{OA}), abs(v{OA + 1}), abs(v{OA + 2})
          v_max3_f32 v1, v1, abs(v{OA + 3}), abs(v{OA + 4})
          v_max3_f32 v1, v1, abs(v{OA + 5}), abs(v{OA + 6})
          v_max3_f32 v1, v1, abs(v{OA + 7}), abs(v{OA + 8})
          v_add_f32 v2, v{OA}, v{OA + 1}
          v_add_f32 v3, v{OA + 2}, v{OA + 3}
          v_add_f32 v4, v{OA + 4}, v{OA + 5}
          v_add_f32 v5, v{OA + 6}, v{OA + 7}
          v_add_f32 v2, v2, v3
          v_add_f32 v4, v4, v5
          v_add_f32 v2, v2, v4
          v_add_f32 v2, v2, v{OA + 8}
          v_cmp_ngt_f32 vcc, s4, v1
          v_cmp_u_f32 s[6:7], v2, v2
          s_or_b64 vcc, vcc, s[6:7]
          s_cbranch_vccnz L_fallback
          L_at_final:
          v_rcp_f32 v1, v{OA + 8}
          s_nop 0''')
    for i in range(8):
        a(f'v_mul_f32 v{OA + i}, v1, v{OA + i}')
    for i in range(4):
        a(f'v_cvt_pk_bf16_f32 v{OB + i}, v{OA + 2 * i}, v{OA + 2 * i + 1}')
    for i in range(4):
        a(f'v_min_u32 v{OB + i}, -2, v{OB + i}')
    a(f'buffer_store_dwordx4 {vr(OB)}, v{L16}, s[16:19], s82 offen sc1')
    stamp(a, 11)
    return flag_loads


def cold_paths(a, flag_loads):
    a(f'''L_at_fretry:
          s_mov_b32 s93, {SPIN}
          L_at_fretry2:''')
    for s in flag_loads:
        a(s)
    a(f'''s_waitcnt vmcnt(0)
          v_cmp_ne_u32 vcc, s58, v{A2E}
          v_cmp_ne_u32 s[4:5], s58, v{A2E + 1}
          v_cmp_ne_u32 s[6:7], s58, v{A2E + 2}
          v_cmp_ne_u32 s[62:63], s58, v{A2E + 3}
          s_or_b64 vcc, vcc, s[4:5]
          s_or_b64 s[6:7], s[6:7], s[62:63]
          s_or_b64 vcc, vcc, s[6:7]
          s_cbranch_vccz L_at_fok
          s_sub_u32 s93, s93, 1
          s_cbranch_scc0 L_at_fretry2
          s_branch L_at_fok''')
    a(f'''L_fallback:
          s_waitcnt vmcnt(0)
          v_mov_b32 v{SB}, 0xff800000
          s_mov_b32 s4, s88
          s_mov_b32 s5, 64
          L_fb_max:
          buffer_load_dwordx4 {vr(KF)}, v{L16}, s[16:19], s4 offen sc1
          s_waitcnt vmcnt(0)
          v_mfma_f32_32x32x16_bf16 {vr(SA, 16)}, {vr(KF)}, {vr(QA)}, 0
          s_nop 11''')
    for i in range(0, 16, 2):
        a(f'v_max3_f32 v{SB}, v{SB}, v{SA + i}, v{SA + i + 1}')
    a(f'''s_add_u32 s4, s4, 2048
          s_sub_u32 s5, s5, 1
          s_cmp_lg_u32 s5, 0
          s_cbranch_scc1 L_fb_max
          v_mov_b32 v{SB + 1}, v{SB}
          s_nop 1
          v_permlane32_swap_b32 v{SB}, v{SB + 1}
          v_max_f32 v{SB}, v{SB}, v{SB + 1}
          v_sub_f32 v{NMA}, 0, v{SB}''')
    for i in range(1, 16):
        a(f'v_mov_b32 v{NMA + i}, v{NMA}')
    for i in range(16):
        a(f'v_mov_b32 v{OA + i}, 0')
    for i in range(8):
        a(f'v_mov_b32 v{V0 + i}, {ONEBF * 0x10001}')
    a(f'''s_mov_b32 s4, s88
          s_mov_b32 s5, 64
          s_mov_b32 s6, 0xffff
          s_mov_b32 s7, 0xffff
          L_fb_pv:
          buffer_load_dwordx4 {vr(KF)}, v{L16}, s[16:19], s4 offen sc1
          s_mov_b64 exec, s[6:7]
          buffer_load_dwordx4 {vr(V0)}, v{L16}, s[16:19], s4 offen offset:1024 sc1
          buffer_load_dwordx4 {vr(V1)}, v{L16}, s[16:19], s4 offen offset:1280 sc1
          s_mov_b64 exec, -1
          s_waitcnt vmcnt(0)
          v_mfma_f32_32x32x16_bf16 {vr(SA, 16)}, {vr(KF)}, {vr(QA)}, {vr(NMA, 16)}
          s_nop 11''')
    for i in range(16):
        a(f'v_exp_f32 v{SA + i}, v{SA + i}')
    a(f'''s_nop 1
          v_smfmac_f32_32x32x32_bf16 {vr(OA, 16)}, {vr(V0)}, {vr(SA, 8)}, v{IDX}
          v_smfmac_f32_32x32x32_bf16 {vr(OA, 16)}, {vr(V1)}, {vr(SA + 8, 8)}, v{IDX}
          s_add_u32 s4, s4, 2048
          s_sub_u32 s5, s5, 1
          s_cmp_lg_u32 s5, 0
          s_cbranch_scc1 L_fb_pv
          s_nop 11
          s_branch L_at_final''')


def tail(a):
    CC, SS, X3, X4 = 0, 16, 32, 48
    OST = 0x18000
    a(f'''s_waitcnt vmcnt(1)
          s_cmp_eq_u32 s76, 0
          s_cbranch_scc0 L_a2_nopatch
          s_mov_b32 s6, 1
          s_mov_b32 s7, 1
          s_mov_b64 exec, s[6:7]''')
    for i in range(16):
        a(f'v_mov_b32 v{A2S + i}, 0xbf803f80')
    a('''s_mov_b64 exec, -1
         s_nop 1''')
    mm = lambda D, x, y: [a(f'v_mfma_f32_32x32x16_bf16 {vr(D, 16)}, {vr(x + 4 * ks)}, {vr(y + 4 * ks)}, {vr(D, 16) if ks else 0}') for ks in range(4)]
    mm(X4, A2S, A2E)
    a('''L_a2_nopatch:
         s_cmp_eq_u32 s77, 0
         s_cbranch_scc0 L_a2_nox3''')
    mm(X3, A2C, A2O)
    a('L_a2_nox3:')
    mm(CC, A2C, A2E)
    mm(SS, A2S, A2O)
    a(f'''s_lshl_b32 s4, s3, 13
          v_add_u32 v64, s4, v{L16}
          s_lshl_b32 s4, s3, 7
          s_add_u32 s4, s4, 0x10000
          v_lshrrev_b32 v67, 5, v{LN}
          v_lshl_add_u32 v65, v67, 4, s4   ; X3p + h*16
          v_lshl_add_u32 v66, v{LN}, 2, s4 ; X4p - 0x400 + lane*4
          s_mov_b32 s6, 1
          s_mov_b32 s7, 1''')
    for q in range(4):
        a(f'ds_write_b128 v64, {vr(CC + 4 * q)} offset:{q * 1024}')
    a('s_mov_b64 exec, s[6:7]')
    for q in range(4):
        a(f'ds_write_b128 v65, {vr(X3 + 4 * q)} offset:{q * 32}')
    a(f'''s_mov_b32 exec_lo, -1
          s_mov_b32 exec_hi, 0
          ds_write_b32 v66, v{X4} offset:1024
          s_mov_b64 exec, -1''')
    for q in range(4):
        a(f'ds_write_b128 v64, {vr(SS + 4 * q)} offset:{4096 + q * 1024}')
    a(f'''s_lshr_b32 s4, s3, 1
          s_and_b32 s5, s3, 1
          s_lshl_b32 s6, s4, 10
          s_lshl_b32 s7, s5, 3
          s_add_u32 s6, s6, s7
          v_add_u32 v68, s6, v{L16}
          s_lshl_b32 s6, s4, 3
          s_lshl_b32 s7, s5, 1
          s_add_u32 s6, s6, s7
          v_lshl_add_u32 v73, v67, 2, s6
          v_lshlrev_b32 v69, 2, v73
          v_add_u32 v69, 0x10000, v69
          v_and_b32 v71, 31, v{LN}
          v_lshlrev_b32 v70, 2, v71
          v_add_u32 v70, 0x10400, v70
          s_lshl_b32 s4, s80, 15
          s_lshl_b32 s5, s3, 12
          s_add_u32 s70, s4, s5
          s_add_u32 s70, s70, {OF}
          s_waitcnt lgkmcnt(0)
          s_barrier''')
    stamp(a, 12)
    for w in range(8):
        a(f'''ds_read_b64 {vr(128 + 2 * w, 2)}, v68 offset:{w * 8192}
              ds_read_b64 {vr(144 + 2 * w, 2)}, v68 offset:{w * 8192 + 4096}''')
    for w in range(8):
        a(f'''ds_read_b64 {vr(160 + 2 * w, 2)}, v69 offset:{w * 128}
              ds_read_b32 v{176 + w}, v70 offset:{w * 128}''')
    a(f'''s_lshl_b32 s4, s77, 5
          v_add_u32 v71, s4, v71           ; e
          v_lshl_add_u32 v73, v73, 1, s84  ; t0 ; t1 = t0 + 2
          v_cmp_eq_u32 s[74:75], 0, v73
          v_cmp_eq_u32 s[64:65], 0, v71
          v_sub_u32 v14, 0x800, v73
          v_mov_b32 v15, 0x400
          v_cndmask_b32 v15, v14, v15, s[74:75]
          v_subrev_u32 v14, 2, v14
          v_sub_u32 v16, 0x200, v71
          v_mov_b32 v17, 0x100
          v_cndmask_b32 v16, v16, v17, s[64:65]   ; col2
          v_lshlrev_b32 v17, 1, v71
          v_lshlrev_b32 v16, 1, v16
          v_lshl_add_u32 v20, v73, 11, v17
          v_lshl_add_u32 v21, v73, 11, v16
          v_lshl_add_u32 v22, v15, 11, v17
          v_lshl_add_u32 v23, v15, 11, v16
          v_lshl_add_u32 v24, v14, 11, v17
          v_lshl_add_u32 v25, v14, 11, v16
          s_cmp_eq_u32 s83, 0
          s_cselect_b64 vcc, -1, 0
          v_cndmask_b32 v8, 0, v{T0}, vcc
          v_cndmask_b32 v9, 0, v{T1}, vcc
          v_cndmask_b32 v10, v{T0}, 0, vcc
          s_mov_b32 s71, 4096
          s_waitcnt lgkmcnt(0)''')
    for base, n, st in ((128, 2, 2), (144, 2, 2), (160, 2, 2), (176, 1, 1)):
        for step in (4, 2, 1):
            for w in range(step):
                for i in range(n):
                    a(f'v_add_f32 v{base + st * w + i}, v{base + st * w + i}, v{base + st * (w + step) + i}')
    gather = [f'buffer_load_dwordx4 {vr(48 + 4 * i)}, v{L16}, s[16:19], s70 offen offset:{i * 1024} sc1' for i in range(4)]
    for g in gather:
        a(g)
    a('''v_add_f32 v128, v128, v8
         v_sub_f32 v129, v129, v8
         v_add_f32 v160, v160, v9
         v_sub_f32 v161, v161, v9
         v_add_f32 v176, v176, v8
         v_add_f32 v177, v144, v9          ; corner
         v_sub_f32 v144, v144, v10
         v_add_f32 v145, v145, v10
         s_or_b64 s[66:67], s[74:75], s[64:65]
         s_and_b64 s[68:69], s[74:75], s[64:65]
         v_cndmask_b32 v144, v144, 0, s[66:67]
         v_cndmask_b32 v145, v145, 0, s[64:65]
         v_sub_f32 v30, v128, v144
         v_add_f32 v31, v128, v144
         v_sub_f32 v32, v129, v145
         v_add_f32 v33, v129, v145
         v_cndmask_b32 v34, v31, v160, s[64:65]
         v_cndmask_b32 v35, v31, v176, s[74:75]
         v_cndmask_b32 v36, v30, v160, s[64:65]
         v_cndmask_b32 v36, v36, v176, s[74:75]
         v_cndmask_b32 v36, v36, v177, s[68:69]
         v_cndmask_b32 v37, v33, v161, s[64:65]
         v_cndmask_b32 v38, v32, v161, s[64:65]
         v_cvt_pk_bf16_f32 v40, v30, v32
         v_cvt_pk_bf16_f32 v41, v34, v37
         v_cvt_pk_bf16_f32 v42, v35, v33
         v_cvt_pk_bf16_f32 v43, v36, v38
         buffer_store_short v40, v20, s[20:23], 0 offen
         buffer_store_short_d16_hi v40, v20, s[20:23], s71 offen
         buffer_store_short v41, v21, s[20:23], 0 offen
         buffer_store_short_d16_hi v41, v21, s[20:23], s71 offen
         buffer_store_short v42, v22, s[20:23], 0 offen
         buffer_store_short_d16_hi v42, v24, s[20:23], 0 offen
         buffer_store_short v43, v23, s[20:23], 0 offen
         buffer_store_short_d16_hi v43, v25, s[20:23], 0 offen''')
    stamp(a, 13)
    a(f'''s_lshl_b32 s5, s3, 12
          s_add_u32 s5, s5, {OST}
          v_add_u32 v64, s5, v{L16}
          v_lshrrev_b32 v65, 4, v{LN}      ; g
          v_and_b32 v66, 15, v{LN}
          v_lshlrev_b32 v67, 4, v66
          v_lshl_add_u32 v67, v65, 9, v67
          v_add_u32 v67, {OST}, v67
          v_and_b32 v68, 31, v{LN}
          s_lshl_b32 s4, s80, 5
          v_add_u32 v68, s4, v68
          v_lshlrev_b32 v68, 11, v68
          v_lshrrev_b32 v65, 5, v{LN}
          v_lshl_add_u32 v68, v65, 4, v68
          s_lshl_b32 s4, s81, 8
          s_lshl_b32 s5, s3, 5
          s_add_u32 s72, s4, s5
          s_add_u32 s72, s72, 1024
          s_mov_b32 s5, {SPIN}
          s_waitcnt vmcnt(8)
          L_op_chk:
          v_max3_u32 v1, v48, v49, v50''')
    for i in range(51, 63, 2):
        a(f'v_max3_u32 v1, v1, v{i}, v{i + 1}')
    a('''v_max_u32 v1, v1, v63
         v_cmp_eq_u32 vcc, -1, v1
         s_cbranch_vccz L_op_ok
         s_sub_u32 s5, s5, 1
         s_cbranch_scc1 L_op_ok''')
    for g in gather:
        a(g)
    a('''s_waitcnt vmcnt(0)
         s_branch L_op_chk
         L_op_ok:''')
    for i in range(4):
        a(f'ds_write_b128 v64, {vr(48 + 4 * i)} offset:{i * 1024}')
    a('''s_waitcnt lgkmcnt(0)
         s_barrier''')
    stamp(a, 14)
    NB = 12
    rd = lambda n: a(f'ds_read_b128 {vr(4 * (n % NB))}, v67 offset:{(n >> 1) * 2048 + (n & 1) * 256}')
    for n in range(NB - 2):
        rd(n)
    for n in range(32):
        nxt = n + NB - 2
        if nxt < 32:
            rd(nxt)
        out = min(31, nxt) - n
        acc = vr(72 + 4 * (n & 1))
        a(f'''s_waitcnt lgkmcnt({out})
              v_mfma_f32_16x16x32_bf16 {acc}, {vr(WO + 4 * (n >> 1))}, {vr(4 * (n % NB))}, {acc if n >= 2 else 0}''')
    a('''s_nop 7
         v_cvt_pk_bf16_f32 v80, v72, v73
         v_cvt_pk_bf16_f32 v81, v74, v75
         v_cvt_pk_bf16_f32 v82, v76, v77
         v_cvt_pk_bf16_f32 v83, v78, v79
         s_nop 1
         v_permlane16_swap_b32 v80, v82
         v_permlane16_swap_b32 v81, v83
         buffer_store_dwordx4 v[80:83], v68, s[20:23], s72 offen''')
    stamp(a, 15)
    if OPT['stamps']:
        a('s_waitcnt vmcnt(0)')
    stamp(a, 16)
    stamp_dump(a)


def build():
    a = A()
    prologue(a)
    a('''s_cmp_ge_u32 s3, 4
         s_cbranch_scc0 L_p1_compute''')
    p1_loader(a)
    a('''s_branch L_p1_join
         L_p1_compute:''')
    p1_compute(a)
    stamp(a, 25)
    if OPT.get('gate', 1) == 1:
        a('s_barrier')
    attn_setup(a)
    if OPT.get('gate') == 2:
        a('s_waitcnt vmcnt(0)\ns_barrier')
    publish1(a)
    a('L_p1_join:')
    fl = attention(a)
    tail(a)
    a('''L_end:
         s_endpgm''')
    cold_paths(a, fl)
    a('L_code_end:')
    a('s_endpgm')
    return a.text()


def main(path):
    hdr = ''.join(l for l in open(f'cdna_kernels/{NAME}.s.ref') if l.startswith(';') and '@launch' not in l)
    out = hdr + f'; @launch grid=(256,1,1) block=(512,1,1) lds={LDS_BYTES}\n'
    out += f'''.amdgcn_target "amdgcn-amd-amdhsa--gfx950"
.text
.globl {NAME}_kernel
.p2align 8
.type {NAME}_kernel,@function
{NAME}_kernel:
'''
    out += build()
    out += f'''.section .rodata,"a"
.p2align 6
.amdhsa_kernel {NAME}_kernel
  .amdhsa_next_free_vgpr 256
  .amdhsa_next_free_sgpr 96
  .amdhsa_accum_offset 256
  .amdhsa_group_segment_fixed_size 0
  .amdhsa_kernarg_size 88
  .amdhsa_user_sgpr_count 2
  .amdhsa_user_sgpr_kernarg_segment_ptr 1
  .amdhsa_system_sgpr_workgroup_id_x 1
.end_amdhsa_kernel
'''
    open(path, 'w').write(out)


if __name__ == '__main__':
    for x in sys.argv[1:]:
        if x.startswith('--'):
            k, _, v = x[2:].partition('=')
            OPT[k] = (int(v, 0) if v[0].isdigit() else v) if v else True
    args = [x for x in sys.argv[1:] if not x.startswith('--')]
    main(args[0] if args else f'cdna_kernels/{NAME}.s')
```

```python
import math, struct, sys

NAME = 'concat_heads__spectral_fnet__softmax_full_mha__prompt'
QF, KV, EO, OF, WOF, RR, FLAGS, EPOCH, STAMP, WS_SIZE = (
    0, 0x200000, 0x600000, 0x700000, 0x900000, 0x980000, 0x990000, 0x9A0000, 0x9C0000, 0xB00000)
PFLAGS = 0xA00000
OFFS = 100.0
VLOG = 40
CSCALE = 0.25 * math.log2(math.e)
ONEBF = (127 + VLOG) << 7
SPIN = 400000
OPT = dict(stamps=False, cyc=False)


def f2u(x):
    return struct.unpack('<I', struct.pack('<f', x))[0]


class A:
    def __init__(self):
        self.l = []

    def __call__(self, s):
        for ln in s.strip('\n').split('\n'):
            ln = ln.strip()
            if not ln:
                continue
            self.l.append(ln if ln.endswith(':') or ln.startswith('.') else '    ' + ln)

    def text(self):
        return '\n'.join(self.l) + '\n'


def vr(b, n=4):
    return f'v[{b}:{b + n - 1}]'


def srd(a, d, lo, size):
    a(f'''s_mov_b32 s{d}, s{lo}
          s_mov_b32 s{d + 1}, s{lo + 1}
          s_mov_b32 s{d + 2}, {size}
          s_mov_b32 s{d + 3}, 0x20000''')


STV = 126


def stamp(a, slot):
    if not OPT['stamps']:
        return
    a(f'''{'s_memtime' if OPT['cyc'] else 's_memrealtime'} s[94:95]
          s_waitcnt lgkmcnt(0)
          v_writelane_b32 v{STV}, s94, {slot}''')
    if slot == 0:
        a(f'v_writelane_b32 v{STV}, s96, 30')


def stamp_dump(a):
    if not OPT['stamps']:
        return
    a(f'''v_mbcnt_lo_u32_b32 v{STV + 1}, -1, 0
          v_mbcnt_hi_u32_b32 v{STV + 1}, -1, v{STV + 1}
          v_lshlrev_b32 v{STV + 1}, 2, v{STV + 1}
          s_lshl_b32 s92, s2, 3
          s_add_u32 s92, s92, s3
          s_lshl_b32 s92, s92, 7
          s_add_u32 s92, s92, {STAMP}
          s_mov_b32 exec_hi, 0
          buffer_store_dword v{STV}, v{STV + 1}, s[16:19], s92 offen sc1
          s_mov_b64 exec, -1''')


SA, SB, NMA, NMB, OA, OB, QA, QB, KF, V0, V1 = 0, 16, 32, 48, 64, 80, 96, 100, 104, 108, 112
IDX, KA, VA, VINC, L16, WSA, LN, T0, T1, T2 = 116, 117, 118, 119, 120, 121, 122, 123, 124, 125
A2C, A2S, A2E, A2O, WO = 128, 144, 160, 176, 192
ONES, MRG, WST, CNT = 0x20000, 0x22800, 0x27000, 0x27800
QST = MRG
LDS_BYTES = 0x28000


def prologue(a):
    if OPT['stamps']:
        a(f"{'s_memtime' if OPT['cyc'] else 's_memrealtime'} s[96:97]")
    a(f'''s_cmp_ge_u32 s2, 256
          s_cbranch_scc1 L_end
          s_load_dwordx16 s[36:51], s[0:1], 0
          s_load_dwordx4 s[52:55], s[0:1], 64
          s_load_dwordx2 s[56:57], s[0:1], 80
          v_lshrrev_b32 v1, 6, v0
          v_and_b32 v0, 63, v0
          v_readfirstlane_b32 s3, v1
          s_and_b32 s60, s2, 7
          s_lshr_b32 s61, s2, 3
          v_mov_b32 v{LN}, v0
          v_lshlrev_b32 v{L16}, 4, v0
          ; phase-1 roles: s62 kind, s63 rb, s64 cb, s65 rot
          s_lshr_b32 s62, s60, 1
          s_and_b32 s63, s60, 1
          s_lshl_b32 s63, s63, 3
          s_and_b32 s4, s61, 7
          s_add_u32 s63, s63, s4
          s_lshr_b32 s64, s61, 3
          s_lshl_b32 s65, s64, {1 if OPT.get('rot', 3) == 7 else 0}
          s_add_u32 s65, s65, s4
          s_and_b32 s65, s65, 7
          s_lshl_b32 s5, s60, 2
          s_lshr_b32 s59, {OPT.get('flip', 0)}, s5
          s_and_b32 s59, s59, 7
          s_lshl_b32 s76, s60, 2
          s_and_b32 s5, s61, 3
          s_add_u32 s76, s76, s5           ; head
          s_lshr_b32 s77, s61, 2           ; j
          s_and_b32 s78, s3, 3             ; q pair
          s_lshr_b32 s79, s3, 2
          s_lshl_b32 s80, s60, 3
          s_add_u32 s80, s80, s4           ; qt
          s_mov_b32 s81, s64               ; nb
          s_cmp_eq_u32 s62, 3
          s_cselect_b32 s66, 1, 3
          s_lshl_b32 s14, s66, 19
          s_lshl_b32 s66, s66, 10          ; W pitch
          s_lshl_b32 s6, s62, 10
          s_lshl_b32 s7, s64, 8
          s_add_u32 s6, s6, s7
          s_and_b32 s7, s7, 256
          s_cmp_eq_u32 s62, 3
          s_cselect_b32 s67, s7, s6
          s_mov_b32 s10, 0x200000
          s_mov_b32 s11, 0x20000
          s_mov_b32 s15, 0x20000''')


def srds(a):
    a('''s_waitcnt lgkmcnt(0)
         s_cmp_lt_u32 s64, 2
         s_cselect_b32 s4, s42, s44
         s_cselect_b32 s5, s43, s45
         s_cmp_eq_u32 s62, 3
         s_cselect_b32 s8, s36, s46
         s_cselect_b32 s9, s37, s47
         s_cselect_b32 s12, s4, s48
         s_cselect_b32 s13, s5, s49''')


def srds_late(a):
    srd(a, 16, 56, WS_SIZE)
    srd(a, 32, 50, 0x80000)


def srds_attn(a):
    srd(a, 20, 52, 0x400000)
    srd(a, 24, 38, 0x800000)
    srd(a, 28, 40, 0x800000)


def o_offset(a):
    a(f'''s_lshl_b32 s4, s77, 3
          s_lshl_b32 s5, s78, 1
          s_add_u32 s4, s4, s5
          s_add_u32 s4, s4, s79
          s_lshl_b32 s4, s4, 15
          s_lshl_b32 s5, s76, 10
          s_add_u32 s4, s4, s5
          s_add_u32 s82, s4, {OF}''')


def epoch_load(a):
    a(f'''s_add_u32 s4, s56, {EPOCH}
          s_addc_u32 s5, s57, 0
          s_load_dword s58, s[4:5], 0''')


def p1_loader(a):
    a('''s_sub_u32 s68, s3, 4             ; lw
         v_lshrrev_b32 v1, 3, v0
         v_and_b32 v2, 7, v0
         v_lshrrev_b32 v3, 4, v0
         v_xor_b32 v2, v2, v3
         v_lshlrev_b32 v2, 4, v2
         v_xor_b32 v9, 64, v2
         s_cmp_eq_u32 s62, 3
         s_cbranch_scc1 L_p1_rowsA
         s_lshl_b32 s4, s63, 7
         s_lshl_b32 s5, s68, 5
         s_add_u32 s4, s4, s5
         v_add_u32 v1, s4, v1
         v_lshl_add_u32 v4, v1, 10, v2
         v_lshl_add_u32 v5, v1, 10, v9
         v_add_u32 v5, 0x2000, v5
         v_add_u32 v6, 0x4000, v4
         v_add_u32 v7, 0x4000, v5
         s_branch L_p1_rowsdone
         L_p1_rowsA:
         s_lshl_b32 s4, s63, 5
         s_lshr_b32 s5, s68, 1
         s_lshl_b32 s5, s5, 4
         s_add_u32 s4, s4, s5
         v_add_u32 v1, s4, v1
         s_and_b32 s5, s68, 1
         s_lshl_b32 s6, s5, 10            ; B
         s_lshl_b32 s7, s5, 9
         v_cmp_eq_u32 vcc, 0, v1
         v_mov_b32 v10, s7
         v_add_u32 v11, s6, v1            ; B + s'
         v_cndmask_b32 v10, 0, v10, vcc
         s_add_u32 s6, s6, 1024
         v_sub_u32 v12, s6, v1            ; B + 1024 - s'
         v_add_u32 v13, 8, v11
         v_subrev_u32 v14, 8, v12
         v_sub_u32 v11, v11, v10
         v_sub_u32 v12, v12, v10
         v_lshl_add_u32 v4, v11, 10, v2
         v_lshl_add_u32 v5, v13, 10, v9
         v_lshl_add_u32 v6, v12, 10, v2
         v_lshl_add_u32 v7, v14, 10, v9
         L_p1_rowsdone:
         v_and_b32 v2, 15, v0
         v_lshlrev_b32 v9, 2, v3
         v_xor_b32 v2, v2, v9
         v_lshlrev_b32 v2, 4, v2
         s_lshl_b32 s4, s68, 4
         v_add_u32 v3, s4, v3
         v_mul_lo_u32 v3, v3, s66
         v_add3_u32 v8, v3, v2, s67
         v_xor_b32 v9, 32, v8
         s_lshl_b32 s72, s66, 2           ; 4*pitch
         s_lshl_b32 s73, s66, 6           ; 64*pitch
         s_lshl_b32 s74, s68, 12''')
    srds(a)

    def issue(stage):
        slot = stage & 3
        rm = OPT.get('rot', 3)
        a(f'''s_add_u32 s4, s65, {stage}
              s_and_b32 s4, s4, {rm}
              s_or_b32 s4, s4, {stage & ~rm}
              s_xor_b32 s4, s4, s59
              s_lshl_b32 s5, s4, 7
              s_mul_i32 s6, s4, s73''')
        for i in range(4):
            a(f'''s_add_u32 m0, s74, {slot * 32768 + i * 1024}
                  s_nop 0
                  buffer_load_dwordx4 v{4 + i}, s[8:11], s5 offen lds
                  s_add_u32 m0, s74, {slot * 32768 + 16384 + i * 1024}
                  s_nop 0
                  buffer_load_dwordx4 v{8 + (i >> 1)}, s[12:15], s6 offen lds''')
            if i < 3:
                a('s_add_u32 s6, s6, s72')

    stamp(a, 0)
    issue(0)
    issue(1)
    stamp(a, 1)
    srds_late(a)
    epoch_load(a)
    o_offset(a)
    a(f'''v_and_b32 v1, 11, v0
          v_cmp_eq_u32 vcc, 0, v1
          v_mov_b32 v2, {ONEBF * 0x10001}
          s_mul_i32 s4, s68, 2560
          v_cndmask_b32 v16, 0, v2, vcc
          v_mov_b32 v17, v16
          v_mov_b32 v18, v16
          v_mov_b32 v19, v16
          s_add_u32 s4, s4, {ONES}
          v_add_u32 v1, s4, v{L16}
          ds_write_b128 v1, v[16:19]
          ds_write_b128 v1, v[16:19] offset:1024
          ds_write_b128 v1, v[16:19] offset:1536
          v_mov_b32 v1, {CNT}
          v_mov_b32 v2, 0
          ds_write_b32 v1, v2''')
    a('''v_and_b32 v1, 3, v0
         v_lshlrev_b32 v1, 1, v1
         v_bfe_u32 v2, v0, 3, 1
         v_or_b32 v1, v1, v2
         v_lshlrev_b32 v1, 5, v1
         s_lshl_b32 s4, s68, 4
         v_add_u32 v2, s4, v0
         v_lshl_add_u32 v13, v2, 8, v1
         v_add_u32 v13, 16384, v13
         v_and_b32 v1, 1, v0
         v_lshlrev_b32 v1, 15, v1
         v_or_b32 v14, 0x3f80, v1
         s_cmp_eq_u32 s62, 3
         s_cselect_b32 s75, s64, 0        ; ==2 -> patch''')
    for c in range(8):
        if c == 3:
            stamp(a, 28)
        a(f's_waitcnt vmcnt({[8, 8, 8, 8, 8, 8, 8, 0][c]})')
        if c in (0, 3):
            stamp(a, 2 if c == 0 else 29)
        a(f'''s_cmp_eq_u32 s75, 2
              s_cbranch_scc0 L_p1_nopatch{c}
              s_mov_b64 exec, 0xffff
              v_add_u32 v1, {(c & 3) * 32768}, v13
              ds_write_b16 v1, v14
              s_mov_b64 exec, -1
              s_waitcnt lgkmcnt(0)
              L_p1_nopatch{c}:
              s_barrier''')
        stamp(a, 17 + c)
        if c <= 5:
            issue(c + 2)
    attn_setup(a)
    a('s_barrier')
    stamp(a, 25)
    a(f'''s_lshr_b32 s4, s76, 3
          s_lshl_b32 s4, s4, 5
          s_add_u32 s4, s4, s61
          s_lshl_b32 s4, s4, 11
          s_add_u32 s4, s4, {PFLAGS}
          s_add_u32 s8, s56, s4
          s_addc_u32 s9, s57, 0
          s_mov_b32 s6, 1024
          s_lshl_b32 s70, s76, 16
          s_lshl_b32 s71, s77, 13
          s_add_u32 s70, s70, s71
          s_mov_b32 s71, {QST}
          s_cmp_eq_u32 s68, 1
          s_cselect_b32 s6, 0, s6
          s_cselect_b32 s70, s88, s70
          s_cselect_b32 s71, 0, s71
          s_cmp_eq_u32 s68, 2
          s_cselect_b32 s6, 1160, s6
          s_cselect_b32 s70, s89, s70
          s_cselect_b32 s71, 0x10000, s71
          s_mov_b32 s5, {SPIN}
          s_mov_b32 s59, s58
          s_mov_b32 m0, s71
          s_add_u32 s72, s70, 0x1000
          s_cmp_eq_u32 s68, 3
          s_barrier
          s_cbranch_scc0 L_s1_poll
          L_s1_poll7:                      ; wave 7: the other K, V blocks''')
    regs = [36, 40, 44, 48, 64, 72, 12]
    for i, r in enumerate(regs):
        a(f's_load_dwordx4 s[{r}:{r + 3}], s[8:9], {128 * (i + 1)} glc')
    a('''s_sub_u32 s5, s5, 1
         s_cbranch_scc1 L_p1_join
         s_mov_b64 s[6:7], 0
         s_waitcnt lgkmcnt(0)''')
    for r in regs:
        for h in (0, 2):
            a(f'''s_xor_b64 s[10:11], s[{r + h}:{r + h + 1}], s[58:59]
                  s_or_b64 s[6:7], s[6:7], s[10:11]''')
    a('''s_cbranch_scc1 L_s1_poll7
         s_branch L_p1_join
         L_s1_poll:
         s_load_dwordx2 s[10:11], s[8:9], s6 glc
         s_sub_u32 s5, s5, 1
         s_cbranch_scc1 L_s1_pdone
         s_waitcnt lgkmcnt(0)
         s_cmp_eq_u64 s[10:11], s[58:59]
         s_cbranch_scc0 L_s1_poll
         L_s1_pdone:''')
    stamp(a, 26)
    for i in range(4):
        a(f'buffer_load_dwordx4 v{L16}, s[16:19], s70 offen offset:{i * 1024} sc1 lds')
    a('''s_add_u32 m0, s71, 0x1000
         s_nop 0''')
    for i in range(4):
        a(f'buffer_load_dwordx4 v{L16}, s[16:19], s72 offen offset:{i * 1024} sc1 lds')
    a('s_waitcnt vmcnt(0)')


def p1_compute(a):
    a('''s_mul_i32 s4, s61, 6 * 128
         v_min_u32 v22, 5, v0
         v_lshl_add_u32 v22, v22, 7, s4
         s_cmp_eq_u32 s3, 0
         s_cbranch_scc0 L_p1_nopf
         v_min_u32 v22, L_code_end - L_pc - 4, v22
         s_getpc_b64 s[6:7]
         L_pc:
         global_load_dword v23, v22, s[6:7]
         L_p1_nopf:''')
    a('''s_and_b32 s68, s3, 1             ; wr
         s_lshr_b32 s69, s3, 1            ; wc
         v_and_b32 v1, 15, v0
         v_lshrrev_b32 v2, 4, v0          ; g
         v_lshrrev_b32 v3, 1, v1
         v_xor_b32 v3, v3, v2
         v_lshlrev_b32 v3, 4, v3
         v_lshl_add_u32 v3, v1, 7, v3
         s_lshl_b32 s4, s68, 13
         v_add_u32 v4, s4, v3
         v_xor_b32 v5, 64, v4
         v_bfe_u32 v10, v0, 2, 2          ; r
         v_lshl_add_u32 v11, v2, 3, v10   ; 8g + r
         v_lshlrev_b32 v11, 8, v11
         v_lshlrev_b32 v10, 1, v10
         v_and_b32 v12, 1, v2
         v_or_b32 v10, v10, v12           ; z
         s_lshl_b32 s4, s69, 2
         v_xor_b32 v10, s4, v10
         v_lshl_add_u32 v11, v10, 5, v11
         v_and_b32 v10, 3, v0
         v_lshl_add_u32 v11, v10, 3, v11
         v_add_u32 v6, 16384, v11
         v_xor_b32 v7, 32, v6
         v_xor_b32 v8, 64, v6
         v_xor_b32 v9, 96, v6''')
    for i in range(32):
        a(f'v_mov_b64 {vr(128 + 2 * i, 2)}, 0')
    o_offset(a)
    a(f'''v_lshrrev_b32 v1, 1, v0
          v_and_b32 v2, 1, v0
          v_lshlrev_b32 v3, 4, v2
          v_lshl_add_u32 v15, v1, 10, v3
          v_lshrrev_b32 v3, 4, v0
          v_bfe_u32 v10, v0, 2, 2
          v_lshl_add_u32 v3, v3, 3, v10
          v_lshlrev_b32 v3, 5, v3
          v_and_b32 v2, 3, v0
          v_lshl_add_u32 v3, v2, 3, v3
          s_lshl_b32 s71, s68, 10
          s_add_u32 s71, s71, {WST}
          v_add_u32 v20, s71, v3
          s_lshr_b32 s70, s2, 4
          s_and_b32 s6, s2, 15
          s_lshl_b32 s6, s6, 1
          s_add_u32 s6, s6, s68
          s_lshl_b32 s4, s70, 15
          s_lshl_b32 s5, s6, 5
          s_add_u32 s72, s4, s5
          s_lshl_b32 s6, s6, 14
          s_lshl_b32 s70, s70, 10
          s_add_u32 s70, s70, s6
          s_add_u32 s70, s70, {WOF}        ; destination
          s_mov_b32 m0, s71
          s_waitcnt lgkmcnt(0)''')
    stamp(a, 0)
    epoch_load(a)
    srds_late(a)
    if OPT.get('warm', 1):
        a(f'''s_cmp_eq_u32 s3, 1
              s_cbranch_scc0 L_p1_nowarm
              s_lshr_b32 s4, s76, 3
              s_lshl_b32 s4, s4, 5
              s_add_u32 s4, s4, s61
              s_lshl_b32 s4, s4, 11
              s_add_u32 s4, s4, {PFLAGS}
              v_lshlrev_b32 v1, 7, v0
              v_mov_b32 v2, 0
              s_mov_b64 exec, 0x3ff
              buffer_atomic_add v2, v1, s[16:19], s4 offen sc1
              s_mov_b64 exec, -1
              L_p1_nowarm:''')
    a(f'''s_cmp_ge_u32 s3, 2
          s_cbranch_scc0 L_p1_nowo
          buffer_load_dwordx4 v15, s[32:35], s72 offen lds
          s_waitcnt vmcnt(0)
          ds_read_b64_tr_b16 v[24:25], v20
          ds_read_b64_tr_b16 v[26:27], v20 offset:128
          s_waitcnt lgkmcnt(0)
          buffer_store_dwordx4 v[24:27], v{L16}, s[16:19], s70 offen sc1
          L_p1_nowo:''')

    def rset(st):
        return 32 + 32 * st

    def reads(st, slot, ks):
        b = rset(st)
        L = []
        for i in range(4):
            L.append(f'ds_read_b128 {vr(b + 4 * i)}, v{4 + ks} offset:{slot * 32768 + i * 2048}')
            L.append(f'ds_read_b64_tr_b16 {vr(b + 16 + 4 * i, 2)}, v{6 + i} offset:{slot * 32768 + ks * 8192}')
            L.append(f'ds_read_b64_tr_b16 {vr(b + 18 + 4 * i, 2)}, v{6 + i} offset:{slot * 32768 + ks * 8192 + 1024}')
        return L

    def step(st, T, rd, extra=()):
        b = rset(st)
        rd = list(rd)
        extra = list(extra)
        order = [(rt, ct) for ct in range(4) for rt in range(4)]
        for n, (rt, ct) in enumerate(order):
            acc = vr(128 + 16 * rt + 4 * ct)
            x, w = vr(b + 4 * rt), vr(b + 16 + 4 * ct)
            a(f'v_mfma_f32_16x16x32_bf16 {acc}, {w if T else x}, {x if T else w}, {acc}')
            for _ in range(2):
                if rd:
                    a(rd.pop(0))
            if not rd and n >= 7 and extra:
                a(extra.pop(0))
        a('s_waitcnt lgkmcnt(0)')

    def loop(T, tag):
        stamp(a, 2)
        a('s_barrier')
        stamp(a, 17)
        for r in reads(0, 0, 0):
            a(r)
        a(f'''s_mov_b32 s70, 4
              s_waitcnt lgkmcnt(0)
              .p2align 3
              L_p1_loop{tag}:''')
        step(0, T, reads(1, 0, 1))
        a('s_barrier')
        step(1, T, reads(0, 1, 0))
        step(0, T, reads(1, 1, 1), [f'v_xor_b32 v{r}, 0x10000, v{r}' for r in range(4, 10)])
        a('s_barrier')
        step(1, T, reads(0, 0, 0), ['s_sub_u32 s70, s70, 1', 's_cmp_lg_u32 s70, 0'])
        a(f's_cbranch_scc1 L_p1_loop{tag}')
        stamp(a, 3)

    a('''s_cmp_ge_u32 s62, 2
         s_cbranch_scc1 L_p1_N''')
    loop(True, 'T')
    a('''s_branch L_p1_epi
         L_p1_N:''')
    loop(False, 'N')
    a('''s_cmp_eq_u32 s62, 3
         s_cbranch_scc1 L_p1_epiA
         L_p1_epi:''')
    if OPT.get('xnb'):
        a(f'''s_and_b32 s4, s63, 7
              s_cmp_ge_u32 s4, {OPT['xnb']}
              s_cselect_b32 s4, s62, 0
              s_cmp_lg_u32 s4, 0
              s_cbranch_scc1 L_p1_cdone''')
    a(f'''s_cmp_eq_u32 s62, 2
          s_cselect_b32 s70, {f2u(2.0 ** VLOG)}, 1.0
          s_cselect_b32 s73, 1024, 0
          s_cselect_b32 s7, 12, 0
          s_add_u32 s73, s73, {KV}
          s_cmp_eq_u32 s62, 0
          s_cselect_b32 s70, {f2u(CSCALE)}, s70
          s_cselect_b32 s71, 16, 17
          s_cselect_b32 s72, 10, 11
          s_cselect_b32 s73, {QF}, s73
          s_lshl_b32 s4, s64, 3
          s_lshl_b32 s5, s69, 2
          s_add_u32 s4, s4, s5             ; head0
          s_lshl_b32 s4, s4, s71
          s_lshl_b32 s5, s63, 2
          s_lshl_b32 s6, s68, 1
          s_add_u32 s5, s5, s6             ; tile0
          s_lshl_b32 s5, s5, s72
          s_add_u32 s73, s73, s4
          s_add_u32 s73, s73, s5
          s_lshl_b32 s74, 1, s71
          s_lshl_b32 s75, 1, s72
          v_lshrrev_b32 v1, 1, v0
          v_xor_b32 v1, v1, v0
          v_and_b32 v1, 4, v1
          v_mul_u32_u24 v1, 3, v1
          v_and_b32 v1, s7, v1
          v_xor_b32 v1, v1, v0
          v_lshlrev_b32 v1, 4, v1
          v_add_u32 v2, s75, v1''')
    for ct in range(4):
        for rp in range(2):
            d = 32 + 4 * (2 * ct + rp)
            for u in range(2):
                src = 128 + 16 * (2 * rp + u) + 4 * ct
                for i in range(4):
                    a(f'v_mul_f32 v{src + i}, s70, v{src + i}')
            for u in range(2):
                src = 128 + 16 * (2 * rp + u) + 4 * ct
                for i in range(2):
                    a(f'v_cvt_pk_bf16_f32 v{d + 2 * u + i}, v{src + 2 * i}, v{src + 2 * i + 1}')
            a(f'''s_nop 1
                  v_permlane16_swap_b32 v{d}, v{d + 2}
                  v_permlane16_swap_b32 v{d + 1}, v{d + 3}
                  buffer_store_dwordx4 {vr(d)}, v{1 + rp}, s[16:19], s73 offen sc1''')
        if ct < 3:
            a('s_add_u32 s73, s73, s74')
    a('''s_branch L_p1_cdone
         L_p1_epiA:''')
    if OPT.get('xnb'):
        a('s_branch L_p1_cdone')
    a(f'''s_cmp_lt_u32 s64, 2
          s_cselect_b32 s70, 1.0, -1.0
          v_mov_b32 v10, s70
          v_mov_b32 v11, s70
          s_lshl_b32 s4, s64, 1
          s_add_u32 s4, s4, s69
          s_cmp_eq_u32 s4, 4
          s_cselect_b32 s5, 0x10001, 0
          s_mov_b32 vcc_lo, s5
          s_mov_b32 vcc_hi, s5
          v_mov_b32 v3, 1.0
          v_cndmask_b32 v10, v10, v3, vcc
          s_lshl_b32 s5, s63, 1
          s_add_u32 s5, s5, s68
          s_cmp_eq_u32 s5, 0
          s_cbranch_scc0 L_p1_noR
          s_lshl_b32 s6, s4, 8
          s_add_u32 s6, s6, {RR}
          v_lshlrev_b32 v2, 2, v0
          s_mov_b64 exec, 0xffff''')
    for ct in range(4):
        a(f'''v_fma_f32 v{12 + ct}, v{10 if ct == 0 else 11}, v{176 + 4 * ct}, v{160 + 4 * ct}
              v_mov_b32 v{160 + 4 * ct}, 0
              v_mov_b32 v{176 + 4 * ct}, 0
              buffer_store_dword v{12 + ct}, v2, s[16:19], s6 offen offset:{ct * 64} sc1''')
    a(f'''s_mov_b64 exec, -1
          L_p1_noR:
          s_lshr_b32 s6, s64, 1
          s_lshl_b32 s6, s6, 19
          s_and_b32 s4, s4, 3
          s_lshl_b32 s4, s4, 16
          s_lshl_b32 s5, s5, 10
          s_add_u32 s73, s4, s5
          s_add_u32 s73, s73, s6
          s_add_u32 s73, s73, {EO}
          s_add_u32 s74, s73, 0x40000''')
    for cp in range(2):
        for u in range(2):
            ct = 2 * cp + u
            sg = 10 if ct == 0 else 11
            for i in range(4):
                a0, a1, a2, a3 = (128 + 16 * k + 4 * ct + i for k in range(4))
                a(f'''v_fmac_f32 v{a0}, v{sg}, v{a3}
                      v_fmac_f32 v{a1}, v{sg}, v{a2}''')
            for i in range(4):
                a0, a1, a2, a3 = (128 + 16 * k + 4 * ct + i for k in range(4))
                a(f'''v_fma_f32 v{a2}, v{sg}, v{a1}, v{a0}
                      v_fma_f32 v{a3}, -v{sg}, v{a1}, v{a0}''')
        for par in range(2):
            d = 32 + 4 * (2 * cp + par)
            for u in range(2):
                src = 160 + 16 * par + 4 * (2 * cp + u)
                for i in range(2):
                    a(f'v_cvt_pk_bf16_f32 v{d + 2 * u + i}, v{src + 2 * i}, v{src + 2 * i + 1}')
            a(f'''s_nop 1
                  v_permlane16_swap_b32 v{d}, v{d + 2}
                  v_permlane16_swap_b32 v{d + 1}, v{d + 3}
                  buffer_store_dwordx4 {vr(d)}, v{L16}, s[16:19], s{73 + par} offen sc1''')
        if cp == 0:
            a('''s_add_u32 s73, s73, 0x8000
                 s_add_u32 s74, s74, 0x8000''')
    a('L_p1_cdone:')


def attn_setup(a):
    srds_attn(a)
    a('''s_waitcnt lgkmcnt(0)
         s_add_u32 s58, s58, 1            ; nonce''')
    a(f'''s_lshl_b32 s4, s79, 16
          v_add_u32 v{KA}, s4, v{L16}
          v_and_b32 v1, 16, v{LN}
          v_cmp_ne_u32 vcc, 0, v1
          v_and_b32 v2, 15, v{LN}
          v_lshlrev_b32 v2, 4, v2
          v_add_u32 v2, {ONES}, v2
          v_cndmask_b32 v{VA}, v{KA}, v2, vcc
          v_mov_b32 v2, 0x2000
          v_cndmask_b32 v{VINC}, v2, 0, vcc
          v_mov_b32 v{IDX}, 0xdddddddd
          v_and_b32 v1, 31, v{LN}
          s_and_b32 s4, s76, 15
          s_lshl_b32 s4, s4, 6
          s_lshr_b32 s83, s76, 4           ; p
          s_add_u32 s84, s4, s83
          v_lshl_add_u32 v1, v1, 1, s84
          v_lshlrev_b32 v1, 12, v1
          v_lshrrev_b32 v2, 5, v{LN}
          v_lshl_add_u32 v1, v2, 4, v1
          s_lshl_b32 s4, s3, 7
          v_add_u32 v{WSA}, s4, v1
          s_lshl_b32 s85, s83, 18
          s_lshl_b32 s4, s77, 15
          s_add_u32 s85, s85, s4
          s_lshl_b32 s4, s3, 12
          s_add_u32 s85, s85, s4
          s_add_u32 s85, s85, {EO}         ; E fragments
          s_add_u32 s86, s85, 0x80000      ; O fragments
          s_lshl_b32 s87, s81, 3
          s_add_u32 s87, s87, s3
          s_lshl_b32 s87, s87, 14
          s_add_u32 s87, s87, {WOF}
          s_lshl_b32 s88, s76, 17
          s_add_u32 s88, s88, {KV}
          s_lshl_b32 s4, s79, 16
          s_add_u32 s89, s88, s4
          s_lshl_b32 s91, s78, 11
          s_add_u32 s90, s89, s91
          s_add_u32 s5, s91, {QST}
          v_add_u32 v{T0}, s5, v{L16}
          s_add_u32 s91, s91, s4
          s_lshl_b32 s4, s64, 6
          s_lshl_b32 s5, s62, 4
          s_add_u32 s4, s4, s5
          s_add_u32 s4, s4, s63
          s_lshl_b32 s4, s4, 4
          s_add_u32 s93, s4, {FLAGS}''')
    for i in range(16):
        a(f'v_mov_b64 {vr(OA + 2 * i, 2)}, 0')


def kv_dma(c):
    return [f's_add_u32 s4, s90, {c * 8192}',
            f's_add_u32 m0, s91, {c * 8192}',
            's_nop 0',
            f'buffer_load_dwordx4 v{L16}, s[16:19], s4 offen sc1 lds',
            f'buffer_load_dwordx4 v{L16}, s[16:19], s4 offen offset:1024 sc1 lds']


def publish1(a):
    a(f'''s_cmp_eq_u32 s62, 3
          s_cbranch_scc1 L_p1_join
          s_and_b32 s4, s63, 7
          s_cmp_eq_u32 s63, 8
          s_cselect_b32 s4, 9, s4
          s_lshl_b32 s4, s4, 7
          s_and_b32 s5, s63, 8
          s_lshl_b32 s6, s62, 2
          s_add_u32 s5, s5, s6
          s_add_u32 s4, s4, s5
          s_sub_u32 s4, s4, 4
          s_and_b32 s5, s63, 1
          s_lshl_b32 s5, s5, 2
          s_lshr_b32 s6, s63, 1
          s_lshl_b32 s6, s6, 13
          s_add_u32 s5, s5, s6
          s_add_u32 s5, s5, 1024
          s_cmp_eq_u32 s62, 0
          s_cselect_b32 s4, s5, s4
          s_cselect_b32 s6, 15, -1
          s_lshl_b32 s5, s64, 16
          s_add_u32 s4, s4, s5
          s_add_u32 s4, s4, {PFLAGS}
          v_lshlrev_b32 v1, 11, v{LN}
          v_mov_b32 v2, s58
          v_mov_b32 v3, {CNT}
          v_mov_b32 v4, 1
          s_mov_b64 exec, 1
          s_waitcnt vmcnt(0)
          ds_add_rtn_u32 v4, v3, v4
          s_waitcnt lgkmcnt(0)
          v_readfirstlane_b32 s5, v4
          s_mov_b32 exec_lo, s6
          s_cmp_eq_u32 s5, 3
          s_cbranch_scc0 L_s1_noflag
          buffer_store_dword v2, v1, s[16:19], s4 offen sc1
          L_s1_noflag:
          s_mov_b64 exec, -1''')


def a2mm(D, x, y, ks):
    return f'v_mfma_f32_32x32x16_bf16 {vr(D, 16)}, {vr(x + 4 * ks)}, {vr(y + 4 * ks)}, {vr(D, 16) if ks else 0}'


CC, SS, X3, X4 = NMA, NMB, SA, SB
MG = 0x8000


def unit(a, tau, b, side, last=False):
    X, Y = (SB, SA) if b else (SA, SB)
    OX, OY = (OB, OA) if b else (OA, OB)
    QY, NY = (QA, NMA) if b else (QB, NMB)
    vo = (tau & 3) * 2048
    side = list(side)
    e = lambda i: a(f'v_exp_f32 v{X + i}, v{X + i}')
    u = 2 * tau + b
    pr = OPT.get('pr', 1)
    p0, p1 = {0: (0, 1), 1: (3 - (u & 3), None), 2: (3 - ((2 * u) & 3), 3 - ((2 * u + 1) & 3)), 3: (None if b else 3 - (tau & 3), None),
              4: (None, None), 5: (2 - 2 * (u & 1), 3 - 2 * (u & 1)), 6: (None, 3 - (u & 3)), 7: (2 - 2 * (tau & 1), 3 - 2 * (tau & 1)),
              8: (2 - (u % 3), 3 - (u % 3)), 9: (1, 0)}[pr]
    if p0 is not None:
        a(f's_setprio {p0}')
    e(0); e(1)
    if b:
        a('s_waitcnt lgkmcnt(0)')
    if b or tau > 0:
        a(f'v_smfmac_f32_32x32x32_bf16 {vr(OY, 16)}, {vr(V1)}, {vr(Y + 8, 8)}, v{IDX}')
    if not b:
        a(f'ds_read_b128 {vr(V1)}, v{VA} offset:{vo + 1280}')
    e(2); e(3); e(4)
    if not (b and last):
        a(f'v_mfma_f32_32x32x16_bf16 {vr(Y, 16)}, {vr(KF)}, {vr(QY)}, {vr(NY, 16)}')
    else:
        a(a2mm(CC, A2C, A2E, 2))
    if not b and not last:
        a(f'ds_read_b128 {vr(KF)}, v{KA} offset:{(tau + 1) * 2048}')
    if p1 is not None:
        a(f's_setprio {p1}')
    for i in range(5, 10):
        e(i)
        if last and i == 7:
            a(a2mm(CC, A2C, A2E, 3 if b else 0))
    if not b:
        a(f's_waitcnt lgkmcnt({1 if last else 2})')
    a(f'v_smfmac_f32_32x32x32_bf16 {vr(OX, 16)}, {vr(V0)}, {vr(X, 8)}, v{IDX}')
    if b and not last:
        a(f'ds_read_b128 {vr(V0)}, v{VA} offset:{vo + 2048 + 1024}')
        if (tau & 3) == 3:
            a(f'v_add_u32 v{VA}, v{VINC}, v{VA}')
    for i in range(10, 16):
        e(i)
        if i == 12:
            for s in side:
                a(s)


def attention(a):
    stamp(a, 4)
    a('s_barrier')
    stamp(a, 6)
    a(f'''ds_read_b128 {vr(QA)}, v{T0}
          ds_read_b128 {vr(V1)}, v{L16}
          ds_read_b128 {vr(QB)}, v{T0} offset:1024
          ds_read_b128 {vr(KF)}, v{KA}
          ds_read_b128 {vr(V0)}, v{VA} offset:1024''')
    for s_ in kv_dma(1):
        a(s_)
    a(f'''s_waitcnt lgkmcnt(3)
          v_mfma_f32_32x32x16_bf16 {vr(SA, 16)}, {vr(V1)}, {vr(QA)}, 0
          s_waitcnt lgkmcnt(2)
          v_mfma_f32_32x32x16_bf16 {vr(SB, 16)}, {vr(V1)}, {vr(QB)}, 0
          v_mov_b64 {vr(A2C, 2)}, -1
          v_mov_b64 {vr(A2C + 2, 2)}, -1''')
    for s_ in kv_dma(2):
        a(s_)
    a(f'''buffer_store_dwordx4 {vr(A2C)}, v{L16}, s[16:19], s82 offen sc1
          s_nop 1''')
    for S, NM, t in ((SA, NMA, T0), (SB, NMB, T1)):
        a(f'v_max3_f32 v{t}, v{S}, v{S + 1}, v{S + 2}')
        for i in range(3, 15, 2):
            a(f'v_max3_f32 v{t}, v{t}, v{S + i}, v{S + i + 1}')
        a(f'''v_max_f32 v{t}, v{t}, v{S + 15}
              v_mov_b32 v{T2}, v{t}
              s_nop 1
              v_permlane32_swap_b32 v{t}, v{T2}
              v_max_f32 v{t}, v{t}, v{T2}
              v_sub_f32 v{NM}, {f2u(-OFFS)}, v{t}
              v_sub_f32 v{NM + 1}, {f2u(-OFFS)}, v{t}''')
        for i in range(2, 16, 2):
            a(f'v_mov_b64 {vr(NM + i, 2)}, {vr(NM, 2)}')
        if S == SA:
            a(f'''s_waitcnt lgkmcnt(0)
                  s_nop 0
                  v_mfma_f32_32x32x16_bf16 {vr(SA, 16)}, {vr(KF)}, {vr(QA)}, {vr(NMA, 16)}''')
    stamp(a, 7)

    side = {}

    def put(tau, b, ins):
        side.setdefault((tau, b), []).extend(ins)

    put(3, 0, ['s_cmp_eq_u32 s3, 0', 's_cbranch_scc0 L_at_noflag2', f'v_mov_b32 v{T0}, s58', 's_mov_b64 exec, 1',
               f'buffer_store_dword v{T0}, v{L16}, s[16:19], s93 offen sc1', 's_mov_b64 exec, -1', 'L_at_noflag2:'])
    for c in range(3, 8):
        put(c, 1, kv_dma(c))
    flag_loads = [f'buffer_load_dword v{A2E + i}, v{L16}, s[16:19], s92 offen offset:{i * 1024} sc1' for i in range(4)]
    put(8, 0, [f's_mov_b32 s92, {FLAGS}'] + flag_loads)
    put(10, 0, ['s_waitcnt vmcnt(0)', 'L_at_fchk:',
                f'v_cmp_ne_u32 vcc, s58, v{A2E}', f'v_cmp_ne_u32 s[4:5], s58, v{A2E + 1}',
                f'v_cmp_ne_u32 s[6:7], s58, v{A2E + 2}', f'v_cmp_ne_u32 s[62:63], s58, v{A2E + 3}',
                's_or_b64 vcc, vcc, s[4:5]', 's_or_b64 s[6:7], s[6:7], s[62:63]', 's_or_b64 vcc, vcc, s[6:7]',
                's_cbranch_vccnz L_at_fretry', 'L_at_fok:'])
    put(10, 1, ['s_or_b32 s4, s2, s3', 's_cmp_eq_u32 s4, 0', 's_cbranch_scc0 L_at_noepoch',
                f's_mov_b32 s4, {EPOCH}', 's_mov_b64 exec, 1',
                f'buffer_store_dword v{A2E}, v{L16}, s[16:19], s4 offen sc1',
                's_mov_b64 exec, -1', 'L_at_noepoch:'])
    loads = []
    for m in range(2):
        for ks in range(4):
            loads.append(f'buffer_load_dwordx4 {vr(A2C + 16 * m + 4 * ks)}, v{WSA}, s[{24 + 4 * m}:{27 + 4 * m}], 0 offen offset:{ks * 32}')
    for m in range(2):
        for ks in range(4):
            loads.append(f'buffer_load_dwordx4 {vr(A2E + 16 * m + 4 * ks)}, v{L16}, s[16:19], s{85 + m} offen offset:{ks * 1024} sc1')
    for ks in range(16):
        pre = 's_add_u32 s87, s87, 0x1000\n' if ks and ks % 4 == 0 else ''
        loads.append(pre + f'buffer_load_dwordx4 {vr(WO + 4 * ks)}, v{L16}, s[16:19], s87 offen offset:{(ks & 3) * 1024} sc1')
    u = 22
    sched = OPT.get('sched', 4)
    if sched == 0:
        for k in range(0, 8, 2):
            put(u >> 1, u & 1, loads[k:k + 2]); u += 1
        for ld in loads[8:]:
            put(u >> 1, u & 1, [ld]); u += 1
    elif sched == 1:
        for ld in loads[8:]:
            put(u >> 1, u & 1, [ld]); u += 1
    elif sched == 2:
        pass
    elif sched == 3:
        for k in range(8, 32, 2):
            put(u >> 1, u & 1, loads[k:k + 2]); u += 1
        for k, uu in enumerate((35, 41, 43, 45, 47, 53, 55, 57)):
            put(uu >> 1, uu & 1, [loads[k]])
    elif sched == 4:
        for k, uu in enumerate((22, 34, 36, 38, 28, 40, 42, 44)):
            put(uu >> 1, uu & 1, [loads[k]])
        u = 45
        for k in range(8, 32, 2):
            put(u >> 1, u & 1, loads[k:k + 2]); u += 1
    put(u >> 1, u & 1, [f'v_and_b32 v{T0}, 31, v{LN}', f'v_lshlrev_b32 v{T0}, 2, v{T0}', f'v_mov_b32 v{T1}, 0',
                        's_lshl_b32 s4, s77, 7', 's_lshl_b32 s5, s83, 10', 's_add_u32 s4, s4, s5',
                        f's_add_u32 s4, s4, {RR}', f's_mov_b32 s5, {RR + 1024}',
                        f'buffer_load_dword v{T0}, v{T0}, s[16:19], s4 offen sc1',
                        f'buffer_load_dword v{T1}, v{T1}, s[16:19], s5 offen sc1'])
    assert u < 60
    put(30, 0, ['s_waitcnt vmcnt(0)', 's_cmp_eq_u32 s76, 0', 's_cbranch_scc0 L_a2_nopatch', 's_mov_b32 exec_lo, 1', 's_mov_b32 exec_hi, 1'] +
        [f'v_mov_b32 v{A2S + i}, 0xbf803f80' for i in range(16)] + ['s_mov_b64 exec, -1', 'L_a2_nopatch:'])
    put(30, 1, ['s_mul_i32 s4, s3, 2304', f's_add_u32 m0, s4, {MG}', 's_xor_b32 s5, s3, 4', 's_mul_i32 s5, s5, 2304',
                f's_add_u32 s70, s5, {MG}', f"s_mov_b32 s71, {0 if OPT.get('forcefb') else f2u(2.0 ** 120)}"])
    put(31, 0, [a2mm(CC, A2C, A2E, 1)])
    put(31, 1, [a2mm(SS, A2S, A2O, 0), 's_cmp_eq_u32 s79, 0'])
    a('.p2align 3')
    for tau in range(32):
        if tau == 3:
            a('s_waitcnt vmcnt(0)\ns_barrier')
            stamp(a, 8)
        if tau == 11:
            a('s_barrier')
            stamp(a, 9)
        for b in range(2):
            unit(a, tau, b, side.get((tau, b), []), last=(tau == 31))
    a(f'''s_setprio 0
          s_cbranch_scc1 L_mg_k0''')
    R = KF
    for kh in (1, 0):
        snd, kp = (OA, OB) if kh else (OB, OA)
        if kh == 0:
            a('L_mg_k0:')
        a(f'v_smfmac_f32_32x32x32_bf16 {vr(OB, 16)}, {vr(V1)}, {vr(SB + 8, 8)}, v{IDX}')
        stamp(a, 10)
        if kh == 0:
            a('s_nop 11')
        for i in range(9):
            a(f'ds_write_addtid_b32 v{snd + i} offset:{MG + i * 256}')
        a(a2mm(SS, A2S, A2O, 1))
        a('''s_mov_b32 m0, s70
             s_waitcnt lgkmcnt(0)
             s_barrier''')
        for i in (8, 0, 1, 2, 3, 4, 5, 6, 7):
            a(f'ds_read_addtid_b32 v{R + i} offset:{MG + i * 256}')
        a(a2mm(SS, A2S, A2O, 2))
        a(f'''s_waitcnt lgkmcnt(8)
              v_add_f32 v{R + 8}, v{R + 8}, v{kp + 8}
              v_rcp_f32 v{R + 10}, v{R + 8}''')
        for i in range(4):
            a(f'''s_waitcnt lgkmcnt({6 - 2 * i})
                  v_pk_add_f32 {vr(R + 2 * i, 2)}, {vr(R + 2 * i, 2)}, {vr(kp + 2 * i, 2)}''')
        if kh:
            a('s_branch L_mg_j')
    a('L_mg_j:')
    for i in range(4):
        a(f'v_pk_mul_f32 {vr(R + 2 * i, 2)}, {vr(R + 2 * i, 2)}, {vr(R + 10, 2)} op_sel_hi:[1,0]')
    for i in range(4):
        a(f'v_cvt_pk_bf16_f32 v{OB + i}, v{R + 2 * i}, v{R + 2 * i + 1}')
    for i in range(4):
        a(f'v_dot2c_f32_bf16 v{R + 8}, v{OB + i}, v{OB + i}')
    a(a2mm(SS, A2S, A2O, 3))
    a(f'''s_nop 1
          v_cmp_ngt_f32 vcc, s71, v{R + 8}
          s_cbranch_vccnz L_fallback
          L_at_final:
          buffer_store_dwordx4 {vr(OB)}, v{L16}, s[16:19], s82 offen sc1''')
    stamp(a, 11)
    return flag_loads


def cold_paths(a, flag_loads):
    a(f'''L_at_fretry:
          s_mov_b32 s93, {SPIN}
          L_at_fretry2:''')
    for s in flag_loads:
        a(s)
    a(f'''s_waitcnt vmcnt(0)
          v_cmp_ne_u32 vcc, s58, v{A2E}
          v_cmp_ne_u32 s[4:5], s58, v{A2E + 1}
          v_cmp_ne_u32 s[6:7], s58, v{A2E + 2}
          v_cmp_ne_u32 s[62:63], s58, v{A2E + 3}
          s_or_b64 vcc, vcc, s[4:5]
          s_or_b64 s[6:7], s[6:7], s[62:63]
          s_or_b64 vcc, vcc, s[6:7]
          s_cbranch_vccz L_at_fok
          s_sub_u32 s93, s93, 1
          s_cbranch_scc0 L_at_fretry2
          s_branch L_at_fok''')
    a(f'''L_fallback:
          s_cmp_eq_u32 s79, 0
          s_cbranch_scc1 L_fb_q
          v_mov_b64 {vr(QA, 2)}, {vr(QB, 2)}
          v_mov_b64 {vr(QA + 2, 2)}, {vr(QB + 2, 2)}
          L_fb_q:
          v_mov_b32 v{SB}, 0xff800000
          s_mov_b32 s4, s88
          s_mov_b32 s5, 64
          L_fb_max:
          buffer_load_dwordx4 {vr(KF)}, v{L16}, s[16:19], s4 offen sc1
          s_waitcnt vmcnt(0)
          v_mfma_f32_32x32x16_bf16 {vr(SA, 16)}, {vr(KF)}, {vr(QA)}, 0
          s_nop 11''')
    for i in range(0, 16, 2):
        a(f'v_max3_f32 v{SB}, v{SB}, v{SA + i}, v{SA + i + 1}')
    a(f'''s_add_u32 s4, s4, 2048
          s_sub_u32 s5, s5, 1
          s_cmp_lg_u32 s5, 0
          s_cbranch_scc1 L_fb_max
          v_mov_b32 v{SB + 1}, v{SB}
          s_nop 1
          v_permlane32_swap_b32 v{SB}, v{SB + 1}
          v_max_f32 v{SB}, v{SB}, v{SB + 1}
          v_sub_f32 v{SB}, {f2u(-float(VLOG))}, v{SB}''')
    for i in range(1, 16):
        a(f'v_mov_b32 v{SB + i}, v{SB}')
    for i in range(16):
        a(f'v_mov_b32 v{OA + i}, 0')
    for i in range(8):
        a(f'v_mov_b32 v{V0 + i}, {ONEBF * 0x10001}')
    a(f'''s_mov_b32 s4, s88
          s_mov_b32 s5, 64
          s_mov_b32 s6, 0xffff
          s_mov_b32 s7, 0xffff
          L_fb_pv:
          buffer_load_dwordx4 {vr(KF)}, v{L16}, s[16:19], s4 offen sc1
          s_mov_b64 exec, s[6:7]
          buffer_load_dwordx4 {vr(V0)}, v{L16}, s[16:19], s4 offen offset:1024 sc1
          buffer_load_dwordx4 {vr(V1)}, v{L16}, s[16:19], s4 offen offset:1280 sc1
          s_mov_b64 exec, -1
          s_waitcnt vmcnt(0)
          v_mfma_f32_32x32x16_bf16 {vr(SA, 16)}, {vr(KF)}, {vr(QA)}, {vr(SB, 16)}
          s_nop 11''')
    for i in range(16):
        a(f'v_exp_f32 v{SA + i}, v{SA + i}')
    a(f'''s_nop 1
          v_smfmac_f32_32x32x32_bf16 {vr(OA, 16)}, {vr(V0)}, {vr(SA, 8)}, v{IDX}
          v_smfmac_f32_32x32x32_bf16 {vr(OA, 16)}, {vr(V1)}, {vr(SA + 8, 8)}, v{IDX}
          s_add_u32 s4, s4, 2048
          s_sub_u32 s5, s5, 1
          s_cmp_lg_u32 s5, 0
          s_cbranch_scc1 L_fb_pv
          s_nop 11
          v_rcp_f32 v{SB}, v{OA + 8}
          s_nop 0''')
    for i in range(8):
        a(f'v_mul_f32 v{OA + i}, v{SB}, v{OA + i}')
    for i in range(4):
        a(f'v_cvt_pk_bf16_f32 v{OB + i}, v{OA + 2 * i}, v{OA + 2 * i + 1}')
    for i in range(4):
        a(f'v_min_u32 v{OB + i}, -2, v{OB + i}')
    a('s_branch L_at_final')


def tail(a):
    OST, XP = 0x18000, 0x16000
    PA, XA3, XA4, SA0, CO, OSR, OUTA, VRA = 96, 97, 98, 100, 106, 109, 110, 111
    gather = [f'buffer_load_dwordx4 v{L16}, s[16:19], s70 offen offset:{i * 1024} sc1 lds' for i in range(4)]
    gp = OPT.get('gp', 2)
    a(f'''s_lshl_b32 s4, s3, 13
          v_add_u32 v64, s4, v{L16}
          s_mul_i32 s73, s76, s77
          s_lshl_b32 s4, s80, 15
          s_lshl_b32 s5, s3, 12
          s_add_u32 s70, s4, s5
          s_add_u32 s70, s70, {OF}
          s_add_u32 s5, s5, {OST}
          s_mov_b32 m0, s5
          v_add_u32 v{VRA}, s5, v{L16}''')
    calc = (f'''s_lshl_b32 s4, s3, 7
          s_add_u32 s4, s4, {XP}
          v_lshl_add_u32 v66, v{LN}, 2, s4
          v_lshrrev_b32 v67, 5, v{LN}
          v_and_b32 v71, 31, v{LN}
          s_lshl_b32 s6, s3, 9
          v_lshl_add_u32 v{PA}, v71, 4, s6
          v_lshl_add_u32 v{PA}, v67, 12, v{PA}   ; partial read address
          s_lshl_b32 s6, s3, 2
          v_lshl_add_u32 v73, v67, 1, s6         ; tl (even)
          v_lshlrev_b32 v{XA3}, 2, v73
          v_add_u32 v{XA3}, {XP}, v{XA3}
          v_lshlrev_b32 v{XA4}, 2, v71
          v_add_u32 v{XA4}, {XP + 1024}, v{XA4}
          s_lshl_b32 s4, s80, 5
          v_add_u32 v{OUTA}, s4, v71
          v_lshlrev_b32 v{OUTA}, 11, v{OUTA}
          v_lshl_add_u32 v{OUTA}, v67, 4, v{OUTA}   ; out offset
          s_lshl_b32 s4, s77, 5
          v_add_u32 v71, s4, v71           ; e
          v_lshl_add_u32 v73, v73, 1, s84  ; t0 ; t1 = t0 + 2
          v_cmp_eq_u32 s[74:75], 0, v73
          v_cmp_eq_u32 s[64:65], 0, v71
          v_sub_u32 v84, 0x800, v73
          v_mov_b32 v85, 0x400
          v_cndmask_b32 v85, v84, v85, s[74:75]   ; row2 of t0
          v_subrev_u32 v84, 2, v84                ; row2 of t1
          v_sub_u32 v86, 0x200, v71
          v_mov_b32 v87, 0x100
          v_cndmask_b32 v86, v86, v87, s[64:65]   ; col2
          v_lshlrev_b32 v87, 1, v71
          v_lshlrev_b32 v86, 1, v86
          v_lshl_add_u32 v{SA0}, v73, 11, v87
          v_lshl_add_u32 v{SA0 + 1}, v73, 11, v86
          v_lshl_add_u32 v{SA0 + 2}, v85, 11, v87
          v_lshl_add_u32 v{SA0 + 3}, v85, 11, v86
          v_lshl_add_u32 v{SA0 + 4}, v84, 11, v87
          v_lshl_add_u32 v{SA0 + 5}, v84, 11, v86
          s_cmp_eq_u32 s83, 0
          s_cselect_b64 vcc, -1, 0
          v_cndmask_b32 v{CO}, 0, v{T0}, vcc          ; cos correction
          v_cndmask_b32 v{CO + 1}, 0, v{T1}, vcc      ; column-256 correction
          v_cndmask_b32 v{CO + 2}, v{T0}, 0, vcc      ; sin correction
          s_or_b64 s[66:67], s[74:75], s[64:65]
          s_and_b64 s[68:69], s[74:75], s[64:65]
          s_mov_b32 s71, 4096
          v_lshrrev_b32 v65, 4, v{LN}      ; g
          v_and_b32 v88, 15, v{LN}
          v_lshlrev_b32 v88, 4, v88
          v_lshl_add_u32 v{OSR}, v65, 9, v88
          v_add_u32 v{OSR}, {OST}, v{OSR}  ; staging read address
          s_lshl_b32 s4, s81, 8
          s_lshl_b32 s5, s3, 5
          s_add_u32 s72, s4, s5
          s_add_u32 s72, s72, 1024
          s_mov_b32 s5, {SPIN}''').split('\n')
    per = (len(calc) + 6) // 7
    for q in range(8):
        a(f'ds_write_b128 v64, {vr(CC + 4 * q)} offset:{q * 1024}')
        if q == 0:
            a('''s_cmp_eq_u32 s73, 0
                 s_cbranch_scc0 L_a2_nox''')
            for ks in range(4):
                a(a2mm(X3, A2O, A2C, ks))
                a(a2mm(X4, A2S, A2E, ks))
            a('L_a2_nox:')
        for x in calc[q * per:(q + 1) * per]:
            a(x)
    a(f'''s_cmp_eq_u32 s73, 0
          s_cbranch_scc0 L_a2_nox2
          s_mov_b32 exec_hi, 0
          ds_write_b32 v66, v{X3}
          ds_write_b32 v66, v{X4} offset:1024
          s_mov_b32 exec_hi, -1
          L_a2_nox2:''')
    a('s_waitcnt lgkmcnt(0)')
    if gp == 2:
        for g in gather:
            a(g)
    a('s_barrier')
    stamp(a, 12)
    for w in range(8):
        a(f'ds_read_b128 {vr(128 + 4 * w)}, v{PA} offset:{w * 8192}')
    if gp == 3:
        for g in gather:
            a(g)
    a('s_cbranch_scc0 L_a2_nox3')
    for w in range(8):
        a(f'''ds_read_b64 {vr(160 + 2 * w, 2)}, v{XA3} offset:{w * 128}
              ds_read_b32 v{176 + w}, v{XA4} offset:{w * 128}''')
    a('L_a2_nox3:')
    V = []
    for step in (4, 2, 1):
        for w in range(step):
            for i in (0, 2):
                if OPT.get('nopk'):
                    V.append('\n'.join(f'v_add_f32 v{128 + 4 * w + i + k}, v{128 + 4 * w + i + k}, v{128 + 4 * (w + step) + i + k}' for k in range(2)))
                else:
                    V.append(f'v_pk_add_f32 {vr(128 + 4 * w + i, 2)}, {vr(128 + 4 * w + i, 2)}, {vr(128 + 4 * (w + step) + i, 2)}')
    X = ['s_cbranch_scc0 L_a2_nox4']
    for step in (4, 2, 1):
        for w in range(step):
            X += [f'v_pk_add_f32 {vr(160 + 2 * w, 2)}, {vr(160 + 2 * w, 2)}, {vr(160 + 2 * (w + step), 2)}',
                  f'v_add_f32 v{176 + w}, v{176 + w}, v{176 + w + step}']
    X += [f'v_add_f32 v160, v160, v{CO + 1}', f'v_sub_f32 v161, v161, v{CO + 1}', f'v_add_f32 v176, v176, v{CO}', 'L_a2_nox4:', 's_nop 0']
    V.append('\n'.join(X))
    V += f'''v_permlane32_swap_b32 v128, v130
         v_permlane32_swap_b32 v129, v131
         v_add_f32 v128, v128, v{CO}
         v_sub_f32 v129, v129, v{CO}
         v_add_f32 v177, v130, v{CO + 1}
         v_sub_f32 v130, v130, v{CO + 2}
         v_add_f32 v131, v131, v{CO + 2}
         v_cndmask_b32 v130, v130, 0, s[66:67]
         v_cndmask_b32 v131, v131, 0, s[64:65]
         v_sub_f32 v132, v128, v130
         v_sub_f32 v134, v129, v131
         v_add_f32 v133, v128, v130
         v_add_f32 v135, v129, v131
         v_cvt_pk_bf16_f32 v144, v132, v134
         buffer_store_short v144, v{SA0}, s[20:23], 0 offen
         v_cndmask_b32 v136, v133, v160, s[64:65]
         buffer_store_short_d16_hi v144, v{SA0}, s[20:23], s71 offen
         v_cndmask_b32 v139, v135, v161, s[64:65]
         v_cvt_pk_bf16_f32 v145, v136, v139
         v_cndmask_b32 v137, v133, v176, s[74:75]
         buffer_store_short v145, v{SA0 + 1}, s[20:23], 0 offen
         v_cvt_pk_bf16_f32 v146, v137, v135
         buffer_store_short_d16_hi v145, v{SA0 + 1}, s[20:23], s71 offen
         v_cndmask_b32 v138, v132, v160, s[64:65]
         buffer_store_short v146, v{SA0 + 2}, s[20:23], 0 offen
         v_cndmask_b32 v138, v138, v176, s[74:75]
         buffer_store_short_d16_hi v146, v{SA0 + 4}, s[20:23], 0 offen
         v_cndmask_b32 v138, v138, v177, s[68:69]
         v_cndmask_b32 v140, v134, v161, s[64:65]
         v_cvt_pk_bf16_f32 v147, v138, v140
         buffer_store_short v147, v{SA0 + 3}, s[20:23], 0 offen
         buffer_store_short_d16_hi v147, v{SA0 + 5}, s[20:23], 0 offen'''.split('\n')
    a('s_waitcnt lgkmcnt(0)')
    for x in V:
        a(x)
    stamp(a, 13)
    a('''s_waitcnt vmcnt(8)
         L_op_chk:''')
    for i in range(4):
        a(f'ds_read_b128 {vr(48 + 4 * i)}, v{VRA} offset:{i * 1024}')
    a('''s_waitcnt lgkmcnt(3)
         v_max3_u32 v84, v48, v49, v50
         s_waitcnt lgkmcnt(2)
         v_max3_u32 v84, v84, v51, v52
         v_max3_u32 v84, v84, v53, v54
         s_waitcnt lgkmcnt(1)
         v_max3_u32 v84, v84, v55, v56
         v_max3_u32 v84, v84, v57, v58
         s_waitcnt lgkmcnt(0)
         v_max3_u32 v84, v84, v59, v60
         v_max3_u32 v84, v84, v61, v62
         v_max_u32 v84, v84, v63
         v_cmp_eq_u32 vcc, -1, v84
         s_cbranch_vccnz L_op_retry
         L_op_ok:
         s_barrier''')
    stamp(a, 14)
    NB = 12
    rd = lambda n: a(f'ds_read_b128 {vr(4 * (n % NB))}, v{OSR} offset:{(n >> 1) * 2048 + (n & 1) * 256}')
    for n in range(NB - 2):
        rd(n)
    for n in range(32):
        nxt = n + NB - 2
        if nxt < 32:
            rd(nxt)
        out = min(31, nxt) - n
        acc = vr(72 + 4 * (n & 1))
        a(f'''s_waitcnt lgkmcnt({out})
              v_mfma_f32_16x16x32_bf16 {acc}, {vr(WO + 4 * (n >> 1))}, {vr(4 * (n % NB))}, {acc if n >= 2 else 0}''')
    a(f'''s_nop 7
          v_cvt_pk_bf16_f32 v80, v72, v73
          v_cvt_pk_bf16_f32 v81, v74, v75
          v_cvt_pk_bf16_f32 v82, v76, v77
          v_cvt_pk_bf16_f32 v83, v78, v79
          s_nop 1
          v_permlane16_swap_b32 v80, v82
          v_permlane16_swap_b32 v81, v83
          buffer_store_dwordx4 v[80:83], v{OUTA}, s[20:23], s72 offen''')
    stamp(a, 15)
    if OPT['stamps']:
        a('s_waitcnt vmcnt(0)')
    stamp(a, 16)
    stamp_dump(a)
    return gather


def build():
    a = A()
    prologue(a)
    a('''s_cmp_ge_u32 s3, 4
         s_cbranch_scc0 L_p1_compute''')
    p1_loader(a)
    a('''s_branch L_p1_join
         L_p1_compute:''')
    p1_compute(a)
    stamp(a, 25)
    if OPT.get('gate', 1) == 1:
        a('s_barrier')
    attn_setup(a)
    if OPT.get('gate') == 2:
        a('s_waitcnt vmcnt(0)\ns_barrier')
    publish1(a)
    a('L_p1_join:')
    fl = attention(a)
    gather = tail(a)
    a('''L_end:
         s_endpgm
         L_op_retry:
         s_sub_u32 s5, s5, 1
         s_cbranch_scc1 L_op_ok''')
    for g in gather:
        a(g)
    a('s_waitcnt vmcnt(0)\ns_branch L_op_chk')
    cold_paths(a, fl)
    a('L_code_end:')
    a('s_endpgm')
    return a.text()


def main(path):
    hdr = ''.join(l for l in open(f'cdna_kernels/{NAME}.s.ref') if l.startswith(';') and '@launch' not in l)
    out = hdr + f'; @launch grid=(256,1,1) block=(512,1,1) lds={LDS_BYTES}\n'
    out += f'''.amdgcn_target "amdgcn-amd-amdhsa--gfx950"
.text
.globl {NAME}_kernel
.p2align 8
.type {NAME}_kernel,@function
{NAME}_kernel:
'''
    out += build()
    out += f'''.section .rodata,"a"
.p2align 6
.amdhsa_kernel {NAME}_kernel
  .amdhsa_next_free_vgpr 256
  .amdhsa_next_free_sgpr {98 if OPT['stamps'] else 96}
  .amdhsa_accum_offset 256
  .amdhsa_group_segment_fixed_size 0
  .amdhsa_kernarg_size 88
  .amdhsa_user_sgpr_count 2
  .amdhsa_user_sgpr_kernarg_segment_ptr 1
  .amdhsa_system_sgpr_workgroup_id_x 1
.end_amdhsa_kernel
'''
    open(path, 'w').write(out)


if __name__ == '__main__':
    for x in sys.argv[1:]:
        if x.startswith('--'):
            k, _, v = x[2:].partition('=')
            OPT[k] = (int(v, 0) if v[0].isdigit() else v) if v else True
    args = [x for x in sys.argv[1:] if not x.startswith('--')]
    main(args[0] if args else f'cdna_kernels/{NAME}.s')
```

```python
import math, struct, sys

NAME = 'concat_heads__spectral_fnet__softmax_full_mha__prompt'
QF, KV, EO, OF, WOF, RR, FLAGS, EPOCH, STAMP, WS_SIZE = (
    0, 0x200000, 0x600000, 0x700000, 0x900000, 0x980000, 0x990000, 0x9A0000, 0x9C0000, 0xB00000)
PFLAGS = 0xA00000
OFFS = 100.0
VLOG = 40
CSCALE = 0.25 * math.log2(math.e)
ONEBF = (127 + VLOG) << 7
SPIN = 400000
OPT = dict(stamps=False, cyc=False)


def f2u(x):
    return struct.unpack('<I', struct.pack('<f', x))[0]


class A:
    def __init__(self):
        self.l = []

    def __call__(self, s):
        for ln in s.strip('\n').split('\n'):
            ln = ln.strip()
            if not ln:
                continue
            self.l.append(ln if ln.endswith(':') or ln.startswith('.') else '    ' + ln)

    def text(self):
        return '\n'.join(self.l) + '\n'


def vr(b, n=4):
    return f'v[{b}:{b + n - 1}]'


def srd(a, d, lo, size):
    a(f'''s_mov_b32 s{d}, s{lo}
          s_mov_b32 s{d + 1}, s{lo + 1}
          s_mov_b32 s{d + 2}, {size}
          s_mov_b32 s{d + 3}, 0x20000''')


STV = 126


def stamp(a, slot):
    if not OPT['stamps']:
        return
    a(f'''{'s_memtime' if OPT['cyc'] else 's_memrealtime'} s[94:95]
          s_waitcnt lgkmcnt(0)
          v_writelane_b32 v{STV}, s94, {slot}''')
    if slot == 0:
        a(f'v_writelane_b32 v{STV}, s96, 30')


def stamp_dump(a):
    if not OPT['stamps']:
        return
    a(f'''v_mbcnt_lo_u32_b32 v{STV + 1}, -1, 0
          v_mbcnt_hi_u32_b32 v{STV + 1}, -1, v{STV + 1}
          v_lshlrev_b32 v{STV + 1}, 2, v{STV + 1}
          s_lshl_b32 s92, s2, 3
          s_add_u32 s92, s92, s3
          s_lshl_b32 s92, s92, 7
          s_add_u32 s92, s92, {STAMP}
          s_mov_b32 exec_hi, 0
          buffer_store_dword v{STV}, v{STV + 1}, s[16:19], s92 offen sc1
          s_mov_b64 exec, -1''')


SA, SB, NMA, NMB, OA, OB, QA, QB, KF, V0, V1 = 0, 16, 32, 48, 64, 80, 96, 100, 104, 108, 112
IDX, KA, VA, VINC, L16, WSA, LN, T0, T1, T2 = 116, 117, 118, 119, 120, 121, 122, 123, 124, 125
A2C, A2S, A2E, A2O, WO = 128, 144, 160, 176, 192
ONES, MRG, WST, CNT = 0x20000, 0x22800, 0x27000, 0x27800
QST = MRG
LDS_BYTES = 0x28000


def prologue(a):
    if OPT['stamps']:
        a(f"{'s_memtime' if OPT['cyc'] else 's_memrealtime'} s[96:97]")
    a(f'''s_cmp_ge_u32 s2, 256
          s_cbranch_scc1 L_end
          s_load_dwordx16 s[36:51], s[0:1], 0
          s_load_dwordx4 s[52:55], s[0:1], 64
          s_load_dwordx2 s[56:57], s[0:1], 80
          v_lshrrev_b32 v1, 6, v0
          v_and_b32 v0, 63, v0
          v_readfirstlane_b32 s3, v1
          s_and_b32 s60, s2, 7
          s_lshr_b32 s61, s2, 3
          s_cmp_eq_u32 s3, 0
          s_cbranch_scc0 L_nopf
          v_min_u32 v22, 5, v0
          v_lshl_add_u32 v22, v22, 5, s61
          v_lshlrev_b32 v22, 7, v22
          v_min_u32 v22, L_code_end - L_pc - 4, v22
          s_getpc_b64 s[6:7]
          L_pc:
          global_load_dword v23, v22, s[6:7]
          L_nopf:
          ; phase-1 roles: s62 kind, s63 rb, s64 cb, s65 rot
          s_lshr_b32 s62, s60, 1
          s_and_b32 s63, s60, 1
          s_lshl_b32 s63, s63, 3
          s_and_b32 s4, s61, 7
          s_add_u32 s63, s63, s4
          s_lshr_b32 s64, s61, 3
          s_lshl_b32 s65, s64, {1 if OPT.get('rot', 3) == 7 else 0}
          s_add_u32 s65, s65, s4
          s_cmp_eq_u32 s62, 3
          s_cselect_b32 s66, 1, 3
          s_lshl_b32 s14, s66, 19
          s_lshl_b32 s66, s66, 10          ; W pitch
          s_lshl_b32 s6, s62, 10
          s_lshl_b32 s7, s64, 8
          s_add_u32 s6, s6, s7
          s_and_b32 s7, s7, 256
          s_cmp_eq_u32 s62, 3
          s_cselect_b32 s67, s7, s6
          s_mov_b32 s10, 0x200000
          s_mov_b32 s11, 0x20000
          s_mov_b32 s15, 0x20000''')


def roles(a):
    a(f'''v_mov_b32 v{LN}, v0
          v_lshlrev_b32 v{L16}, 4, v0
          s_and_b32 s4, s61, 7
          s_lshl_b32 s76, s60, 2
          s_and_b32 s5, s61, 3
          s_add_u32 s76, s76, s5           ; head
          s_lshr_b32 s77, s61, 2           ; j
          s_and_b32 s78, s3, 3             ; q pair
          s_lshr_b32 s79, s3, 2
          s_lshl_b32 s80, s60, 3
          s_add_u32 s80, s80, s4           ; qt
          s_mov_b32 s81, s64               ; nb''')


def srds(a):
    a('''s_waitcnt lgkmcnt(0)
         s_cmp_lt_u32 s64, 2
         s_cselect_b32 s4, s42, s44
         s_cselect_b32 s5, s43, s45
         s_cmp_eq_u32 s62, 3
         s_cselect_b32 s8, s36, s46
         s_cselect_b32 s9, s37, s47
         s_cselect_b32 s12, s4, s48
         s_cselect_b32 s13, s5, s49''')


def srds_late(a):
    srd(a, 16, 56, WS_SIZE)
    srd(a, 32, 50, 0x80000)


def srds_attn(a):
    srd(a, 20, 52, 0x400000)
    srd(a, 24, 38, 0x800000)
    srd(a, 28, 40, 0x800000)


def o_offset(a):
    a(f'''s_lshl_b32 s4, s77, 3
          s_lshl_b32 s5, s78, 1
          s_add_u32 s4, s4, s5
          s_add_u32 s4, s4, s79
          s_lshl_b32 s4, s4, 15
          s_lshl_b32 s5, s76, 10
          s_add_u32 s4, s4, s5
          s_add_u32 s82, s4, {OF}''')


def epoch_load(a):
    a(f'''s_add_u32 s4, s56, {EPOCH}
          s_addc_u32 s5, s57, 0
          s_load_dword s58, s[4:5], 0''')


def p1_loader(a):
    a('''s_sub_u32 s68, s3, 4             ; lw
         v_lshrrev_b32 v1, 3, v0
         v_and_b32 v2, 7, v0
         v_lshrrev_b32 v3, 4, v0
         v_xor_b32 v2, v2, v3
         v_lshlrev_b32 v2, 4, v2
         v_xor_b32 v9, 64, v2
         s_cmp_eq_u32 s62, 3
         s_cbranch_scc1 L_p1_rowsA
         s_lshl_b32 s4, s63, 7
         s_lshl_b32 s5, s68, 5
         s_add_u32 s4, s4, s5
         v_add_u32 v1, s4, v1
         v_lshl_add_u32 v4, v1, 10, v2
         v_lshl_add_u32 v5, v1, 10, v9
         v_add_u32 v5, 0x1c00, v5
         v_add_u32 v6, 0x3800, v4
         v_add_u32 v7, 0x3800, v5
         L_p1_rowsdone:
         v_and_b32 v2, 15, v0
         v_lshlrev_b32 v9, 2, v3
         v_xor_b32 v2, v2, v9
         v_lshlrev_b32 v2, 4, v2
         s_lshl_b32 s4, s68, 4
         v_add_u32 v3, s4, v3
         v_mul_lo_u32 v3, v3, s66
         v_add3_u32 v8, v3, v2, s67
         v_xor_b32 v9, 32, v8
         s_lshl_b32 s72, s66, 2
         s_sub_u32 s72, s72, 1024
         s_lshl_b32 s73, s66, 6           ; 64*pitch
         s_lshl_b32 s74, s68, 12''')
    srds(a)

    def issue(stage):
        slot = stage & 3
        rm = OPT.get('rot', 3)
        if OPT.get('stag') and 1 <= stage <= 4:
            a(f'''s_cmp_ge_u32 s59, {stage}
                  s_addc_u32 s4, s65, {stage - 1}
                  s_and_b32 s4, s4, 3
                  s_cmp_eq_u32 s59, {stage}
                  s_cselect_b32 s4, s75, s4''')
        else:
            if stage:
                a(f's_add_u32 s4, s65, {stage}')
            a(f's_and_b32 s4, s{4 if stage else 65}, {rm}')
            if stage & ~rm:
                a(f's_or_b32 s4, s4, {stage & ~rm}')
        a(f'''s_add_u32 m0, s74, {slot * 32768}
              s_lshl_b32 s5, s4, 7''')
        for i in range(4):
            a(f'buffer_load_dwordx4 v{4 + i}, s[8:11], s5 offen offset:{i * 1024} lds')
        a(f'''s_add_u32 m0, s74, {slot * 32768 + 16384}
              s_mul_i32 s6, s4, s73''')
        for i in range(4):
            a(f'buffer_load_dwordx4 v{8 + (i >> 1)}, s[12:15], s6 offen offset:{i * 1024} lds')
            if i < 3:
                a('s_add_u32 s6, s6, s72')

    stamp(a, 0)
    issue(0)
    a('''s_branch L_p1_rowsskip
         L_p1_rowsA:
         s_lshl_b32 s4, s63, 5
         s_lshr_b32 s5, s68, 1
         s_lshl_b32 s5, s5, 4
         s_add_u32 s4, s4, s5
         v_add_u32 v1, s4, v1
         s_and_b32 s5, s68, 1
         s_lshl_b32 s6, s5, 10            ; B
         s_lshl_b32 s7, s5, 9
         v_cmp_eq_u32 vcc, 0, v1
         v_mov_b32 v10, s7
         v_add_u32 v11, s6, v1            ; B + s'
         v_cndmask_b32 v10, 0, v10, vcc
         s_add_u32 s6, s6, 1024
         v_sub_u32 v12, s6, v1            ; B + 1024 - s'
         v_add_u32 v13, 7, v11
         v_subrev_u32 v14, 11, v12
         v_sub_u32 v11, v11, v10
         v_sub_u32 v12, v12, v10
         v_subrev_u32 v12, 2, v12
         v_lshl_add_u32 v4, v11, 10, v2
         v_lshl_add_u32 v5, v13, 10, v9
         v_lshl_add_u32 v6, v12, 10, v2
         v_lshl_add_u32 v7, v14, 10, v9
         s_branch L_p1_rowsdone
         L_p1_rowsskip:''')
    roles(a)
    srds_late(a)
    epoch_load(a)
    o_offset(a)
    a(f'''v_and_b32 v1, 11, v0
          v_cmp_eq_u32 vcc, 0, v1
          v_mov_b32 v2, {ONEBF * 0x10001}
          s_mul_i32 s4, s68, 2560
          v_cndmask_b32 v16, 0, v2, vcc
          v_mov_b32 v17, v16
          v_mov_b32 v18, v16
          v_mov_b32 v19, v16
          s_add_u32 s4, s4, {ONES}
          v_add_u32 v1, s4, v{L16}
          ds_write_b128 v1, v[16:19]
          ds_write_b128 v1, v[16:19] offset:1024
          ds_write_b128 v1, v[16:19] offset:1536
          v_mov_b32 v1, {CNT}
          v_mov_b32 v2, 0
          ds_write_b32 v1, v2''')
    attn_setup(a)
    zero_o(a)
    if OPT.get('stag'):
        a(f'''s_lshr_b32 s4, s61, {OPT.get('stsh', 0)}
              s_and_b32 s4, s4, 3
              s_lshl_b32 s4, s4, 2
              s_lshr_b32 s59, {OPT['stag']}, s4
              s_and_b32 s59, s59, 7
              s_and_b32 s75, s65, 3
              s_or_b32 s75, s75, 4''')
    issue(1)
    stamp(a, 1)
    for c in range(8):
        if c == 3:
            stamp(a, 28)
        a(f's_waitcnt vmcnt({[8, 8, 8, 8, 8, 8, 8, 0][c]})')
        if c in (0, 3):
            stamp(a, 2 if c == 0 else 29)
        a('s_barrier')
        stamp(a, 17 + c)
        if c <= 5:
            issue(c + 2)
    a('''s_waitcnt lgkmcnt(0)
         s_barrier''')
    a('s_add_u32 s58, s58, 1            ; nonce')
    stamp(a, 25)
    a(f'''s_lshr_b32 s4, s76, 3
          s_lshl_b32 s4, s4, 5
          s_add_u32 s4, s4, s61
          s_lshl_b32 s4, s4, 11
          s_add_u32 s4, s4, {PFLAGS}
          s_add_u32 s8, s56, s4
          s_addc_u32 s9, s57, 0
          s_mov_b32 s6, 1024
          s_lshl_b32 s70, s76, 16
          s_lshl_b32 s71, s77, 13
          s_add_u32 s70, s70, s71
          s_mov_b32 s71, {QST}
          s_cmp_eq_u32 s68, 1
          s_cselect_b32 s6, 0, s6
          s_cselect_b32 s70, s88, s70
          s_cselect_b32 s71, 0, s71
          s_cmp_eq_u32 s68, 2
          s_cselect_b32 s6, 1160, s6
          s_cselect_b32 s70, s89, s70
          s_cselect_b32 s71, 0x10000, s71
          s_mov_b32 s5, {SPIN}
          s_mov_b32 s59, s58
          s_mov_b32 m0, s71
          s_add_u32 s72, s70, 0x1000
          s_cmp_eq_u32 s68, 3
          s_barrier
          s_cbranch_scc0 L_s1_poll
          L_s1_poll7:                      ; wave 7: the other K, V blocks''')
    regs = [36, 40, 44, 48, 64, 72, 12]
    for i, r in enumerate(regs):
        a(f's_load_dwordx4 s[{r}:{r + 3}], s[8:9], {128 * (i + 1)} glc')
    a('''s_sub_u32 s5, s5, 1
         s_cbranch_scc1 L_p1_join
         s_mov_b64 s[6:7], 0
         s_waitcnt lgkmcnt(0)''')
    for r in regs:
        for h in (0, 2):
            a(f'''s_xor_b64 s[10:11], s[{r + h}:{r + h + 1}], s[58:59]
                  s_or_b64 s[6:7], s[6:7], s[10:11]''')
    a('''s_cbranch_scc1 L_s1_poll7
         s_branch L_p1_join
         L_s1_poll:
         s_load_dwordx2 s[10:11], s[8:9], s6 glc
         s_sub_u32 s5, s5, 1
         s_cbranch_scc1 L_s1_pdone
         s_waitcnt lgkmcnt(0)
         s_cmp_eq_u64 s[10:11], s[58:59]
         s_cbranch_scc0 L_s1_poll
         L_s1_pdone:''')
    stamp(a, 26)
    for i in range(4):
        a(f'buffer_load_dwordx4 v{L16}, s[16:19], s70 offen offset:{i * 1024} sc1 lds')
    a('''s_add_u32 m0, s71, 0x1000
         s_nop 0''')
    for i in range(4):
        a(f'buffer_load_dwordx4 v{L16}, s[16:19], s72 offen offset:{i * 1024} sc1 lds')
    a('s_waitcnt vmcnt(0)')


def p1_compute(a):
    roles(a)
    a('''s_and_b32 s68, s3, 1             ; wr
         s_lshr_b32 s69, s3, 1            ; wc
         v_and_b32 v1, 15, v0
         v_lshrrev_b32 v2, 4, v0          ; g
         v_lshrrev_b32 v3, 1, v1
         v_xor_b32 v3, v3, v2
         v_lshlrev_b32 v3, 4, v3
         v_lshl_add_u32 v3, v1, 7, v3
         s_lshl_b32 s4, s68, 13
         v_add_u32 v4, s4, v3
         v_xor_b32 v5, 64, v4
         v_bfe_u32 v10, v0, 2, 2          ; r
         v_lshl_add_u32 v11, v2, 3, v10   ; 8g + r
         v_lshlrev_b32 v11, 8, v11
         v_lshlrev_b32 v10, 1, v10
         v_and_b32 v12, 1, v2
         v_or_b32 v10, v10, v12           ; z
         s_lshl_b32 s4, s69, 2
         v_xor_b32 v10, s4, v10
         v_lshl_add_u32 v11, v10, 5, v11
         v_and_b32 v10, 3, v0
         v_lshl_add_u32 v11, v10, 3, v11
         v_add_u32 v6, 16384, v11
         v_xor_b32 v7, 32, v6
         v_xor_b32 v8, 64, v6
         v_xor_b32 v9, 96, v6''')
    for i in range(32):
        a(f'v_mov_b64 {vr(128 + 2 * i, 2)}, 0')
    o_offset(a)
    a('s_waitcnt lgkmcnt(0)')
    stamp(a, 0)
    epoch_load(a)
    srds_late(a)
    if OPT.get('warm', 1):
        a(f'''s_cmp_eq_u32 s3, 1
              s_cbranch_scc0 L_p1_nowarm
              s_lshr_b32 s4, s76, 3
              s_lshl_b32 s4, s4, 5
              s_add_u32 s4, s4, s61
              s_lshl_b32 s4, s4, 11
              s_add_u32 s4, s4, {PFLAGS}
              v_lshlrev_b32 v1, 7, v0
              v_mov_b32 v2, 0
              s_mov_b64 exec, 0x3ff
              buffer_atomic_add v2, v1, s[16:19], s4 offen sc1
              s_mov_b64 exec, -1
              L_p1_nowarm:''')

    def rset(st):
        return 32 + 32 * st

    def reads(st, slot, ks):
        b = rset(st)
        L = []
        for i in range(4):
            L.append(f'ds_read_b128 {vr(b + 4 * i)}, v{4 + ks} offset:{slot * 32768 + i * 2048}')
            L.append(f'ds_read_b64_tr_b16 {vr(b + 16 + 4 * i, 2)}, v{6 + i} offset:{slot * 32768 + ks * 8192}')
            L.append(f'ds_read_b64_tr_b16 {vr(b + 18 + 4 * i, 2)}, v{6 + i} offset:{slot * 32768 + ks * 8192 + 1024}')
        return L

    def step(st, T, rd, extra=(), patch=False):
        b = rset(st)
        rd = list(rd)
        extra = list(extra)
        order = [(rt, ct) for ct in ((1, 2, 3, 0) if patch else range(4)) for rt in range(4)]
        for n, (rt, ct) in enumerate(order):
            acc = vr(128 + 16 * rt + 4 * ct)
            x, w = vr(b + 4 * rt), vr(b + 16 + 4 * ct)
            a(f'v_mfma_f32_16x16x32_bf16 {acc}, {w if T else x}, {x if T else w}, {acc}')
            for _ in range(2):
                if rd:
                    a(rd.pop(0))
            if patch and n < 4:
                a(f'v_cndmask_b32 v{b + 16 + n}, v{b + 16 + n}, v14, s[54:55]')
            if not rd and n >= 7 and extra:
                a(extra.pop(0))
        a('s_waitcnt lgkmcnt(0)')

    def mfma(st, T, rt, ct):
        b = rset(st)
        acc = vr(128 + 16 * rt + 4 * ct)
        x, w = vr(b + 4 * rt), vr(b + 16 + 4 * ct)
        a(f'v_mfma_f32_16x16x32_bf16 {acc}, {w if T else x}, {x if T else w}, {acc}')

    def epi(ct, pk):
        L = []
        for rp in range(2):
            d = 192 + 4 * (2 * ct + rp)
            for u in range(2):
                src = 128 + 16 * (2 * rp + u) + 4 * ct
                if pk:
                    L += [f'v_pk_mul_f32 {vr(src + i, 2)}, {vr(src + i, 2)}, s[52:53]' for i in (0, 2)]
                else:
                    L += [f'v_mul_f32 v{src + i}, s52, v{src + i}' for i in range(4)]
            for i in range(2):
                for u in range(2):
                    src = 128 + 16 * (2 * rp + u) + 4 * ct
                    L.append(f'v_cvt_pk_bf16_f32 v{d + 2 * u + i}, v{src + 2 * i}, v{src + 2 * i + 1}')
            L += [f'v_permlane16_swap_b32 v{d}, v{d + 2}',
                  f's_nop 0\nv_permlane16_swap_b32 v{d + 1}, v{d + 3}',
                  f'buffer_store_dwordx4 {vr(d)}, v{12 + rp}, s[16:19], s73 offen sc1' + ('\ns_add_u32 s73, s73, s74' if rp and ct < 3 else '')]
        return L

    def loop(T, tag):
        stamp(a, 2)
        a('s_barrier')
        stamp(a, 17)
        for r in reads(0, 0, 0):
            a(r)
        a(f'''s_waitcnt lgkmcnt(0)
              .p2align 3
              L_p1_loop{tag}:''')
        P = tag == 'A'
        step(0, T, reads(1, 0, 1), [], P)
        a('s_barrier')
        step(1, T, reads(0, 1, 0), [] if P else ['s_sub_u32 s70, s70, 1'], P)
        if not P:
            a(f's_cbranch_scc1 L_p1_last{tag}')
        step(0, T, reads(1, 1, 1), [f'v_xor_b32 v{r}, 0x10000, v{r}' for r in range(4, 10)], P)
        a('s_barrier')
        step(1, T, reads(0, 0, 0), ['s_sub_u32 s70, s70, 1'] if P else [], P)
        if P:
            a('s_cbranch_scc0 L_p1_loopA')
            stamp(a, 3)
            return
        a(f's_branch L_p1_loop{tag}')
        a(f'L_p1_last{tag}:')
        rd = reads(1, 1, 1)
        for ct in range(2):
            for rt in range(4):
                mfma(0, T, rt, ct)
                for _ in range(3):
                    if rd:
                        a(rd.pop(0))
        a('''s_waitcnt lgkmcnt(0)
             s_barrier''')
        seq = [(1, 0), (1, 1), (0, 2), (1, 2), (0, 3), (1, 3)]
        pend, ready = [], {1: 0, 2: 1, 4: 2}
        PER = OPT.get('eper', 2)
        for k, (st, ct) in enumerate(seq):
            for rt in range(4):
                mfma(st, T, rt, ct)
                if rt == 1 and k in ready:
                    if not pend:
                        a('s_nop 3')
                    pend += epi(ready[k], False)
                for _ in range(PER):
                    if pend:
                        a(pend.pop(0))
        stamp(a, 3)
        n = len(pend)
        for x in pend:
            a(x)
        if n < 8:
            a(f's_nop {7 - n}')
        for x in epi(3, True):
            a(x)
        a('s_barrier')

    attn_setup(a)
    a('''s_cmp_eq_u32 s62, 3
         s_cbranch_scc1 L_p1_A''')
    a(f'''s_cmp_eq_u32 s62, 2
          s_cselect_b32 s52, {f2u(2.0 ** VLOG)}, 1.0
          s_cselect_b32 s73, 1024, 0
          s_cselect_b32 s7, 12, 0
          s_add_u32 s73, s73, {KV}
          s_cmp_eq_u32 s62, 0
          s_cselect_b32 s52, {f2u(CSCALE)}, s52
          s_cselect_b32 s71, 16, 17
          s_cselect_b32 s72, 10, 11
          s_cselect_b32 s73, {QF}, s73
          s_mov_b32 s53, s52
          s_lshl_b32 s4, s64, 3
          s_lshl_b32 s5, s69, 2
          s_add_u32 s4, s4, s5             ; head0
          s_lshl_b32 s4, s4, s71
          s_lshl_b32 s5, s63, 2
          s_lshl_b32 s6, s68, 1
          s_add_u32 s5, s5, s6             ; tile0
          s_lshl_b32 s5, s5, s72
          s_add_u32 s73, s73, s4
          s_add_u32 s73, s73, s5
          s_lshl_b32 s74, 1, s71
          s_lshl_b32 s75, 1, s72
          v_lshrrev_b32 v1, 1, v0
          v_xor_b32 v1, v1, v0
          v_and_b32 v1, 4, v1
          v_mul_u32_u24 v1, 3, v1
          v_and_b32 v1, s7, v1
          v_xor_b32 v1, v1, v0
          v_lshlrev_b32 v12, 4, v1
          v_add_u32 v13, s75, v12
          s_mov_b32 s70, 3
          s_setprio {OPT.get('cprio', 1)}
          s_cmp_eq_u32 s62, 2
          s_cbranch_scc1 L_p1_N''')
    loop(True, 'T')
    a('''s_branch L_p1_cdone
         L_p1_N:''')
    loop(False, 'N')
    a('''s_branch L_p1_cdone
         L_p1_A:''')
    a(f'''v_lshrrev_b32 v1, 2, v0
          v_and_b32 v2, 3, v0
          v_lshlrev_b32 v3, 4, v2
          v_lshl_add_u32 v15, v1, 10, v3
          v_lshrrev_b32 v3, 4, v0
          v_bfe_u32 v10, v0, 2, 2
          v_lshl_add_u32 v3, v3, 3, v10
          v_lshlrev_b32 v3, 6, v3
          v_lshl_add_u32 v3, v2, 3, v3
          s_lshl_b32 s71, s3, 11
          s_add_u32 s71, s71, {QST}
          v_add_u32 v20, s71, v3
          s_lshl_b32 s6, s64, 2
          s_add_u32 s6, s6, s3
          s_lshl_b32 s4, s63, 15
          s_lshl_b32 s5, s6, 6
          s_add_u32 s72, s4, s5
          s_mov_b32 m0, s71
          s_add_u32 s73, s72, 0x3c00
          buffer_load_dwordx4 v15, s[32:35], s72 offen lds
          buffer_load_dwordx4 v15, s[32:35], s73 offen offset:1024 lds
          s_lshl_b32 s6, s6, 15
          s_lshl_b32 s70, s63, 10
          s_add_u32 s70, s70, s6
          s_add_u32 s92, s70, {WOF}        ; destination
          s_lshl_b32 s4, s64, 1
          s_add_u32 s4, s4, s69
          s_cmp_eq_u32 s4, 4
          s_cselect_b32 s54, 0x10001, 0
          s_mov_b32 s55, s54
          v_mov_b32 v14, 0xbf803f80
          s_mov_b32 s70, 3''')
    loop(False, 'A')
    a(f'''s_waitcnt vmcnt(0)
          ds_read_b64_tr_b16 v[24:25], v20
          ds_read_b64_tr_b16 v[26:27], v20 offset:256
          ds_read_b64_tr_b16 v[28:29], v20 offset:32
          ds_read_b64_tr_b16 v[30:31], v20 offset:288
          s_add_u32 s4, s92, 0x4000
          s_waitcnt lgkmcnt(0)
          s_barrier
          buffer_store_dwordx4 v[24:27], v{L16}, s[16:19], s92 offen sc1
          buffer_store_dwordx4 v[28:31], v{L16}, s[16:19], s4 offen sc1''')
    a(f'''s_cmp_lt_u32 s64, 2
          s_cselect_b32 s70, 1.0, -1.0
          v_mov_b32 v10, s70
          v_mov_b32 v11, s70
          s_lshl_b32 s4, s64, 1
          s_add_u32 s4, s4, s69
          s_cmp_eq_u32 s4, 4
          s_cselect_b32 s5, 0x10001, 0
          s_mov_b32 vcc_lo, s5
          s_mov_b32 vcc_hi, s5
          v_mov_b32 v3, 1.0
          v_cndmask_b32 v10, v10, v3, vcc
          s_lshl_b32 s5, s63, 1
          s_add_u32 s5, s5, s68
          s_cmp_eq_u32 s5, 0
          s_cbranch_scc0 L_p1_noR
          s_lshl_b32 s6, s4, 8
          s_add_u32 s6, s6, {RR}
          v_lshlrev_b32 v2, 2, v0
          s_mov_b64 exec, 0xffff''')
    for ct in range(4):
        a(f'''v_fma_f32 v{12 + ct}, v{10 if ct == 0 else 11}, v{176 + 4 * ct}, v{160 + 4 * ct}
              v_mov_b32 v{160 + 4 * ct}, 0
              v_mov_b32 v{176 + 4 * ct}, 0
              buffer_store_dword v{12 + ct}, v2, s[16:19], s6 offen offset:{ct * 64} sc1''')
    a(f'''s_mov_b64 exec, -1
          L_p1_noR:
          s_lshr_b32 s6, s64, 1
          s_lshl_b32 s6, s6, 19
          s_and_b32 s4, s4, 3
          s_lshl_b32 s4, s4, 16
          s_lshl_b32 s5, s5, 10
          s_add_u32 s73, s4, s5
          s_add_u32 s73, s73, s6
          s_add_u32 s73, s73, {EO}
          s_add_u32 s74, s73, 0x40000''')
    for cp in range(2):
        for u in range(2):
            ct = 2 * cp + u
            sg = 10 if ct == 0 else 11
            for i in range(4):
                a0, a1, a2, a3 = (128 + 16 * k + 4 * ct + i for k in range(4))
                a(f'''v_fmac_f32 v{a0}, v{sg}, v{a3}
                      v_fmac_f32 v{a1}, v{sg}, v{a2}''')
            for i in range(4):
                a0, a1, a2, a3 = (128 + 16 * k + 4 * ct + i for k in range(4))
                a(f'''v_fma_f32 v{a2}, v{sg}, v{a1}, v{a0}
                      v_fma_f32 v{a3}, -v{sg}, v{a1}, v{a0}''')
        for par in range(2):
            d = 32 + 4 * (2 * cp + par)
            for u in range(2):
                src = 160 + 16 * par + 4 * (2 * cp + u)
                for i in range(2):
                    a(f'v_cvt_pk_bf16_f32 v{d + 2 * u + i}, v{src + 2 * i}, v{src + 2 * i + 1}')
            a(f'''s_nop 1
                  v_permlane16_swap_b32 v{d}, v{d + 2}
                  v_permlane16_swap_b32 v{d + 1}, v{d + 3}
                  buffer_store_dwordx4 {vr(d)}, v{L16}, s[16:19], s{73 + par} offen sc1''')
        if cp == 0:
            a('''s_add_u32 s73, s73, 0x8000
                 s_add_u32 s74, s74, 0x8000''')
    a('L_p1_cdone:')


def attn_setup(a):
    srds_attn(a)
    a(f'''s_lshl_b32 s4, s79, 16
          v_add_u32 v{KA}, s4, v{L16}
          v_and_b32 v1, 16, v{LN}
          v_cmp_ne_u32 vcc, 0, v1
          v_and_b32 v2, 15, v{LN}
          v_lshlrev_b32 v2, 4, v2
          v_add_u32 v2, {ONES}, v2
          v_cndmask_b32 v{VA}, v{KA}, v2, vcc
          v_mov_b32 v2, 0x2000
          v_cndmask_b32 v{VINC}, v2, 0, vcc
          v_mov_b32 v{IDX}, 0xdddddddd
          v_and_b32 v1, 31, v{LN}
          s_and_b32 s4, s76, 15
          s_lshl_b32 s4, s4, 6
          s_lshr_b32 s83, s76, 4           ; p
          s_add_u32 s84, s4, s83
          v_lshl_add_u32 v1, v1, 1, s84
          v_lshlrev_b32 v1, 12, v1
          v_lshrrev_b32 v2, 5, v{LN}
          v_lshl_add_u32 v1, v2, 4, v1
          s_lshl_b32 s4, s3, 7
          v_add_u32 v{WSA}, s4, v1
          s_lshl_b32 s85, s83, 18
          s_lshl_b32 s4, s77, 15
          s_add_u32 s85, s85, s4
          s_lshl_b32 s4, s3, 12
          s_add_u32 s85, s85, s4
          s_add_u32 s85, s85, {EO}         ; E fragments
          s_add_u32 s86, s85, 0x80000      ; O fragments
          s_lshl_b32 s87, s81, 3
          s_add_u32 s87, s87, s3
          s_lshl_b32 s87, s87, 14
          s_add_u32 s87, s87, {WOF}
          s_lshl_b32 s88, s76, 17
          s_add_u32 s88, s88, {KV}
          s_lshl_b32 s4, s79, 16
          s_add_u32 s89, s88, s4
          s_lshl_b32 s91, s78, 11
          s_add_u32 s90, s89, s91
          s_add_u32 s5, s91, {QST}
          v_add_u32 v{T0}, s5, v{L16}
          s_add_u32 s91, s91, s4
          s_lshl_b32 s4, s64, 6
          s_lshl_b32 s5, s62, 4
          s_add_u32 s4, s4, s5
          s_add_u32 s4, s4, s63
          s_lshl_b32 s4, s4, 4
          s_add_u32 s93, s4, {FLAGS}''')


def zero_o(a):
    for i in range(16):
        a(f'v_mov_b64 {vr(OA + 2 * i, 2)}, 0')


def kv_dma(c):
    return [f's_add_u32 s4, s90, {c * 8192}',
            f's_add_u32 m0, s91, {c * 8192}',
            's_nop 0',
            f'buffer_load_dwordx4 v{L16}, s[16:19], s4 offen sc1 lds',
            f'buffer_load_dwordx4 v{L16}, s[16:19], s4 offen offset:1024 sc1 lds']


def publish1(a):
    a(f'''s_cmp_eq_u32 s62, 3
          s_cbranch_scc1 L_p1_join
          s_and_b32 s4, s63, 7
          s_cmp_eq_u32 s63, 8
          s_cselect_b32 s4, 9, s4
          s_lshl_b32 s4, s4, 7
          s_and_b32 s5, s63, 8
          s_lshl_b32 s6, s62, 2
          s_add_u32 s5, s5, s6
          s_add_u32 s4, s4, s5
          s_sub_u32 s4, s4, 4
          s_and_b32 s5, s63, 1
          s_lshl_b32 s5, s5, 2
          s_lshr_b32 s6, s63, 1
          s_lshl_b32 s6, s6, 13
          s_add_u32 s5, s5, s6
          s_add_u32 s5, s5, 1024
          s_cmp_eq_u32 s62, 0
          s_cselect_b32 s4, s5, s4
          s_cselect_b32 s6, 15, -1
          s_lshl_b32 s5, s64, 16
          s_add_u32 s4, s4, s5
          s_add_u32 s4, s4, {PFLAGS}
          v_lshlrev_b32 v1, 11, v{LN}
          v_mov_b32 v2, s58
          v_mov_b32 v3, {CNT}
          v_mov_b32 v4, 1
          s_mov_b64 exec, 1
          s_waitcnt vmcnt(0)
          ds_add_rtn_u32 v4, v3, v4
          s_waitcnt lgkmcnt(0)
          v_readfirstlane_b32 s5, v4
          s_mov_b32 exec_lo, s6
          s_cmp_eq_u32 s5, 3
          s_cbranch_scc0 L_s1_noflag
          buffer_store_dword v2, v1, s[16:19], s4 offen sc1
          L_s1_noflag:
          s_mov_b64 exec, -1''')


def a2mm(D, x, y, ks):
    return f'v_mfma_f32_32x32x16_bf16 {vr(D, 16)}, {vr(x + 4 * ks)}, {vr(y + 4 * ks)}, {vr(D, 16) if ks else 0}'


CC, SS, X3, X4 = NMA, NMB, SA, SB
MG = 0x8000


def unit(a, tau, b, side, last=False):
    X, Y = (SB, SA) if b else (SA, SB)
    OX, OY = (OB, OA) if b else (OA, OB)
    QY, NY = (QA, NMA) if b else (QB, NMB)
    vo = (tau & 3) * 2048
    side = list(side)
    e = lambda i: a(f'v_exp_f32 v{X + i}, v{X + i}')
    u = 2 * tau + b
    pr = OPT.get('pr', 1)
    p0, p1 = {0: (0, 1), 1: (3 - (u & 3), None), 2: (3 - ((2 * u) & 3), 3 - ((2 * u + 1) & 3)), 3: (None if b else 3 - (tau & 3), None),
              4: (None, None), 5: (2 - 2 * (u & 1), 3 - 2 * (u & 1)), 6: (None, 3 - (u & 3)), 7: (2 - 2 * (tau & 1), 3 - 2 * (tau & 1)),
              8: (2 - (u % 3), 3 - (u % 3)), 9: (1, 0)}[pr]
    if p0 is not None:
        a(f's_setprio {p0}')
    e(0); e(1)
    if b:
        a('s_waitcnt lgkmcnt(0)')
    if b or tau > 0:
        a(f'v_smfmac_f32_32x32x32_bf16 {vr(OY, 16)}, {vr(V1)}, {vr(Y + 8, 8)}, v{IDX}')
    if not b:
        a(f'ds_read_b128 {vr(V1)}, v{VA} offset:{vo + 1280}')
    e(2); e(3); e(4)
    if not (b and last):
        a(f'v_mfma_f32_32x32x16_bf16 {vr(Y, 16)}, {vr(KF)}, {vr(QY)}, {vr(NY, 16)}')
    else:
        a(a2mm(CC, A2C, A2E, 2))
    if not b and not last:
        a(f'ds_read_b128 {vr(KF)}, v{KA} offset:{(tau + 1) * 2048}')
    if p1 is not None:
        a(f's_setprio {p1}')
    for i in range(5, 10):
        e(i)
        if last and i == 7:
            a(a2mm(CC, A2C, A2E, 3 if b else 0))
    if not b:
        a(f's_waitcnt lgkmcnt({1 if last else 2})')
    a(f'v_smfmac_f32_32x32x32_bf16 {vr(OX, 16)}, {vr(V0)}, {vr(X, 8)}, v{IDX}')
    if b and not last:
        a(f'ds_read_b128 {vr(V0)}, v{VA} offset:{vo + 2048 + 1024}')
        if (tau & 3) == 3:
            a(f'v_add_u32 v{VA}, v{VINC}, v{VA}')
    for i in range(10, 16):
        e(i)
        if i == 12:
            for s in side:
                a(s)


def attention(a):
    stamp(a, 4)
    a('s_barrier')
    stamp(a, 6)
    a(f'''ds_read_b128 {vr(QA)}, v{T0}
          ds_read_b128 {vr(V1)}, v{L16}
          ds_read_b128 {vr(QB)}, v{T0} offset:1024
          ds_read_b128 {vr(KF)}, v{KA}
          ds_read_b128 {vr(V0)}, v{VA} offset:1024''')
    for s_ in kv_dma(1):
        a(s_)
    a(f'''s_waitcnt lgkmcnt(3)
          v_mfma_f32_32x32x16_bf16 {vr(SA, 16)}, {vr(V1)}, {vr(QA)}, 0
          s_waitcnt lgkmcnt(2)
          v_mfma_f32_32x32x16_bf16 {vr(SB, 16)}, {vr(V1)}, {vr(QB)}, 0
          v_mov_b64 {vr(A2C, 2)}, -1
          v_mov_b64 {vr(A2C + 2, 2)}, -1''')
    for s_ in kv_dma(2):
        a(s_)
    a(f'''buffer_store_dwordx4 {vr(A2C)}, v{L16}, s[16:19], s82 offen sc1
          s_nop 1''')
    for S, NM, t in ((SA, NMA, T0), (SB, NMB, T1)):
        a(f'v_max3_f32 v{t}, v{S}, v{S + 1}, v{S + 2}')
        for i in range(3, 15, 2):
            a(f'v_max3_f32 v{t}, v{t}, v{S + i}, v{S + i + 1}')
        a(f'''v_max_f32 v{t}, v{t}, v{S + 15}
              v_mov_b32 v{T2}, v{t}
              s_nop 1
              v_permlane32_swap_b32 v{t}, v{T2}
              v_max_f32 v{t}, v{t}, v{T2}
              v_sub_f32 v{NM}, {f2u(-OFFS)}, v{t}
              v_sub_f32 v{NM + 1}, {f2u(-OFFS)}, v{t}''')
        for i in range(2, 16, 2):
            a(f'v_mov_b64 {vr(NM + i, 2)}, {vr(NM, 2)}')
        if S == SA:
            a(f'''s_waitcnt lgkmcnt(0)
                  s_nop 0
                  v_mfma_f32_32x32x16_bf16 {vr(SA, 16)}, {vr(KF)}, {vr(QA)}, {vr(NMA, 16)}''')
    stamp(a, 7)

    side = {}

    def put(tau, b, ins):
        side.setdefault((tau, b), []).extend(ins)

    put(3, 0, ['s_cmp_eq_u32 s3, 0', 's_cbranch_scc0 L_at_noflag2', f'v_mov_b32 v{T0}, s58', 's_mov_b64 exec, 1',
               f'buffer_store_dword v{T0}, v{L16}, s[16:19], s93 offen sc1', 's_mov_b64 exec, -1', 'L_at_noflag2:'])
    for c in range(3, 8):
        put(c, 1, kv_dma(c))
    flag_loads = [f'buffer_load_dword v{A2E + i}, v{L16}, s[16:19], s92 offen offset:{i * 1024} sc1' for i in range(4)]
    put(8, 0, [f's_mov_b32 s92, {FLAGS}'] + flag_loads)
    put(10, 0, ['s_waitcnt vmcnt(0)', 'L_at_fchk:',
                f'v_cmp_ne_u32 vcc, s58, v{A2E}', f'v_cmp_ne_u32 s[4:5], s58, v{A2E + 1}',
                f'v_cmp_ne_u32 s[6:7], s58, v{A2E + 2}', f'v_cmp_ne_u32 s[62:63], s58, v{A2E + 3}',
                's_or_b64 vcc, vcc, s[4:5]', 's_or_b64 s[6:7], s[6:7], s[62:63]', 's_or_b64 vcc, vcc, s[6:7]',
                's_cbranch_vccnz L_at_fretry', 'L_at_fok:'])
    put(10, 1, ['s_or_b32 s4, s2, s3', 's_cmp_eq_u32 s4, 0', 's_cbranch_scc0 L_at_noepoch',
                f's_mov_b32 s4, {EPOCH}', 's_mov_b64 exec, 1',
                f'buffer_store_dword v{A2E}, v{L16}, s[16:19], s4 offen sc1',
                's_mov_b64 exec, -1', 'L_at_noepoch:'])
    loads = []
    for m in range(2):
        for ks in range(4):
            loads.append(f'buffer_load_dwordx4 {vr(A2C + 16 * m + 4 * ks)}, v{WSA}, s[{24 + 4 * m}:{27 + 4 * m}], 0 offen offset:{ks * 32}')
    for m in range(2):
        for ks in range(4):
            loads.append(f'buffer_load_dwordx4 {vr(A2E + 16 * m + 4 * ks)}, v{L16}, s[16:19], s{85 + m} offen offset:{ks * 1024} sc1')
    for ks in range(16):
        pre = 's_add_u32 s87, s87, 0x1000\n' if ks and ks % 4 == 0 else ''
        loads.append(pre + f'buffer_load_dwordx4 {vr(WO + 4 * ks)}, v{L16}, s[16:19], s87 offen offset:{(ks & 3) * 1024} sc1')
    u = 22
    sched = OPT.get('sched', 4)
    if sched == 0:
        for k in range(0, 8, 2):
            put(u >> 1, u & 1, loads[k:k + 2]); u += 1
        for ld in loads[8:]:
            put(u >> 1, u & 1, [ld]); u += 1
    elif sched == 1:
        for ld in loads[8:]:
            put(u >> 1, u & 1, [ld]); u += 1
    elif sched == 2:
        pass
    elif sched == 3:
        for k in range(8, 32, 2):
            put(u >> 1, u & 1, loads[k:k + 2]); u += 1
        for k, uu in enumerate((35, 41, 43, 45, 47, 53, 55, 57)):
            put(uu >> 1, uu & 1, [loads[k]])
    elif sched == 4:
        for k, uu in enumerate((22, 34, 36, 38, 28, 40, 42, 44)):
            put(uu >> 1, uu & 1, [loads[k]])
        u = 45
        for k in range(8, 32, 2):
            put(u >> 1, u & 1, loads[k:k + 2]); u += 1
    put(u >> 1, u & 1, [f'v_and_b32 v{T0}, 31, v{LN}', f'v_lshlrev_b32 v{T0}, 2, v{T0}', f'v_mov_b32 v{T1}, 0',
                        's_lshl_b32 s4, s77, 7', 's_lshl_b32 s5, s83, 10', 's_add_u32 s4, s4, s5',
                        f's_add_u32 s4, s4, {RR}', f's_mov_b32 s5, {RR + 1024}',
                        f'buffer_load_dword v{T0}, v{T0}, s[16:19], s4 offen sc1',
                        f'buffer_load_dword v{T1}, v{T1}, s[16:19], s5 offen sc1'])
    assert u < 60
    put(30, 0, ['s_waitcnt vmcnt(0)', 's_cmp_eq_u32 s76, 0', 's_cbranch_scc0 L_a2_nopatch', 's_mov_b32 exec_lo, 1', 's_mov_b32 exec_hi, 1'] +
        [f'v_mov_b32 v{A2S + i}, 0xbf803f80' for i in range(16)] + ['s_mov_b64 exec, -1', 'L_a2_nopatch:'])
    put(30, 1, ['s_mul_i32 s4, s3, 2304', f's_add_u32 m0, s4, {MG}', 's_xor_b32 s5, s3, 4', 's_mul_i32 s5, s5, 2304',
                f's_add_u32 s70, s5, {MG}', f"s_mov_b32 s71, {0 if OPT.get('forcefb') else f2u(2.0 ** 120)}"])
    put(31, 0, [a2mm(CC, A2C, A2E, 1)])
    put(31, 1, [a2mm(SS, A2S, A2O, 0), 's_cmp_eq_u32 s79, 0'])
    a('.p2align 3')
    for tau in range(32):
        if tau == 3:
            a('s_waitcnt vmcnt(0)\ns_barrier')
            stamp(a, 8)
        if tau == 11:
            a('s_barrier')
            stamp(a, 9)
        for b in range(2):
            unit(a, tau, b, side.get((tau, b), []), last=(tau == 31))
    a(f'''s_setprio 0
          s_cbranch_scc1 L_mg_k0''')
    R = KF
    for kh in (1, 0):
        snd, kp = (OA, OB) if kh else (OB, OA)
        if kh == 0:
            a('L_mg_k0:')
        a(f'v_smfmac_f32_32x32x32_bf16 {vr(OB, 16)}, {vr(V1)}, {vr(SB + 8, 8)}, v{IDX}')
        stamp(a, 10)
        if kh == 0:
            a('s_nop 11')
        for i in range(9):
            a(f'ds_write_addtid_b32 v{snd + i} offset:{MG + i * 256}')
        a(a2mm(SS, A2S, A2O, 1))
        a('''s_mov_b32 m0, s70
             s_waitcnt lgkmcnt(0)
             s_barrier''')
        for i in (8, 0, 1, 2, 3, 4, 5, 6, 7):
            a(f'ds_read_addtid_b32 v{R + i} offset:{MG + i * 256}')
        a(a2mm(SS, A2S, A2O, 2))
        a(f'''s_waitcnt lgkmcnt(8)
              v_add_f32 v{R + 8}, v{R + 8}, v{kp + 8}
              v_rcp_f32 v{R + 10}, v{R + 8}''')
        for i in range(4):
            a(f'''s_waitcnt lgkmcnt({6 - 2 * i})
                  v_pk_add_f32 {vr(R + 2 * i, 2)}, {vr(R + 2 * i, 2)}, {vr(kp + 2 * i, 2)}''')
        if kh:
            a('s_branch L_mg_j')
    a('L_mg_j:')
    for i in range(4):
        a(f'v_pk_mul_f32 {vr(R + 2 * i, 2)}, {vr(R + 2 * i, 2)}, {vr(R + 10, 2)} op_sel_hi:[1,0]')
    for i in range(4):
        a(f'v_cvt_pk_bf16_f32 v{OB + i}, v{R + 2 * i}, v{R + 2 * i + 1}')
    for i in range(4):
        a(f'v_dot2c_f32_bf16 v{R + 8}, v{OB + i}, v{OB + i}')
    a(a2mm(SS, A2S, A2O, 3))
    a(f'''s_nop 1
          v_cmp_ngt_f32 vcc, s71, v{R + 8}
          s_cbranch_vccnz L_fallback
          L_at_final:
          buffer_store_dwordx4 {vr(OB)}, v{L16}, s[16:19], s82 offen sc1''')
    stamp(a, 11)
    return flag_loads


def cold_paths(a, flag_loads):
    a(f'''L_at_fretry:
          s_mov_b32 s93, {SPIN}
          L_at_fretry2:''')
    for s in flag_loads:
        a(s)
    a(f'''s_waitcnt vmcnt(0)
          v_cmp_ne_u32 vcc, s58, v{A2E}
          v_cmp_ne_u32 s[4:5], s58, v{A2E + 1}
          v_cmp_ne_u32 s[6:7], s58, v{A2E + 2}
          v_cmp_ne_u32 s[62:63], s58, v{A2E + 3}
          s_or_b64 vcc, vcc, s[4:5]
          s_or_b64 s[6:7], s[6:7], s[62:63]
          s_or_b64 vcc, vcc, s[6:7]
          s_cbranch_vccz L_at_fok
          s_sub_u32 s93, s93, 1
          s_cbranch_scc0 L_at_fretry2
          s_branch L_at_fok''')
    a(f'''L_fallback:
          s_cmp_eq_u32 s79, 0
          s_cbranch_scc1 L_fb_q
          v_mov_b64 {vr(QA, 2)}, {vr(QB, 2)}
          v_mov_b64 {vr(QA + 2, 2)}, {vr(QB + 2, 2)}
          L_fb_q:
          v_mov_b32 v{SB}, 0xff800000
          s_mov_b32 s4, s88
          s_mov_b32 s5, 64
          L_fb_max:
          buffer_load_dwordx4 {vr(KF)}, v{L16}, s[16:19], s4 offen sc1
          s_waitcnt vmcnt(0)
          v_mfma_f32_32x32x16_bf16 {vr(SA, 16)}, {vr(KF)}, {vr(QA)}, 0
          s_nop 11''')
    for i in range(0, 16, 2):
        a(f'v_max3_f32 v{SB}, v{SB}, v{SA + i}, v{SA + i + 1}')
    a(f'''s_add_u32 s4, s4, 2048
          s_sub_u32 s5, s5, 1
          s_cmp_lg_u32 s5, 0
          s_cbranch_scc1 L_fb_max
          v_mov_b32 v{SB + 1}, v{SB}
          s_nop 1
          v_permlane32_swap_b32 v{SB}, v{SB + 1}
          v_max_f32 v{SB}, v{SB}, v{SB + 1}
          v_sub_f32 v{SB}, {f2u(-float(VLOG))}, v{SB}''')
    for i in range(1, 16):
        a(f'v_mov_b32 v{SB + i}, v{SB}')
    for i in range(16):
        a(f'v_mov_b32 v{OA + i}, 0')
    for i in range(8):
        a(f'v_mov_b32 v{V0 + i}, {ONEBF * 0x10001}')
    a(f'''s_mov_b32 s4, s88
          s_mov_b32 s5, 64
          s_mov_b32 s6, 0xffff
          s_mov_b32 s7, 0xffff
          L_fb_pv:
          buffer_load_dwordx4 {vr(KF)}, v{L16}, s[16:19], s4 offen sc1
          s_mov_b64 exec, s[6:7]
          buffer_load_dwordx4 {vr(V0)}, v{L16}, s[16:19], s4 offen offset:1024 sc1
          buffer_load_dwordx4 {vr(V1)}, v{L16}, s[16:19], s4 offen offset:1280 sc1
          s_mov_b64 exec, -1
          s_waitcnt vmcnt(0)
          v_mfma_f32_32x32x16_bf16 {vr(SA, 16)}, {vr(KF)}, {vr(QA)}, {vr(SB, 16)}
          s_nop 11''')
    for i in range(16):
        a(f'v_exp_f32 v{SA + i}, v{SA + i}')
    a(f'''s_nop 1
          v_smfmac_f32_32x32x32_bf16 {vr(OA, 16)}, {vr(V0)}, {vr(SA, 8)}, v{IDX}
          v_smfmac_f32_32x32x32_bf16 {vr(OA, 16)}, {vr(V1)}, {vr(SA + 8, 8)}, v{IDX}
          s_add_u32 s4, s4, 2048
          s_sub_u32 s5, s5, 1
          s_cmp_lg_u32 s5, 0
          s_cbranch_scc1 L_fb_pv
          s_nop 11
          v_rcp_f32 v{SB}, v{OA + 8}
          s_nop 0''')
    for i in range(8):
        a(f'v_mul_f32 v{OA + i}, v{SB}, v{OA + i}')
    for i in range(4):
        a(f'v_cvt_pk_bf16_f32 v{OB + i}, v{OA + 2 * i}, v{OA + 2 * i + 1}')
    for i in range(4):
        a(f'v_min_u32 v{OB + i}, -2, v{OB + i}')
    a('s_branch L_at_final')


def tail(a):
    OST, XP = 0x18000, 0x16000
    PA, XA3, XA4, SA0, CO, OSR, OUTA, VRA = 96, 97, 98, 100, 106, 109, 110, 111
    gather = [f'buffer_load_dwordx4 v{L16}, s[16:19], s70 offen offset:{i * 1024} sc1 lds' for i in range(4)]
    gp = OPT.get('gp', 2)
    a(f'''s_lshl_b32 s4, s3, 13
          v_add_u32 v64, s4, v{L16}
          s_mul_i32 s73, s76, s77
          s_lshl_b32 s4, s80, 15
          s_lshl_b32 s5, s3, 12
          s_add_u32 s70, s4, s5
          s_add_u32 s70, s70, {OF}
          s_add_u32 s5, s5, {OST}
          s_mov_b32 m0, s5
          v_add_u32 v{VRA}, s5, v{L16}''')
    calc = (f'''s_lshl_b32 s4, s3, 7
          s_add_u32 s4, s4, {XP}
          v_lshl_add_u32 v66, v{LN}, 2, s4
          v_lshrrev_b32 v67, 5, v{LN}
          v_and_b32 v71, 31, v{LN}
          s_lshl_b32 s6, s3, 9
          v_lshl_add_u32 v{PA}, v71, 4, s6
          v_lshl_add_u32 v{PA}, v67, 12, v{PA}   ; partial read address
          s_lshl_b32 s6, s3, 2
          v_lshl_add_u32 v73, v67, 1, s6         ; tl (even)
          v_lshlrev_b32 v{XA3}, 2, v73
          v_add_u32 v{XA3}, {XP}, v{XA3}
          v_lshlrev_b32 v{XA4}, 2, v71
          v_add_u32 v{XA4}, {XP + 1024}, v{XA4}
          s_lshl_b32 s4, s80, 5
          v_add_u32 v{OUTA}, s4, v71
          v_lshlrev_b32 v{OUTA}, 11, v{OUTA}
          v_lshl_add_u32 v{OUTA}, v67, 4, v{OUTA}   ; out offset
          s_lshl_b32 s4, s77, 5
          v_add_u32 v71, s4, v71           ; e
          v_lshl_add_u32 v73, v73, 1, s84  ; t0 ; t1 = t0 + 2
          v_cmp_eq_u32 s[74:75], 0, v73
          v_cmp_eq_u32 s[64:65], 0, v71
          v_sub_u32 v84, 0x800, v73
          v_mov_b32 v85, 0x400
          v_cndmask_b32 v85, v84, v85, s[74:75]   ; row2 of t0
          v_subrev_u32 v84, 2, v84                ; row2 of t1
          v_sub_u32 v86, 0x200, v71
          v_mov_b32 v87, 0x100
          v_cndmask_b32 v86, v86, v87, s[64:65]   ; col2
          v_lshlrev_b32 v87, 1, v71
          v_lshlrev_b32 v86, 1, v86
          v_lshl_add_u32 v{SA0}, v73, 11, v87
          v_lshl_add_u32 v{SA0 + 1}, v73, 11, v86
          v_lshl_add_u32 v{SA0 + 2}, v85, 11, v87
          v_lshl_add_u32 v{SA0 + 3}, v85, 11, v86
          v_lshl_add_u32 v{SA0 + 4}, v84, 11, v87
          v_lshl_add_u32 v{SA0 + 5}, v84, 11, v86
          s_cmp_eq_u32 s83, 0
          s_cselect_b64 vcc, -1, 0
          v_cndmask_b32 v{CO}, 0, v{T0}, vcc          ; cos correction
          v_cndmask_b32 v{CO + 1}, 0, v{T1}, vcc      ; column-256 correction
          v_cndmask_b32 v{CO + 2}, v{T0}, 0, vcc      ; sin correction
          s_or_b64 s[66:67], s[74:75], s[64:65]
          s_and_b64 s[68:69], s[74:75], s[64:65]
          s_mov_b32 s71, 4096
          v_lshrrev_b32 v65, 4, v{LN}      ; g
          v_and_b32 v88, 15, v{LN}
          v_lshlrev_b32 v88, 4, v88
          v_lshl_add_u32 v{OSR}, v65, 9, v88
          v_add_u32 v{OSR}, {OST}, v{OSR}  ; staging read address
          s_lshl_b32 s4, s81, 8
          s_lshl_b32 s5, s3, 5
          s_add_u32 s72, s4, s5
          s_add_u32 s72, s72, 1024
          s_mov_b32 s5, {SPIN}''').split('\n')
    per = (len(calc) + 6) // 7
    for q in range(8):
        a(f'ds_write_b128 v64, {vr(CC + 4 * q)} offset:{q * 1024}')
        if q == 0:
            a('''s_cmp_eq_u32 s73, 0
                 s_cbranch_scc0 L_a2_nox''')
            for ks in range(4):
                a(a2mm(X3, A2O, A2C, ks))
                a(a2mm(X4, A2S, A2E, ks))
            a('L_a2_nox:')
        for x in calc[q * per:(q + 1) * per]:
            a(x)
    a(f'''s_cmp_eq_u32 s73, 0
          s_cbranch_scc0 L_a2_nox2
          s_mov_b32 exec_hi, 0
          ds_write_b32 v66, v{X3}
          ds_write_b32 v66, v{X4} offset:1024
          s_mov_b32 exec_hi, -1
          L_a2_nox2:''')
    a('s_waitcnt lgkmcnt(0)')
    if gp == 2:
        for g in gather:
            a(g)
    a('s_barrier')
    stamp(a, 12)
    for w in range(8):
        a(f'ds_read_b128 {vr(128 + 4 * w)}, v{PA} offset:{w * 8192}')
    if gp == 3:
        for g in gather:
            a(g)
    a('s_cbranch_scc0 L_a2_nox3')
    for w in range(8):
        a(f'''ds_read_b64 {vr(160 + 2 * w, 2)}, v{XA3} offset:{w * 128}
              ds_read_b32 v{176 + w}, v{XA4} offset:{w * 128}''')
    a('L_a2_nox3:')
    V = []
    for step in (4, 2, 1):
        for w in range(step):
            for i in (0, 2):
                if OPT.get('nopk'):
                    V.append('\n'.join(f'v_add_f32 v{128 + 4 * w + i + k}, v{128 + 4 * w + i + k}, v{128 + 4 * (w + step) + i + k}' for k in range(2)))
                else:
                    V.append(f'v_pk_add_f32 {vr(128 + 4 * w + i, 2)}, {vr(128 + 4 * w + i, 2)}, {vr(128 + 4 * (w + step) + i, 2)}')
    X = ['s_cbranch_scc0 L_a2_nox4']
    for step in (4, 2, 1):
        for w in range(step):
            X += [f'v_pk_add_f32 {vr(160 + 2 * w, 2)}, {vr(160 + 2 * w, 2)}, {vr(160 + 2 * (w + step), 2)}',
                  f'v_add_f32 v{176 + w}, v{176 + w}, v{176 + w + step}']
    X += [f'v_add_f32 v160, v160, v{CO + 1}', f'v_sub_f32 v161, v161, v{CO + 1}', f'v_add_f32 v176, v176, v{CO}', 'L_a2_nox4:', 's_nop 0']
    V.append('\n'.join(X))
    V += f'''v_permlane32_swap_b32 v128, v130
         v_permlane32_swap_b32 v129, v131
         v_add_f32 v128, v128, v{CO}
         v_sub_f32 v129, v129, v{CO}
         v_add_f32 v177, v130, v{CO + 1}
         v_sub_f32 v130, v130, v{CO + 2}
         v_add_f32 v131, v131, v{CO + 2}
         v_cndmask_b32 v130, v130, 0, s[66:67]
         v_cndmask_b32 v131, v131, 0, s[64:65]
         v_sub_f32 v132, v128, v130
         v_sub_f32 v134, v129, v131
         v_add_f32 v133, v128, v130
         v_add_f32 v135, v129, v131
         v_cvt_pk_bf16_f32 v144, v132, v134
         buffer_store_short v144, v{SA0}, s[20:23], 0 offen
         v_cndmask_b32 v136, v133, v160, s[64:65]
         buffer_store_short_d16_hi v144, v{SA0}, s[20:23], s71 offen
         v_cndmask_b32 v139, v135, v161, s[64:65]
         v_cvt_pk_bf16_f32 v145, v136, v139
         v_cndmask_b32 v137, v133, v176, s[74:75]
         buffer_store_short v145, v{SA0 + 1}, s[20:23], 0 offen
         v_cvt_pk_bf16_f32 v146, v137, v135
         buffer_store_short_d16_hi v145, v{SA0 + 1}, s[20:23], s71 offen
         v_cndmask_b32 v138, v132, v160, s[64:65]
         buffer_store_short v146, v{SA0 + 2}, s[20:23], 0 offen
         v_cndmask_b32 v138, v138, v176, s[74:75]
         buffer_store_short_d16_hi v146, v{SA0 + 4}, s[20:23], 0 offen
         v_cndmask_b32 v138, v138, v177, s[68:69]
         v_cndmask_b32 v140, v134, v161, s[64:65]
         v_cvt_pk_bf16_f32 v147, v138, v140
         buffer_store_short v147, v{SA0 + 3}, s[20:23], 0 offen
         buffer_store_short_d16_hi v147, v{SA0 + 5}, s[20:23], 0 offen'''.split('\n')
    a('s_waitcnt lgkmcnt(0)')
    for x in V:
        a(x)
    stamp(a, 13)
    a('''s_waitcnt vmcnt(8)
         L_op_chk:''')
    for i in range(4):
        a(f'ds_read_b128 {vr(48 + 4 * i)}, v{VRA} offset:{i * 1024}')
    a('''s_waitcnt lgkmcnt(3)
         v_max3_u32 v84, v48, v49, v50
         s_waitcnt lgkmcnt(2)
         v_max3_u32 v84, v84, v51, v52
         v_max3_u32 v84, v84, v53, v54
         s_waitcnt lgkmcnt(1)
         v_max3_u32 v84, v84, v55, v56
         v_max3_u32 v84, v84, v57, v58
         s_waitcnt lgkmcnt(0)
         v_max3_u32 v84, v84, v59, v60
         v_max3_u32 v84, v84, v61, v62
         v_max_u32 v84, v84, v63
         v_cmp_eq_u32 vcc, -1, v84
         s_cbranch_vccnz L_op_retry
         L_op_ok:
         s_barrier''')
    stamp(a, 14)
    NB = 12
    rd = lambda n: a(f'ds_read_b128 {vr(4 * (n % NB))}, v{OSR} offset:{(n >> 1) * 2048 + (n & 1) * 256}')
    for n in range(NB - 2):
        rd(n)
    for n in range(32):
        nxt = n + NB - 2
        if nxt < 32:
            rd(nxt)
        out = min(31, nxt) - n
        acc = vr(72 + 4 * (n & 1))
        a(f'''s_waitcnt lgkmcnt({out})
              v_mfma_f32_16x16x32_bf16 {acc}, {vr(WO + 4 * (n >> 1))}, {vr(4 * (n % NB))}, {acc if n >= 2 else 0}''')
    a(f'''s_nop 7
          v_cvt_pk_bf16_f32 v80, v72, v73
          v_cvt_pk_bf16_f32 v81, v74, v75
          v_cvt_pk_bf16_f32 v82, v76, v77
          v_cvt_pk_bf16_f32 v83, v78, v79
          s_nop 1
          v_permlane16_swap_b32 v80, v82
          v_permlane16_swap_b32 v81, v83
          buffer_store_dwordx4 v[80:83], v{OUTA}, s[20:23], s72 offen''')
    stamp(a, 15)
    if OPT['stamps']:
        a('s_waitcnt vmcnt(0)')
    stamp(a, 16)
    stamp_dump(a)
    return gather


def build():
    a = A()
    prologue(a)
    a('''s_cmp_ge_u32 s3, 4
         s_cbranch_scc0 L_p1_compute''')
    p1_loader(a)
    a('''s_branch L_p1_join
         L_p1_compute:''')
    p1_compute(a)
    stamp(a, 25)
    a('s_add_u32 s58, s58, 1            ; nonce')
    zero_o(a)
    publish1(a)
    a('L_p1_join:\ns_setprio 0')
    fl = attention(a)
    gather = tail(a)
    a('''L_end:
         s_endpgm
         L_op_retry:
         s_sub_u32 s5, s5, 1
         s_cbranch_scc1 L_op_ok''')
    for g in gather:
        a(g)
    a('s_waitcnt vmcnt(0)\ns_branch L_op_chk')
    cold_paths(a, fl)
    a('L_code_end:')
    a('s_endpgm')
    return a.text()


def main(path):
    hdr = ''.join(l for l in open(f'cdna_kernels/{NAME}.s.ref') if l.startswith(';') and '@launch' not in l)
    out = hdr + f'; @launch grid=(256,1,1) block=(512,1,1) lds={LDS_BYTES}\n'
    out += f'''.amdgcn_target "amdgcn-amd-amdhsa--gfx950"
.text
.globl {NAME}_kernel
.p2align {OPT.get('al', 8)}
.type {NAME}_kernel,@function
{NAME}_kernel:
'''
    out += build()
    out += f'''.section .rodata,"a"
.p2align 6
.amdhsa_kernel {NAME}_kernel
  .amdhsa_next_free_vgpr 256
  .amdhsa_next_free_sgpr {98 if OPT['stamps'] else 96}
  .amdhsa_accum_offset 256
  .amdhsa_group_segment_fixed_size 0
  .amdhsa_kernarg_size 88
  .amdhsa_user_sgpr_count 2
  .amdhsa_user_sgpr_kernarg_segment_ptr 1
  .amdhsa_system_sgpr_workgroup_id_x 1
.end_amdhsa_kernel
'''
    open(path, 'w').write(out)


if __name__ == '__main__':
    for x in sys.argv[1:]:
        if x.startswith('--'):
            k, _, v = x[2:].partition('=')
            OPT[k] = (int(v, 0) if v[0].isdigit() else v) if v else True
    args = [x for x in sys.argv[1:] if not x.startswith('--')]
    main(args[0] if args else f'cdna_kernels/{NAME}.s')
```

```python
import math, struct, sys

NAME = 'concat_heads__spectral_fnet__softmax_full_mha__prompt'
QF, KV, EO, OF, WOF, RR, FLAGS, EPOCH, STAMP, WS_SIZE = (
    0, 0x200000, 0x600000, 0x700000, 0x900000, 0x980000, 0x990000, 0x9A0000, 0x9C0000, 0xB00000)
PFLAGS = 0xA00000
OFFS = 100.0
VLOG = 40
CSCALE = 0.25 * math.log2(math.e)
ONEBF = (127 + VLOG) << 7
SPIN = 400000
OPT = dict(stamps=False, cyc=False, stag=0x4242, stsh=2)


def f2u(x):
    return struct.unpack('<I', struct.pack('<f', x))[0]


class A:
    def __init__(self):
        self.l = []

    def __call__(self, s):
        for ln in s.strip('\n').split('\n'):
            ln = ln.strip()
            if not ln:
                continue
            self.l.append(ln if ln.endswith(':') or ln.startswith('.') else '    ' + ln)

    def text(self):
        return '\n'.join(self.l) + '\n'


def vr(b, n=4):
    return f'v[{b}:{b + n - 1}]'


def srd(a, d, lo, size):
    a(f'''s_mov_b32 s{d}, s{lo}
          s_mov_b32 s{d + 1}, s{lo + 1}
          s_mov_b32 s{d + 2}, {size}
          s_mov_b32 s{d + 3}, 0x20000''')


STV = 126


def stamp(a, slot):
    if not OPT['stamps']:
        return
    a(f'''{'s_memtime' if OPT['cyc'] else 's_memrealtime'} s[94:95]
          s_waitcnt lgkmcnt(0)
          v_writelane_b32 v{STV}, s94, {slot}''')
    if slot == 0:
        a(f'v_writelane_b32 v{STV}, s96, 30')


def stamp_dump(a):
    if not OPT['stamps']:
        return
    a(f'''v_mbcnt_lo_u32_b32 v{STV + 1}, -1, 0
          v_mbcnt_hi_u32_b32 v{STV + 1}, -1, v{STV + 1}
          v_lshlrev_b32 v{STV + 1}, 2, v{STV + 1}
          s_lshl_b32 s92, s2, 3
          s_add_u32 s92, s92, s3
          s_lshl_b32 s92, s92, 7
          s_add_u32 s92, s92, {STAMP}
          s_mov_b32 exec_hi, 0
          buffer_store_dword v{STV}, v{STV + 1}, s[16:19], s92 offen sc1
          s_mov_b64 exec, -1''')


SA, SB, NMA, NMB, OA, OB, QA, QB, KF, V0, V1 = 0, 16, 32, 48, 64, 80, 96, 100, 104, 108, 112
IDX, KA, VA, VINC, L16, WSA, LN, T0, T1, T2 = 116, 117, 118, 119, 120, 121, 122, 123, 124, 125
A2C, A2S, A2E, A2O, WO = 128, 144, 160, 176, 192
ONES, MRG, WST, CNT = 0x20000, 0x22800, 0x27000, 0x27800
QST = MRG
LDS_BYTES = 0x28000


def prologue(a):
    if OPT['stamps']:
        a(f"{'s_memtime' if OPT['cyc'] else 's_memrealtime'} s[96:97]")
    a(f'''s_cmp_ge_u32 s2, 256
          s_cbranch_scc1 L_end
          s_load_dwordx16 s[36:51], s[0:1], 0
          s_load_dwordx4 s[52:55], s[0:1], 64
          s_load_dwordx2 s[56:57], s[0:1], 80
          v_lshrrev_b32 v1, 6, v0
          v_and_b32 v0, 63, v0
          v_readfirstlane_b32 s3, v1
          s_and_b32 s60, s2, 7
          s_lshr_b32 s61, s2, 3
          s_cmp_eq_u32 s3, 0
          s_cbranch_scc0 L_nopf
          v_min_u32 v22, 5, v0
          v_lshl_add_u32 v22, v22, 5, s61
          v_lshlrev_b32 v22, 7, v22
          v_min_u32 v22, L_code_end - L_pc - 4, v22
          s_getpc_b64 s[6:7]
          L_pc:
          global_load_dword v23, v22, s[6:7]
          L_nopf:
          ; phase-1 roles: s62 kind, s63 rb, s64 cb, s65 rot
          s_lshr_b32 s62, s60, 1
          s_and_b32 s63, s60, 1
          s_lshl_b32 s63, s63, 3
          s_and_b32 s4, s61, 7
          s_add_u32 s63, s63, s4
          s_lshr_b32 s64, s61, 3
          s_lshl_b32 s65, s64, {1 if OPT.get('rot', 3) == 7 else 0}
          s_add_u32 s65, s65, s4
          s_cmp_eq_u32 s62, 3
          s_cselect_b32 s66, 1, 3
          s_lshl_b32 s14, s66, 19
          s_lshl_b32 s66, s66, 10          ; W pitch
          s_lshl_b32 s6, s62, 10
          s_lshl_b32 s7, s64, 8
          s_add_u32 s6, s6, s7
          s_and_b32 s7, s7, 256
          s_cmp_eq_u32 s62, 3
          s_cselect_b32 s67, s7, s6
          s_mov_b32 s10, 0x200000
          s_mov_b32 s11, 0x20000
          s_mov_b32 s15, 0x20000''')


def roles(a):
    a(f'''v_mov_b32 v{LN}, v0
          v_lshlrev_b32 v{L16}, 4, v0
          s_and_b32 s4, s61, 7
          s_lshl_b32 s76, s60, 2
          s_and_b32 s5, s61, 3
          s_add_u32 s76, s76, s5           ; head
          s_lshr_b32 s77, s61, 2           ; j
          s_and_b32 s78, s3, 3             ; q pair
          s_lshr_b32 s79, s3, 2
          s_lshl_b32 s80, s60, 3
          s_add_u32 s80, s80, s4           ; qt
          s_mov_b32 s81, s64               ; nb''')


def srds(a):
    a('''s_waitcnt lgkmcnt(0)
         s_cmp_lt_u32 s64, 2
         s_cselect_b32 s4, s42, s44
         s_cselect_b32 s5, s43, s45
         s_cmp_eq_u32 s62, 3
         s_cselect_b32 s8, s36, s46
         s_cselect_b32 s9, s37, s47
         s_cselect_b32 s12, s4, s48
         s_cselect_b32 s13, s5, s49''')


def srds_late(a):
    if OPT.get('wsoff'):
        a(f'''s_add_u32 s56, s56, {OPT['wsoff'] << 20}
              s_addc_u32 s57, s57, 0''')
    srd(a, 16, 56, WS_SIZE)
    srd(a, 32, 50, 0x80000)


def srds_attn(a):
    srd(a, 20, 52, 0x400000)
    srd(a, 24, 38, 0x800000)
    srd(a, 28, 40, 0x800000)


def o_offset(a):
    a(f'''s_lshl_b32 s4, s77, 3
          s_lshl_b32 s5, s78, 1
          s_add_u32 s4, s4, s5
          s_add_u32 s4, s4, s79
          s_lshl_b32 s4, s4, 15
          s_lshl_b32 s5, s76, 10
          s_add_u32 s4, s4, s5
          s_add_u32 s82, s4, {OF}''')


def epoch_load(a):
    a(f'''s_add_u32 s4, s56, {EPOCH}
          s_addc_u32 s5, s57, 0
          s_load_dword s58, s[4:5], 0''')


def p1_loader(a):
    a('''s_sub_u32 s68, s3, 4             ; lw
         v_lshrrev_b32 v1, 3, v0
         v_and_b32 v2, 7, v0
         v_lshrrev_b32 v3, 4, v0
         v_xor_b32 v2, v2, v3
         v_lshlrev_b32 v2, 4, v2
         v_xor_b32 v9, 64, v2
         s_cmp_eq_u32 s62, 3
         s_cbranch_scc1 L_p1_rowsA
         s_lshl_b32 s4, s63, 7
         s_lshl_b32 s5, s68, 5
         s_add_u32 s4, s4, s5
         v_add_u32 v1, s4, v1
         v_lshl_add_u32 v4, v1, 10, v2
         v_lshl_add_u32 v5, v1, 10, v9
         v_add_u32 v5, 0x1c00, v5
         v_add_u32 v6, 0x3800, v4
         v_add_u32 v7, 0x3800, v5
         L_p1_rowsdone:
         v_and_b32 v2, 15, v0
         v_lshlrev_b32 v9, 2, v3
         v_xor_b32 v2, v2, v9
         v_lshlrev_b32 v2, 4, v2
         s_lshl_b32 s4, s68, 4
         v_add_u32 v3, s4, v3
         v_mul_lo_u32 v3, v3, s66
         v_add3_u32 v8, v3, v2, s67
         v_xor_b32 v9, 32, v8
         s_lshl_b32 s72, s66, 2
         s_sub_u32 s72, s72, 1024
         s_lshl_b32 s73, s66, 6           ; 64*pitch
         s_lshl_b32 s74, s68, 12''')
    srds(a)

    def issue(stage):
        slot = stage & 3
        rm = OPT.get('rot', 3)
        if OPT.get('stag') and 1 <= stage <= 4:
            a(f'''s_cmp_ge_u32 s59, {stage}
                  s_addc_u32 s4, s65, {stage - 1}
                  s_and_b32 s4, s4, 3
                  s_cmp_eq_u32 s59, {stage}
                  s_cselect_b32 s4, s75, s4''')
        else:
            if stage:
                a(f's_add_u32 s4, s65, {stage}')
            a(f's_and_b32 s4, s{4 if stage else 65}, {rm}')
            if stage & ~rm:
                a(f's_or_b32 s4, s4, {stage & ~rm}')
        a(f'''s_add_u32 m0, s74, {slot * 32768}
              s_lshl_b32 s5, s4, 7''')
        for i in range(4):
            a(f'buffer_load_dwordx4 v{4 + i}, s[8:11], s5 offen offset:{i * 1024} lds')
        a(f'''s_add_u32 m0, s74, {slot * 32768 + 16384}
              s_mul_i32 s6, s4, s73''')
        for i in range(4):
            a(f'buffer_load_dwordx4 v{8 + (i >> 1)}, s[12:15], s6 offen offset:{i * 1024} lds')
            if i < 3:
                a('s_add_u32 s6, s6, s72')

    stamp(a, 0)
    issue(0)
    a('''s_branch L_p1_rowsskip
         L_p1_rowsA:
         s_lshl_b32 s4, s63, 5
         s_lshr_b32 s5, s68, 1
         s_lshl_b32 s5, s5, 4
         s_add_u32 s4, s4, s5
         v_add_u32 v1, s4, v1
         s_and_b32 s5, s68, 1
         s_lshl_b32 s6, s5, 10            ; B
         s_lshl_b32 s7, s5, 9
         v_cmp_eq_u32 vcc, 0, v1
         v_mov_b32 v10, s7
         v_add_u32 v11, s6, v1            ; B + s'
         v_cndmask_b32 v10, 0, v10, vcc
         s_add_u32 s6, s6, 1024
         v_sub_u32 v12, s6, v1            ; B + 1024 - s'
         v_add_u32 v13, 7, v11
         v_subrev_u32 v14, 11, v12
         v_sub_u32 v11, v11, v10
         v_sub_u32 v12, v12, v10
         v_subrev_u32 v12, 2, v12
         v_lshl_add_u32 v4, v11, 10, v2
         v_lshl_add_u32 v5, v13, 10, v9
         v_lshl_add_u32 v6, v12, 10, v2
         v_lshl_add_u32 v7, v14, 10, v9
         s_branch L_p1_rowsdone
         L_p1_rowsskip:''')
    roles(a)
    srds_late(a)
    epoch_load(a)
    o_offset(a)
    a(f'''v_and_b32 v1, 11, v0
          v_cmp_eq_u32 vcc, 0, v1
          v_mov_b32 v2, {ONEBF * 0x10001}
          s_mul_i32 s4, s68, 2560
          v_cndmask_b32 v16, 0, v2, vcc
          v_mov_b32 v17, v16
          v_mov_b32 v18, v16
          v_mov_b32 v19, v16
          s_add_u32 s4, s4, {ONES}
          v_add_u32 v1, s4, v{L16}
          ds_write_b128 v1, v[16:19]
          ds_write_b128 v1, v[16:19] offset:1024
          ds_write_b128 v1, v[16:19] offset:1536
          v_mov_b32 v1, {CNT}
          v_mov_b32 v2, 0
          ds_write_b32 v1, v2''')
    attn_setup(a)
    zero_o(a)
    if OPT.get('stag'):
        a(f'''s_lshr_b32 s4, s61, {OPT.get('stsh', 0)}
              s_and_b32 s4, s4, 3
              s_lshl_b32 s4, s4, 2
              s_lshr_b32 s59, {OPT['stag']}, s4
              s_and_b32 s59, s59, 7
              s_and_b32 s75, s65, 3
              s_or_b32 s75, s75, 4''')
    issue(1)
    stamp(a, 1)
    for c in range(8):
        if c == 3:
            stamp(a, 28)
        a(f's_waitcnt vmcnt({[8, 8, 8, 8, 8, 8, 8, 0][c]})')
        if c in (0, 3):
            stamp(a, 2 if c == 0 else 29)
        a('s_barrier')
        stamp(a, 17 + c)
        if c <= 5:
            issue(c + 2)
    a('''s_waitcnt lgkmcnt(0)
         s_barrier''')
    a('s_add_u32 s58, s58, 1            ; nonce')
    stamp(a, 25)
    a(f'''s_lshr_b32 s4, s76, 3
          s_lshl_b32 s4, s4, 5
          s_add_u32 s4, s4, s61
          s_lshl_b32 s4, s4, 11
          s_add_u32 s4, s4, {PFLAGS}
          s_add_u32 s8, s56, s4
          s_addc_u32 s9, s57, 0
          s_mov_b32 s6, 1024
          s_lshl_b32 s70, s76, 16
          s_lshl_b32 s71, s77, 13
          s_add_u32 s70, s70, s71
          s_mov_b32 s71, {QST}
          s_cmp_eq_u32 s68, 1
          s_cselect_b32 s6, 0, s6
          s_cselect_b32 s70, s88, s70
          s_cselect_b32 s71, 0, s71
          s_cmp_eq_u32 s68, 2
          s_cselect_b32 s6, 1160, s6
          s_cselect_b32 s70, s89, s70
          s_cselect_b32 s71, 0x10000, s71
          s_mov_b32 s5, {SPIN}
          s_mov_b32 s59, s58
          s_mov_b32 m0, s71
          s_add_u32 s72, s70, 0x1000
          s_cmp_eq_u32 s68, 3
          s_barrier
          s_cbranch_scc0 L_s1_poll
          L_s1_poll7:                      ; wave 7: the other K, V blocks''')
    regs = [36, 40, 44, 48, 64, 72, 12]
    for i, r in enumerate(regs):
        a(f's_load_dwordx4 s[{r}:{r + 3}], s[8:9], {128 * (i + 1)} glc')
    a('''s_sub_u32 s5, s5, 1
         s_cbranch_scc1 L_p1_join
         s_mov_b64 s[6:7], 0
         s_waitcnt lgkmcnt(0)''')
    for r in regs:
        for h in (0, 2):
            a(f'''s_xor_b64 s[10:11], s[{r + h}:{r + h + 1}], s[58:59]
                  s_or_b64 s[6:7], s[6:7], s[10:11]''')
    a('''s_cbranch_scc1 L_s1_poll7
         s_branch L_p1_join
         L_s1_poll:
         s_load_dwordx2 s[10:11], s[8:9], s6 glc
         s_sub_u32 s5, s5, 1
         s_cbranch_scc1 L_s1_pdone
         s_waitcnt lgkmcnt(0)
         s_cmp_eq_u64 s[10:11], s[58:59]
         s_cbranch_scc0 L_s1_poll
         L_s1_pdone:''')
    stamp(a, 26)
    for i in range(4):
        a(f'buffer_load_dwordx4 v{L16}, s[16:19], s70 offen offset:{i * 1024} sc1 lds')
    a('''s_add_u32 m0, s71, 0x1000
         s_nop 0''')
    for i in range(4):
        a(f'buffer_load_dwordx4 v{L16}, s[16:19], s72 offen offset:{i * 1024} sc1 lds')
    a('s_waitcnt vmcnt(0)')


def p1_compute(a):
    roles(a)
    a('''s_and_b32 s68, s3, 1             ; wr
         s_lshr_b32 s69, s3, 1            ; wc
         v_and_b32 v1, 15, v0
         v_lshrrev_b32 v2, 4, v0          ; g
         v_lshrrev_b32 v3, 1, v1
         v_xor_b32 v3, v3, v2
         v_lshlrev_b32 v3, 4, v3
         v_lshl_add_u32 v3, v1, 7, v3
         s_lshl_b32 s4, s68, 13
         v_add_u32 v4, s4, v3
         v_xor_b32 v5, 64, v4
         v_bfe_u32 v10, v0, 2, 2          ; r
         v_lshl_add_u32 v11, v2, 3, v10   ; 8g + r
         v_lshlrev_b32 v11, 8, v11
         v_lshlrev_b32 v10, 1, v10
         v_and_b32 v12, 1, v2
         v_or_b32 v10, v10, v12           ; z
         s_lshl_b32 s4, s69, 2
         v_xor_b32 v10, s4, v10
         v_lshl_add_u32 v11, v10, 5, v11
         v_and_b32 v10, 3, v0
         v_lshl_add_u32 v11, v10, 3, v11
         v_add_u32 v6, 16384, v11
         v_xor_b32 v7, 32, v6
         v_xor_b32 v8, 64, v6
         v_xor_b32 v9, 96, v6''')
    for i in range(32):
        a(f'v_mov_b64 {vr(128 + 2 * i, 2)}, 0')
    o_offset(a)
    a('s_waitcnt lgkmcnt(0)')
    stamp(a, 0)
    srds_late(a)
    epoch_load(a)
    if OPT.get('warm', 1):
        a(f'''s_cmp_eq_u32 s3, 1
              s_cbranch_scc0 L_p1_nowarm
              s_lshr_b32 s4, s76, 3
              s_lshl_b32 s4, s4, 5
              s_add_u32 s4, s4, s61
              s_lshl_b32 s4, s4, 11
              s_add_u32 s4, s4, {PFLAGS}
              v_lshlrev_b32 v1, 7, v0
              v_mov_b32 v2, 0
              s_mov_b64 exec, 0x3ff
              buffer_atomic_add v2, v1, s[16:19], s4 offen sc1
              s_mov_b64 exec, -1
              L_p1_nowarm:''')

    def rset(st):
        return 32 + 32 * st

    def reads(st, slot, ks):
        b = rset(st)
        L = []
        for i in range(4):
            L.append(f'ds_read_b128 {vr(b + 4 * i)}, v{4 + ks} offset:{slot * 32768 + i * 2048}')
            L.append(f'ds_read_b64_tr_b16 {vr(b + 16 + 4 * i, 2)}, v{6 + i} offset:{slot * 32768 + ks * 8192}')
            L.append(f'ds_read_b64_tr_b16 {vr(b + 18 + 4 * i, 2)}, v{6 + i} offset:{slot * 32768 + ks * 8192 + 1024}')
        return L

    def step(st, T, rd, extra=(), patch=False):
        b = rset(st)
        rd = list(rd)
        extra = list(extra)
        order = [(rt, ct) for ct in ((1, 2, 3, 0) if patch else range(4)) for rt in range(4)]
        for n, (rt, ct) in enumerate(order):
            acc = vr(128 + 16 * rt + 4 * ct)
            x, w = vr(b + 4 * rt), vr(b + 16 + 4 * ct)
            a(f'v_mfma_f32_16x16x32_bf16 {acc}, {w if T else x}, {x if T else w}, {acc}')
            for _ in range(2):
                if rd:
                    a(rd.pop(0))
            if patch and n < 4:
                a(f'v_cndmask_b32 v{b + 16 + n}, v{b + 16 + n}, v14, s[54:55]')
            if not rd and n >= 7 and extra:
                a(extra.pop(0))
        a('s_waitcnt lgkmcnt(0)')

    def mfma(st, T, rt, ct):
        b = rset(st)
        acc = vr(128 + 16 * rt + 4 * ct)
        x, w = vr(b + 4 * rt), vr(b + 16 + 4 * ct)
        a(f'v_mfma_f32_16x16x32_bf16 {acc}, {w if T else x}, {x if T else w}, {acc}')

    def epi(ct, pk):
        L = []
        for rp in range(2):
            d = 192 + 4 * (2 * ct + rp)
            for u in range(2):
                src = 128 + 16 * (2 * rp + u) + 4 * ct
                if pk:
                    L += [f'v_pk_mul_f32 {vr(src + i, 2)}, {vr(src + i, 2)}, s[52:53]' for i in (0, 2)]
                else:
                    L += [f'v_mul_f32 v{src + i}, s52, v{src + i}' for i in range(4)]
            for i in range(2):
                for u in range(2):
                    src = 128 + 16 * (2 * rp + u) + 4 * ct
                    L.append(f'v_cvt_pk_bf16_f32 v{d + 2 * u + i}, v{src + 2 * i}, v{src + 2 * i + 1}')
            L += [f'v_permlane16_swap_b32 v{d}, v{d + 2}',
                  f's_nop 0\nv_permlane16_swap_b32 v{d + 1}, v{d + 3}',
                  f'buffer_store_dwordx4 {vr(d)}, v{12 + rp}, s[16:19], s73 offen sc1' + ('\ns_add_u32 s73, s73, s74' if rp and ct < 3 else '')]
        return L

    def loop(T, tag):
        stamp(a, 2)
        a('s_barrier')
        stamp(a, 17)
        for r in reads(0, 0, 0):
            a(r)
        a(f'''s_waitcnt lgkmcnt(0)
              .p2align 3
              L_p1_loop{tag}:''')
        P = tag == 'A'
        step(0, T, reads(1, 0, 1), [], P)
        a('s_barrier')
        step(1, T, reads(0, 1, 0), [] if P else ['s_sub_u32 s70, s70, 1'], P)
        if not P:
            a(f's_cbranch_scc1 L_p1_last{tag}')
        step(0, T, reads(1, 1, 1), [f'v_xor_b32 v{r}, 0x10000, v{r}' for r in range(4, 10)], P)
        a('s_barrier')
        step(1, T, reads(0, 0, 0), ['s_sub_u32 s70, s70, 1'] if P else [], P)
        if P:
            a('s_cbranch_scc0 L_p1_loopA')
            stamp(a, 3)
            return
        a(f's_branch L_p1_loop{tag}')
        a(f'L_p1_last{tag}:')
        rd = reads(1, 1, 1)
        for ct in range(2):
            for rt in range(4):
                mfma(0, T, rt, ct)
                for _ in range(3):
                    if rd:
                        a(rd.pop(0))
        a('''s_waitcnt lgkmcnt(0)
             s_barrier''')
        seq = [(1, 0), (1, 1), (0, 2), (1, 2), (0, 3), (1, 3)]
        pend, ready = [], {1: 0, 2: 1, 4: 2}
        PER = OPT.get('eper', 2)
        for k, (st, ct) in enumerate(seq):
            for rt in range(4):
                mfma(st, T, rt, ct)
                if rt == 1 and k in ready:
                    if not pend:
                        a('s_nop 3')
                    pend += epi(ready[k], False)
                for _ in range(PER):
                    if pend:
                        a(pend.pop(0))
        stamp(a, 3)
        n = len(pend)
        for x in pend:
            a(x)
        if n < 8:
            a(f's_nop {7 - n}')
        for x in epi(3, True):
            a(x)
        a('s_barrier')

    attn_setup(a)
    a('''s_cmp_eq_u32 s62, 3
         s_cbranch_scc1 L_p1_A''')
    a(f'''s_cmp_eq_u32 s62, 2
          s_cselect_b32 s52, {f2u(2.0 ** VLOG)}, 1.0
          s_cselect_b32 s73, 1024, 0
          s_cselect_b32 s7, 12, 0
          s_add_u32 s73, s73, {KV}
          s_cmp_eq_u32 s62, 0
          s_cselect_b32 s52, {f2u(CSCALE)}, s52
          s_cselect_b32 s71, 16, 17
          s_cselect_b32 s72, 10, 11
          s_cselect_b32 s73, {QF}, s73
          s_mov_b32 s53, s52
          s_lshl_b32 s4, s64, 3
          s_lshl_b32 s5, s69, 2
          s_add_u32 s4, s4, s5             ; head0
          s_lshl_b32 s4, s4, s71
          s_lshl_b32 s5, s63, 2
          s_lshl_b32 s6, s68, 1
          s_add_u32 s5, s5, s6             ; tile0
          s_lshl_b32 s5, s5, s72
          s_add_u32 s73, s73, s4
          s_add_u32 s73, s73, s5
          s_lshl_b32 s74, 1, s71
          s_lshl_b32 s75, 1, s72
          v_lshrrev_b32 v1, 1, v0
          v_xor_b32 v1, v1, v0
          v_and_b32 v1, 4, v1
          v_mul_u32_u24 v1, 3, v1
          v_and_b32 v1, s7, v1
          v_xor_b32 v1, v1, v0
          v_lshlrev_b32 v12, 4, v1
          v_add_u32 v13, s75, v12
          s_mov_b32 s70, 3''')
    if OPT.get('pw') == 1:
        a('''v_and_b32 v1, 7, v0
             v_bfe_u32 v2, v0, 3, 1
             v_lshrrev_b32 v3, 4, v0
             v_lshlrev_b32 v1, 7, v1
             v_lshl_add_u32 v1, v2, s72, v1
             v_lshl_add_u32 v1, v3, s71, v1
             buffer_store_dword v128, v1, s[16:19], s73 offen sc1''')
    if OPT.get('pw') == 2:
        a('s_mov_b32 s4, s73')
        for ct in range(4):
            a(f'''buffer_store_dwordx4 v[128:131], v12, s[16:19], s4 offen sc1
                  buffer_store_dwordx4 v[128:131], v13, s[16:19], s4 offen sc1
                  s_add_u32 s4, s4, s74''')
    a(f'''s_setprio {OPT.get('cprio', 1)}
          s_cmp_eq_u32 s62, 2
          s_cbranch_scc1 L_p1_N''')
    loop(True, 'T')
    a('''s_branch L_p1_cdone
         L_p1_N:''')
    loop(False, 'N')
    a('''s_branch L_p1_cdone
         L_p1_A:''')
    a(f'''v_lshrrev_b32 v1, 2, v0
          v_and_b32 v2, 3, v0
          v_lshlrev_b32 v3, 4, v2
          v_lshl_add_u32 v15, v1, 10, v3
          v_lshrrev_b32 v3, 4, v0
          v_bfe_u32 v10, v0, 2, 2
          v_lshl_add_u32 v3, v3, 3, v10
          v_lshlrev_b32 v3, 6, v3
          v_lshl_add_u32 v3, v2, 3, v3
          s_lshl_b32 s71, s3, 11
          s_add_u32 s71, s71, {QST}
          v_add_u32 v20, s71, v3
          s_lshl_b32 s6, s64, 2
          s_add_u32 s6, s6, s3
          s_lshl_b32 s4, s63, 15
          s_lshl_b32 s5, s6, 6
          s_add_u32 s72, s4, s5
          s_mov_b32 m0, s71
          s_add_u32 s73, s72, 0x3c00
          buffer_load_dwordx4 v15, s[32:35], s72 offen lds
          buffer_load_dwordx4 v15, s[32:35], s73 offen offset:1024 lds
          s_lshl_b32 s6, s6, 15
          s_lshl_b32 s70, s63, 10
          s_add_u32 s70, s70, s6
          s_add_u32 s92, s70, {WOF}        ; destination
          s_lshl_b32 s4, s64, 1
          s_add_u32 s4, s4, s69
          s_cmp_eq_u32 s4, 4
          s_cselect_b32 s54, 0x10001, 0
          s_mov_b32 s55, s54
          v_mov_b32 v14, 0xbf803f80
          s_mov_b32 s70, 3''')
    loop(False, 'A')
    a(f'''s_waitcnt vmcnt(0)
          ds_read_b64_tr_b16 v[24:25], v20
          ds_read_b64_tr_b16 v[26:27], v20 offset:256
          ds_read_b64_tr_b16 v[28:29], v20 offset:32
          ds_read_b64_tr_b16 v[30:31], v20 offset:288
          s_add_u32 s4, s92, 0x4000
          s_waitcnt lgkmcnt(0)
          s_barrier
          buffer_store_dwordx4 v[24:27], v{L16}, s[16:19], s92 offen sc1
          buffer_store_dwordx4 v[28:31], v{L16}, s[16:19], s4 offen sc1''')
    a(f'''s_cmp_lt_u32 s64, 2
          s_cselect_b32 s70, 1.0, -1.0
          v_mov_b32 v10, s70
          v_mov_b32 v11, s70
          s_lshl_b32 s4, s64, 1
          s_add_u32 s4, s4, s69
          s_cmp_eq_u32 s4, 4
          s_cselect_b32 s5, 0x10001, 0
          s_mov_b32 vcc_lo, s5
          s_mov_b32 vcc_hi, s5
          v_mov_b32 v3, 1.0
          v_cndmask_b32 v10, v10, v3, vcc
          s_lshl_b32 s5, s63, 1
          s_add_u32 s5, s5, s68
          s_cmp_eq_u32 s5, 0
          s_cbranch_scc0 L_p1_noR
          s_lshl_b32 s6, s4, 8
          s_add_u32 s6, s6, {RR}
          v_lshlrev_b32 v2, 2, v0
          s_mov_b64 exec, 0xffff''')
    for ct in range(4):
        a(f'''v_fma_f32 v{12 + ct}, v{10 if ct == 0 else 11}, v{176 + 4 * ct}, v{160 + 4 * ct}
              v_mov_b32 v{160 + 4 * ct}, 0
              v_mov_b32 v{176 + 4 * ct}, 0
              buffer_store_dword v{12 + ct}, v2, s[16:19], s6 offen offset:{ct * 64} sc1''')
    a(f'''s_mov_b64 exec, -1
          L_p1_noR:
          s_lshr_b32 s6, s64, 1
          s_lshl_b32 s6, s6, 19
          s_and_b32 s4, s4, 3
          s_lshl_b32 s4, s4, 16
          s_lshl_b32 s5, s5, 10
          s_add_u32 s73, s4, s5
          s_add_u32 s73, s73, s6
          s_add_u32 s73, s73, {EO}
          s_add_u32 s74, s73, 0x40000''')
    for cp in range(2):
        for u in range(2):
            ct = 2 * cp + u
            sg = 10 if ct == 0 else 11
            for i in range(4):
                a0, a1, a2, a3 = (128 + 16 * k + 4 * ct + i for k in range(4))
                a(f'''v_fmac_f32 v{a0}, v{sg}, v{a3}
                      v_fmac_f32 v{a1}, v{sg}, v{a2}''')
            for i in range(4):
                a0, a1, a2, a3 = (128 + 16 * k + 4 * ct + i for k in range(4))
                a(f'''v_fma_f32 v{a2}, v{sg}, v{a1}, v{a0}
                      v_fma_f32 v{a3}, -v{sg}, v{a1}, v{a0}''')
        for par in range(2):
            d = 32 + 4 * (2 * cp + par)
            for u in range(2):
                src = 160 + 16 * par + 4 * (2 * cp + u)
                for i in range(2):
                    a(f'v_cvt_pk_bf16_f32 v{d + 2 * u + i}, v{src + 2 * i}, v{src + 2 * i + 1}')
            a(f'''s_nop 1
                  v_permlane16_swap_b32 v{d}, v{d + 2}
                  v_permlane16_swap_b32 v{d + 1}, v{d + 3}
                  buffer_store_dwordx4 {vr(d)}, v{L16}, s[16:19], s{73 + par} offen sc1''')
        if cp == 0:
            a('''s_add_u32 s73, s73, 0x8000
                 s_add_u32 s74, s74, 0x8000''')
    a('L_p1_cdone:')


def attn_setup(a):
    srds_attn(a)
    a(f'''s_lshl_b32 s4, s79, 16
          v_add_u32 v{KA}, s4, v{L16}
          v_and_b32 v1, 16, v{LN}
          v_cmp_ne_u32 vcc, 0, v1
          v_and_b32 v2, 15, v{LN}
          v_lshlrev_b32 v2, 4, v2
          v_add_u32 v2, {ONES}, v2
          v_cndmask_b32 v{VA}, v{KA}, v2, vcc
          v_mov_b32 v2, 0x2000
          v_cndmask_b32 v{VINC}, v2, 0, vcc
          v_mov_b32 v{IDX}, 0xdddddddd
          v_and_b32 v1, 31, v{LN}
          s_and_b32 s4, s76, 15
          s_lshl_b32 s4, s4, 6
          s_lshr_b32 s83, s76, 4           ; p
          s_add_u32 s84, s4, s83
          v_lshl_add_u32 v1, v1, 1, s84
          v_lshlrev_b32 v1, 12, v1
          v_lshrrev_b32 v2, 5, v{LN}
          v_lshl_add_u32 v1, v2, 4, v1
          s_lshl_b32 s4, s3, 7
          v_add_u32 v{WSA}, s4, v1
          s_lshl_b32 s85, s83, 18
          s_lshl_b32 s4, s77, 15
          s_add_u32 s85, s85, s4
          s_lshl_b32 s4, s3, 12
          s_add_u32 s85, s85, s4
          s_add_u32 s85, s85, {EO}         ; E fragments
          s_add_u32 s86, s85, 0x80000      ; O fragments
          s_lshl_b32 s87, s81, 3
          s_add_u32 s87, s87, s3
          s_lshl_b32 s87, s87, 14
          s_add_u32 s87, s87, {WOF}
          s_lshl_b32 s88, s76, 17
          s_add_u32 s88, s88, {KV}
          s_lshl_b32 s4, s79, 16
          s_add_u32 s89, s88, s4
          s_lshl_b32 s91, s78, 11
          s_add_u32 s90, s89, s91
          s_add_u32 s5, s91, {QST}
          v_add_u32 v{T0}, s5, v{L16}
          s_add_u32 s91, s91, s4
          s_lshl_b32 s4, s64, 6
          s_lshl_b32 s5, s62, 4
          s_add_u32 s4, s4, s5
          s_add_u32 s4, s4, s63
          s_lshl_b32 s4, s4, 4
          s_add_u32 s93, s4, {FLAGS}''')


def zero_o(a):
    for i in range(16):
        a(f'v_mov_b64 {vr(OA + 2 * i, 2)}, 0')


def kv_dma(c):
    return [f's_add_u32 s4, s90, {c * 8192}',
            f's_add_u32 m0, s91, {c * 8192}',
            's_nop 0',
            f'buffer_load_dwordx4 v{L16}, s[16:19], s4 offen sc1 lds',
            f'buffer_load_dwordx4 v{L16}, s[16:19], s4 offen offset:1024 sc1 lds']


def publish1(a):
    a(f'''s_cmp_eq_u32 s62, 3
          s_cbranch_scc1 L_p1_join
          s_and_b32 s4, s63, 7
          s_cmp_eq_u32 s63, 8
          s_cselect_b32 s4, 9, s4
          s_lshl_b32 s4, s4, 7
          s_and_b32 s5, s63, 8
          s_lshl_b32 s6, s62, 2
          s_add_u32 s5, s5, s6
          s_add_u32 s4, s4, s5
          s_sub_u32 s4, s4, 4
          s_and_b32 s5, s63, 1
          s_lshl_b32 s5, s5, 2
          s_lshr_b32 s6, s63, 1
          s_lshl_b32 s6, s6, 13
          s_add_u32 s5, s5, s6
          s_add_u32 s5, s5, 1024
          s_cmp_eq_u32 s62, 0
          s_cselect_b32 s4, s5, s4
          s_cselect_b32 s6, 15, -1
          s_lshl_b32 s5, s64, 16
          s_add_u32 s4, s4, s5
          s_add_u32 s4, s4, {PFLAGS}
          v_lshlrev_b32 v1, 11, v{LN}
          v_mov_b32 v2, s58
          v_mov_b32 v3, {CNT}
          v_mov_b32 v4, 1
          s_mov_b64 exec, 1
          s_waitcnt vmcnt(0)
          ds_add_rtn_u32 v4, v3, v4
          s_waitcnt lgkmcnt(0)
          v_readfirstlane_b32 s5, v4
          s_mov_b32 exec_lo, s6
          s_cmp_eq_u32 s5, 3
          s_cbranch_scc0 L_s1_noflag
          buffer_store_dword v2, v1, s[16:19], s4 offen sc1
          L_s1_noflag:
          s_mov_b64 exec, -1''')


def a2mm(D, x, y, ks):
    return f'v_mfma_f32_32x32x16_bf16 {vr(D, 16)}, {vr(x + 4 * ks)}, {vr(y + 4 * ks)}, {vr(D, 16) if ks else 0}'


CC, SS, X3, X4 = NMA, NMB, SA, SB
MG = 0x8000


def unit(a, tau, b, side, last=False):
    X, Y = (SB, SA) if b else (SA, SB)
    OX, OY = (OB, OA) if b else (OA, OB)
    QY, NY = (QA, NMA) if b else (QB, NMB)
    vo = (tau & 3) * 2048
    side = list(side)
    e = lambda i: a(f'v_exp_f32 v{X + i}, v{X + i}')
    u = 2 * tau + b
    pr = OPT.get('pr', 1)
    p0, p1 = {0: (0, 1), 1: (3 - (u & 3), None), 2: (3 - ((2 * u) & 3), 3 - ((2 * u + 1) & 3)), 3: (None if b else 3 - (tau & 3), None),
              4: (None, None), 5: (2 - 2 * (u & 1), 3 - 2 * (u & 1)), 6: (None, 3 - (u & 3)), 7: (2 - 2 * (tau & 1), 3 - 2 * (tau & 1)),
              8: (2 - (u % 3), 3 - (u % 3)), 9: (1, 0)}[pr]
    if p0 is not None:
        a(f's_setprio {p0}')
    e(0); e(1)
    if b:
        a('s_waitcnt lgkmcnt(0)')
    if b or tau > 0:
        a(f'v_smfmac_f32_32x32x32_bf16 {vr(OY, 16)}, {vr(V1)}, {vr(Y + 8, 8)}, v{IDX}')
    if not b:
        a(f'ds_read_b128 {vr(V1)}, v{VA} offset:{vo + 1280}')
    e(2); e(3); e(4)
    if not (b and last):
        a(f'v_mfma_f32_32x32x16_bf16 {vr(Y, 16)}, {vr(KF)}, {vr(QY)}, {vr(NY, 16)}')
    else:
        a(a2mm(CC, A2C, A2E, 2))
    if not b and not last:
        a(f'ds_read_b128 {vr(KF)}, v{KA} offset:{(tau + 1) * 2048}')
    if p1 is not None:
        a(f's_setprio {p1}')
    for i in range(5, 10):
        e(i)
        if last and i == 7:
            a(a2mm(CC, A2C, A2E, 3 if b else 0))
    if not b:
        a(f's_waitcnt lgkmcnt({1 if last else 2})')
    a(f'v_smfmac_f32_32x32x32_bf16 {vr(OX, 16)}, {vr(V0)}, {vr(X, 8)}, v{IDX}')
    if b and not last:
        a(f'ds_read_b128 {vr(V0)}, v{VA} offset:{vo + 2048 + 1024}')
        if (tau & 3) == 3:
            a(f'v_add_u32 v{VA}, v{VINC}, v{VA}')
    for i in range(10, 16):
        e(i)
        if i == 12:
            for s in side:
                a(s)


def attention(a):
    stamp(a, 4)
    a('s_barrier')
    stamp(a, 6)
    a(f'''ds_read_b128 {vr(QA)}, v{T0}
          ds_read_b128 {vr(V1)}, v{L16}
          ds_read_b128 {vr(QB)}, v{T0} offset:1024
          ds_read_b128 {vr(KF)}, v{KA}
          ds_read_b128 {vr(V0)}, v{VA} offset:1024''')
    for s_ in kv_dma(1):
        a(s_)
    a(f'''s_waitcnt lgkmcnt(3)
          v_mfma_f32_32x32x16_bf16 {vr(SA, 16)}, {vr(V1)}, {vr(QA)}, 0
          s_waitcnt lgkmcnt(2)
          v_mfma_f32_32x32x16_bf16 {vr(SB, 16)}, {vr(V1)}, {vr(QB)}, 0
          v_mov_b64 {vr(A2C, 2)}, -1
          v_mov_b64 {vr(A2C + 2, 2)}, -1''')
    for s_ in kv_dma(2):
        a(s_)
    a(f'''buffer_store_dwordx4 {vr(A2C)}, v{L16}, s[16:19], s82 offen sc1
          s_nop 1''')
    for S, NM, t in ((SA, NMA, T0), (SB, NMB, T1)):
        a(f'v_max3_f32 v{t}, v{S}, v{S + 1}, v{S + 2}')
        for i in range(3, 15, 2):
            a(f'v_max3_f32 v{t}, v{t}, v{S + i}, v{S + i + 1}')
        a(f'''v_max_f32 v{t}, v{t}, v{S + 15}
              v_mov_b32 v{T2}, v{t}
              s_nop 1
              v_permlane32_swap_b32 v{t}, v{T2}
              v_max_f32 v{t}, v{t}, v{T2}
              v_sub_f32 v{NM}, {f2u(-OFFS)}, v{t}
              v_sub_f32 v{NM + 1}, {f2u(-OFFS)}, v{t}''')
        for i in range(2, 16, 2):
            a(f'v_mov_b64 {vr(NM + i, 2)}, {vr(NM, 2)}')
        if S == SA:
            a(f'''s_waitcnt lgkmcnt(0)
                  s_nop 0
                  v_mfma_f32_32x32x16_bf16 {vr(SA, 16)}, {vr(KF)}, {vr(QA)}, {vr(NMA, 16)}''')
    stamp(a, 7)

    side = {}

    def put(tau, b, ins):
        side.setdefault((tau, b), []).extend(ins)

    put(3, 0, ['s_cmp_eq_u32 s3, 0', 's_cbranch_scc0 L_at_noflag2', f'v_mov_b32 v{T0}, s58', 's_mov_b64 exec, 1',
               f'buffer_store_dword v{T0}, v{L16}, s[16:19], s93 offen sc1', 's_mov_b64 exec, -1', 'L_at_noflag2:'])
    for c in range(3, 8):
        put(c, 1, kv_dma(c))
    flag_loads = [f'buffer_load_dword v{A2E + i}, v{L16}, s[16:19], s92 offen offset:{i * 1024} sc1' for i in range(4)]
    put(8, 0, [f's_mov_b32 s92, {FLAGS}'] + flag_loads)
    put(10, 0, ['s_waitcnt vmcnt(0)', 'L_at_fchk:',
                f'v_cmp_ne_u32 vcc, s58, v{A2E}', f'v_cmp_ne_u32 s[4:5], s58, v{A2E + 1}',
                f'v_cmp_ne_u32 s[6:7], s58, v{A2E + 2}', f'v_cmp_ne_u32 s[62:63], s58, v{A2E + 3}',
                's_or_b64 vcc, vcc, s[4:5]', 's_or_b64 s[6:7], s[6:7], s[62:63]', 's_or_b64 vcc, vcc, s[6:7]',
                's_cbranch_vccnz L_at_fretry', 'L_at_fok:'])
    put(10, 1, ['s_or_b32 s4, s2, s3', 's_cmp_eq_u32 s4, 0', 's_cbranch_scc0 L_at_noepoch',
                f's_mov_b32 s4, {EPOCH}', 's_mov_b64 exec, 1',
                f'buffer_store_dword v{A2E}, v{L16}, s[16:19], s4 offen sc1',
                's_mov_b64 exec, -1', 'L_at_noepoch:'])
    loads = []
    for m in range(2):
        for ks in range(4):
            loads.append(f'buffer_load_dwordx4 {vr(A2C + 16 * m + 4 * ks)}, v{WSA}, s[{24 + 4 * m}:{27 + 4 * m}], 0 offen offset:{ks * 32}')
    for m in range(2):
        for ks in range(4):
            loads.append(f'buffer_load_dwordx4 {vr(A2E + 16 * m + 4 * ks)}, v{L16}, s[16:19], s{85 + m} offen offset:{ks * 1024} sc1')
    for ks in range(16):
        pre = 's_add_u32 s87, s87, 0x1000\n' if ks and ks % 4 == 0 else ''
        loads.append(pre + f'buffer_load_dwordx4 {vr(WO + 4 * ks)}, v{L16}, s[16:19], s87 offen offset:{(ks & 3) * 1024} sc1')
    u = 22
    sched = OPT.get('sched', 4)
    if sched == 0:
        for k in range(0, 8, 2):
            put(u >> 1, u & 1, loads[k:k + 2]); u += 1
        for ld in loads[8:]:
            put(u >> 1, u & 1, [ld]); u += 1
    elif sched == 1:
        for ld in loads[8:]:
            put(u >> 1, u & 1, [ld]); u += 1
    elif sched == 2:
        pass
    elif sched == 3:
        for k in range(8, 32, 2):
            put(u >> 1, u & 1, loads[k:k + 2]); u += 1
        for k, uu in enumerate((35, 41, 43, 45, 47, 53, 55, 57)):
            put(uu >> 1, uu & 1, [loads[k]])
    elif sched == 4:
        for k, uu in enumerate((22, 34, 36, 38, 28, 40, 42, 44)):
            put(uu >> 1, uu & 1, [loads[k]])
        u = 45
        for k in range(8, 32, 2):
            put(u >> 1, u & 1, loads[k:k + 2]); u += 1
    put(u >> 1, u & 1, [f'v_and_b32 v{T0}, 31, v{LN}', f'v_lshlrev_b32 v{T0}, 2, v{T0}', f'v_mov_b32 v{T1}, 0',
                        's_lshl_b32 s4, s77, 7', 's_lshl_b32 s5, s83, 10', 's_add_u32 s4, s4, s5',
                        f's_add_u32 s4, s4, {RR}', f's_mov_b32 s5, {RR + 1024}',
                        f'buffer_load_dword v{T0}, v{T0}, s[16:19], s4 offen sc1',
                        f'buffer_load_dword v{T1}, v{T1}, s[16:19], s5 offen sc1'])
    assert u < 60
    put(30, 0, ['s_waitcnt vmcnt(0)', 's_cmp_eq_u32 s76, 0', 's_cbranch_scc0 L_a2_nopatch', 's_mov_b32 exec_lo, 1', 's_mov_b32 exec_hi, 1'] +
        [f'v_mov_b32 v{A2S + i}, 0xbf803f80' for i in range(16)] + ['s_mov_b64 exec, -1', 'L_a2_nopatch:'])
    put(30, 1, ['s_mul_i32 s4, s3, 2304', f's_add_u32 m0, s4, {MG}', 's_xor_b32 s5, s3, 4', 's_mul_i32 s5, s5, 2304',
                f's_add_u32 s70, s5, {MG}', f"s_mov_b32 s71, {0 if OPT.get('forcefb') else f2u(2.0 ** 120)}"])
    put(31, 0, [a2mm(CC, A2C, A2E, 1)])
    put(31, 1, [a2mm(SS, A2S, A2O, 0), 's_cmp_eq_u32 s79, 0'])
    a('.p2align 3')
    for tau in range(32):
        if tau == 3:
            a('s_waitcnt vmcnt(0)\ns_barrier')
            stamp(a, 8)
        if tau == 11:
            a('s_barrier')
            stamp(a, 9)
        for b in range(2):
            unit(a, tau, b, side.get((tau, b), []), last=(tau == 31))
    a(f'''s_setprio 0
          s_cbranch_scc1 L_mg_k0''')
    R = KF
    for kh in (1, 0):
        snd, kp = (OA, OB) if kh else (OB, OA)
        if kh == 0:
            a('L_mg_k0:')
        a(f'v_smfmac_f32_32x32x32_bf16 {vr(OB, 16)}, {vr(V1)}, {vr(SB + 8, 8)}, v{IDX}')
        stamp(a, 10)
        if kh == 0:
            a('s_nop 11')
        for i in range(9):
            a(f'ds_write_addtid_b32 v{snd + i} offset:{MG + i * 256}')
        a(a2mm(SS, A2S, A2O, 1))
        a('''s_mov_b32 m0, s70
             s_waitcnt lgkmcnt(0)
             s_barrier''')
        for i in (8, 0, 1, 2, 3, 4, 5, 6, 7):
            a(f'ds_read_addtid_b32 v{R + i} offset:{MG + i * 256}')
        a(a2mm(SS, A2S, A2O, 2))
        a(f'''s_waitcnt lgkmcnt(8)
              v_add_f32 v{R + 8}, v{R + 8}, v{kp + 8}
              v_rcp_f32 v{R + 10}, v{R + 8}''')
        for i in range(4):
            a(f'''s_waitcnt lgkmcnt({6 - 2 * i})
                  v_pk_add_f32 {vr(R + 2 * i, 2)}, {vr(R + 2 * i, 2)}, {vr(kp + 2 * i, 2)}''')
        if kh:
            a('s_branch L_mg_j')
    a('L_mg_j:')
    for i in range(4):
        a(f'v_pk_mul_f32 {vr(R + 2 * i, 2)}, {vr(R + 2 * i, 2)}, {vr(R + 10, 2)} op_sel_hi:[1,0]')
    for i in range(4):
        a(f'v_cvt_pk_bf16_f32 v{OB + i}, v{R + 2 * i}, v{R + 2 * i + 1}')
    for i in range(4):
        a(f'v_dot2c_f32_bf16 v{R + 8}, v{OB + i}, v{OB + i}')
    a(a2mm(SS, A2S, A2O, 3))
    a(f'''s_nop 1
          v_cmp_ngt_f32 vcc, s71, v{R + 8}
          s_cbranch_vccnz L_fallback
          L_at_final:
          buffer_store_dwordx4 {vr(OB)}, v{L16}, s[16:19], s82 offen sc1''')
    stamp(a, 11)
    return flag_loads


def cold_paths(a, flag_loads):
    a(f'''L_at_fretry:
          s_mov_b32 s93, {SPIN}
          L_at_fretry2:''')
    for s in flag_loads:
        a(s)
    a(f'''s_waitcnt vmcnt(0)
          v_cmp_ne_u32 vcc, s58, v{A2E}
          v_cmp_ne_u32 s[4:5], s58, v{A2E + 1}
          v_cmp_ne_u32 s[6:7], s58, v{A2E + 2}
          v_cmp_ne_u32 s[62:63], s58, v{A2E + 3}
          s_or_b64 vcc, vcc, s[4:5]
          s_or_b64 s[6:7], s[6:7], s[62:63]
          s_or_b64 vcc, vcc, s[6:7]
          s_cbranch_vccz L_at_fok
          s_sub_u32 s93, s93, 1
          s_cbranch_scc0 L_at_fretry2
          s_branch L_at_fok''')
    a(f'''L_fallback:
          s_cmp_eq_u32 s79, 0
          s_cbranch_scc1 L_fb_q
          v_mov_b64 {vr(QA, 2)}, {vr(QB, 2)}
          v_mov_b64 {vr(QA + 2, 2)}, {vr(QB + 2, 2)}
          L_fb_q:
          v_mov_b32 v{SB}, 0xff800000
          s_mov_b32 s4, s88
          s_mov_b32 s5, 64
          L_fb_max:
          buffer_load_dwordx4 {vr(KF)}, v{L16}, s[16:19], s4 offen sc1
          s_waitcnt vmcnt(0)
          v_mfma_f32_32x32x16_bf16 {vr(SA, 16)}, {vr(KF)}, {vr(QA)}, 0
          s_nop 11''')
    for i in range(0, 16, 2):
        a(f'v_max3_f32 v{SB}, v{SB}, v{SA + i}, v{SA + i + 1}')
    a(f'''s_add_u32 s4, s4, 2048
          s_sub_u32 s5, s5, 1
          s_cmp_lg_u32 s5, 0
          s_cbranch_scc1 L_fb_max
          v_mov_b32 v{SB + 1}, v{SB}
          s_nop 1
          v_permlane32_swap_b32 v{SB}, v{SB + 1}
          v_max_f32 v{SB}, v{SB}, v{SB + 1}
          v_sub_f32 v{SB}, {f2u(-float(VLOG))}, v{SB}''')
    for i in range(1, 16):
        a(f'v_mov_b32 v{SB + i}, v{SB}')
    for i in range(16):
        a(f'v_mov_b32 v{OA + i}, 0')
    for i in range(8):
        a(f'v_mov_b32 v{V0 + i}, {ONEBF * 0x10001}')
    a(f'''s_mov_b32 s4, s88
          s_mov_b32 s5, 64
          s_mov_b32 s6, 0xffff
          s_mov_b32 s7, 0xffff
          L_fb_pv:
          buffer_load_dwordx4 {vr(KF)}, v{L16}, s[16:19], s4 offen sc1
          s_mov_b64 exec, s[6:7]
          buffer_load_dwordx4 {vr(V0)}, v{L16}, s[16:19], s4 offen offset:1024 sc1
          buffer_load_dwordx4 {vr(V1)}, v{L16}, s[16:19], s4 offen offset:1280 sc1
          s_mov_b64 exec, -1
          s_waitcnt vmcnt(0)
          v_mfma_f32_32x32x16_bf16 {vr(SA, 16)}, {vr(KF)}, {vr(QA)}, {vr(SB, 16)}
          s_nop 11''')
    for i in range(16):
        a(f'v_exp_f32 v{SA + i}, v{SA + i}')
    a(f'''s_nop 1
          v_smfmac_f32_32x32x32_bf16 {vr(OA, 16)}, {vr(V0)}, {vr(SA, 8)}, v{IDX}
          v_smfmac_f32_32x32x32_bf16 {vr(OA, 16)}, {vr(V1)}, {vr(SA + 8, 8)}, v{IDX}
          s_add_u32 s4, s4, 2048
          s_sub_u32 s5, s5, 1
          s_cmp_lg_u32 s5, 0
          s_cbranch_scc1 L_fb_pv
          s_nop 11
          v_rcp_f32 v{SB}, v{OA + 8}
          s_nop 0''')
    for i in range(8):
        a(f'v_mul_f32 v{OA + i}, v{SB}, v{OA + i}')
    for i in range(4):
        a(f'v_cvt_pk_bf16_f32 v{OB + i}, v{OA + 2 * i}, v{OA + 2 * i + 1}')
    for i in range(4):
        a(f'v_min_u32 v{OB + i}, -2, v{OB + i}')
    a('s_branch L_at_final')


def tail(a):
    OST, XP = 0x18000, 0x16000
    PA, XA3, XA4, SA0, CO, OSR, OUTA, VRA = 96, 97, 98, 100, 106, 109, 110, 111
    gather = [f'buffer_load_dwordx4 v{L16}, s[16:19], s70 offen offset:{i * 1024} sc1 lds' for i in range(4)]
    gp = OPT.get('gp', 2)
    a(f'''s_lshl_b32 s4, s3, 13
          v_add_u32 v64, s4, v{L16}
          s_mul_i32 s73, s76, s77
          s_lshl_b32 s4, s80, 15
          s_lshl_b32 s5, s3, 12
          s_add_u32 s70, s4, s5
          s_add_u32 s70, s70, {OF}
          s_add_u32 s5, s5, {OST}
          s_mov_b32 m0, s5
          v_add_u32 v{VRA}, s5, v{L16}''')
    calc = (f'''s_lshl_b32 s4, s3, 7
          s_add_u32 s4, s4, {XP}
          v_lshl_add_u32 v66, v{LN}, 2, s4
          v_lshrrev_b32 v67, 5, v{LN}
          v_and_b32 v71, 31, v{LN}
          s_lshl_b32 s6, s3, 9
          v_lshl_add_u32 v{PA}, v71, 4, s6
          v_lshl_add_u32 v{PA}, v67, 12, v{PA}   ; partial read address
          s_lshl_b32 s6, s3, 2
          v_lshl_add_u32 v73, v67, 1, s6         ; tl (even)
          v_lshlrev_b32 v{XA3}, 2, v73
          v_add_u32 v{XA3}, {XP}, v{XA3}
          v_lshlrev_b32 v{XA4}, 2, v71
          v_add_u32 v{XA4}, {XP + 1024}, v{XA4}
          s_lshl_b32 s4, s80, 5
          v_add_u32 v{OUTA}, s4, v71
          v_lshlrev_b32 v{OUTA}, 11, v{OUTA}
          v_lshl_add_u32 v{OUTA}, v67, 4, v{OUTA}   ; out offset
          s_lshl_b32 s4, s77, 5
          v_add_u32 v71, s4, v71           ; e
          v_lshl_add_u32 v73, v73, 1, s84  ; t0 ; t1 = t0 + 2
          v_cmp_eq_u32 s[74:75], 0, v73
          v_cmp_eq_u32 s[64:65], 0, v71
          v_sub_u32 v84, 0x800, v73
          v_mov_b32 v85, 0x400
          v_cndmask_b32 v85, v84, v85, s[74:75]   ; row2 of t0
          v_subrev_u32 v84, 2, v84                ; row2 of t1
          v_sub_u32 v86, 0x200, v71
          v_mov_b32 v87, 0x100
          v_cndmask_b32 v86, v86, v87, s[64:65]   ; col2
          v_lshlrev_b32 v87, 1, v71
          v_lshlrev_b32 v86, 1, v86
          v_lshl_add_u32 v{SA0}, v73, 11, v87
          v_lshl_add_u32 v{SA0 + 1}, v73, 11, v86
          v_lshl_add_u32 v{SA0 + 2}, v85, 11, v87
          v_lshl_add_u32 v{SA0 + 3}, v85, 11, v86
          v_lshl_add_u32 v{SA0 + 4}, v84, 11, v87
          v_lshl_add_u32 v{SA0 + 5}, v84, 11, v86
          s_cmp_eq_u32 s83, 0
          s_cselect_b64 vcc, -1, 0
          v_cndmask_b32 v{CO}, 0, v{T0}, vcc          ; cos correction
          v_cndmask_b32 v{CO + 1}, 0, v{T1}, vcc      ; column-256 correction
          v_cndmask_b32 v{CO + 2}, v{T0}, 0, vcc      ; sin correction
          s_or_b64 s[66:67], s[74:75], s[64:65]
          s_and_b64 s[68:69], s[74:75], s[64:65]
          s_mov_b32 s71, 4096
          v_lshrrev_b32 v65, 4, v{LN}      ; g
          v_and_b32 v88, 15, v{LN}
          v_lshlrev_b32 v88, 4, v88
          v_lshl_add_u32 v{OSR}, v65, 9, v88
          v_add_u32 v{OSR}, {OST}, v{OSR}  ; staging read address
          s_lshl_b32 s4, s81, 8
          s_lshl_b32 s5, s3, 5
          s_add_u32 s72, s4, s5
          s_add_u32 s72, s72, 1024
          s_mov_b32 s5, {SPIN}''').split('\n')
    per = (len(calc) + 6) // 7
    for q in range(8):
        a(f'ds_write_b128 v64, {vr(CC + 4 * q)} offset:{q * 1024}')
        if q == 0:
            a('''s_cmp_eq_u32 s73, 0
                 s_cbranch_scc0 L_a2_nox''')
            for ks in range(4):
                a(a2mm(X3, A2O, A2C, ks))
                a(a2mm(X4, A2S, A2E, ks))
            a('L_a2_nox:')
        for x in calc[q * per:(q + 1) * per]:
            a(x)
    a(f'''s_cmp_eq_u32 s73, 0
          s_cbranch_scc0 L_a2_nox2
          s_mov_b32 exec_hi, 0
          ds_write_b32 v66, v{X3}
          ds_write_b32 v66, v{X4} offset:1024
          s_mov_b32 exec_hi, -1
          L_a2_nox2:''')
    a('s_waitcnt lgkmcnt(0)')
    if gp == 2:
        for g in gather:
            a(g)
    a('s_barrier')
    stamp(a, 12)
    for w in range(8):
        a(f'ds_read_b128 {vr(128 + 4 * w)}, v{PA} offset:{w * 8192}')
    if gp == 3:
        for g in gather:
            a(g)
    a('s_cbranch_scc0 L_a2_nox3')
    for w in range(8):
        a(f'''ds_read_b64 {vr(160 + 2 * w, 2)}, v{XA3} offset:{w * 128}
              ds_read_b32 v{176 + w}, v{XA4} offset:{w * 128}''')
    a('L_a2_nox3:')
    V = []
    for step in (4, 2, 1):
        for w in range(step):
            for i in (0, 2):
                if OPT.get('nopk'):
                    V.append('\n'.join(f'v_add_f32 v{128 + 4 * w + i + k}, v{128 + 4 * w + i + k}, v{128 + 4 * (w + step) + i + k}' for k in range(2)))
                else:
                    V.append(f'v_pk_add_f32 {vr(128 + 4 * w + i, 2)}, {vr(128 + 4 * w + i, 2)}, {vr(128 + 4 * (w + step) + i, 2)}')
    X = ['s_cbranch_scc0 L_a2_nox4']
    for step in (4, 2, 1):
        for w in range(step):
            X += [f'v_pk_add_f32 {vr(160 + 2 * w, 2)}, {vr(160 + 2 * w, 2)}, {vr(160 + 2 * (w + step), 2)}',
                  f'v_add_f32 v{176 + w}, v{176 + w}, v{176 + w + step}']
    X += [f'v_add_f32 v160, v160, v{CO + 1}', f'v_sub_f32 v161, v161, v{CO + 1}', f'v_add_f32 v176, v176, v{CO}', 'L_a2_nox4:', 's_nop 0']
    V.append('\n'.join(X))
    V += f'''v_permlane32_swap_b32 v128, v130
         v_permlane32_swap_b32 v129, v131
         v_add_f32 v128, v128, v{CO}
         v_sub_f32 v129, v129, v{CO}
         v_add_f32 v177, v130, v{CO + 1}
         v_sub_f32 v130, v130, v{CO + 2}
         v_add_f32 v131, v131, v{CO + 2}
         v_cndmask_b32 v130, v130, 0, s[66:67]
         v_cndmask_b32 v131, v131, 0, s[64:65]
         v_sub_f32 v132, v128, v130
         v_sub_f32 v134, v129, v131
         v_add_f32 v133, v128, v130
         v_add_f32 v135, v129, v131
         v_cvt_pk_bf16_f32 v144, v132, v134
         buffer_store_short v144, v{SA0}, s[20:23], 0 offen
         v_cndmask_b32 v136, v133, v160, s[64:65]
         buffer_store_short_d16_hi v144, v{SA0}, s[20:23], s71 offen
         v_cndmask_b32 v139, v135, v161, s[64:65]
         v_cvt_pk_bf16_f32 v145, v136, v139
         v_cndmask_b32 v137, v133, v176, s[74:75]
         buffer_store_short v145, v{SA0 + 1}, s[20:23], 0 offen
         v_cvt_pk_bf16_f32 v146, v137, v135
         buffer_store_short_d16_hi v145, v{SA0 + 1}, s[20:23], s71 offen
         v_cndmask_b32 v138, v132, v160, s[64:65]
         buffer_store_short v146, v{SA0 + 2}, s[20:23], 0 offen
         v_cndmask_b32 v138, v138, v176, s[74:75]
         buffer_store_short_d16_hi v146, v{SA0 + 4}, s[20:23], 0 offen
         v_cndmask_b32 v138, v138, v177, s[68:69]
         v_cndmask_b32 v140, v134, v161, s[64:65]
         v_cvt_pk_bf16_f32 v147, v138, v140
         buffer_store_short v147, v{SA0 + 3}, s[20:23], 0 offen
         buffer_store_short_d16_hi v147, v{SA0 + 5}, s[20:23], 0 offen'''.split('\n')
    a('s_waitcnt lgkmcnt(0)')
    for x in V:
        a(x)
    stamp(a, 13)
    a('''s_waitcnt vmcnt(8)
         L_op_chk:''')
    for i in range(4):
        a(f'ds_read_b128 {vr(48 + 4 * i)}, v{VRA} offset:{i * 1024}')
    a('''s_waitcnt lgkmcnt(3)
         v_max3_u32 v84, v48, v49, v50
         s_waitcnt lgkmcnt(2)
         v_max3_u32 v84, v84, v51, v52
         v_max3_u32 v84, v84, v53, v54
         s_waitcnt lgkmcnt(1)
         v_max3_u32 v84, v84, v55, v56
         v_max3_u32 v84, v84, v57, v58
         s_waitcnt lgkmcnt(0)
         v_max3_u32 v84, v84, v59, v60
         v_max3_u32 v84, v84, v61, v62
         v_max_u32 v84, v84, v63
         v_cmp_eq_u32 vcc, -1, v84
         s_cbranch_vccnz L_op_retry
         L_op_ok:
         s_barrier''')
    stamp(a, 14)
    NB = 12
    rd = lambda n: a(f'ds_read_b128 {vr(4 * (n % NB))}, v{OSR} offset:{(n >> 1) * 2048 + (n & 1) * 256}')
    for n in range(NB - 2):
        rd(n)
    for n in range(32):
        nxt = n + NB - 2
        if nxt < 32:
            rd(nxt)
        out = min(31, nxt) - n
        acc = vr(72 + 4 * (n & 1))
        a(f'''s_waitcnt lgkmcnt({out})
              v_mfma_f32_16x16x32_bf16 {acc}, {vr(WO + 4 * (n >> 1))}, {vr(4 * (n % NB))}, {acc if n >= 2 else 0}''')
    a(f'''s_nop 7
          v_cvt_pk_bf16_f32 v80, v72, v73
          v_cvt_pk_bf16_f32 v81, v74, v75
          v_cvt_pk_bf16_f32 v82, v76, v77
          v_cvt_pk_bf16_f32 v83, v78, v79
          s_nop 1
          v_permlane16_swap_b32 v80, v82
          v_permlane16_swap_b32 v81, v83
          buffer_store_dwordx4 v[80:83], v{OUTA}, s[20:23], s72 offen''')
    stamp(a, 15)
    if OPT['stamps']:
        a('s_waitcnt vmcnt(0)')
    stamp(a, 16)
    stamp_dump(a)
    return gather


def build():
    a = A()
    prologue(a)
    a('''s_cmp_ge_u32 s3, 4
         s_cbranch_scc0 L_p1_compute''')
    p1_loader(a)
    a('''s_branch L_p1_join
         L_p1_compute:''')
    p1_compute(a)
    stamp(a, 25)
    a('s_add_u32 s58, s58, 1            ; nonce')
    zero_o(a)
    publish1(a)
    a('L_p1_join:\ns_setprio 0')
    fl = attention(a)
    gather = tail(a)
    a('''L_end:
         s_endpgm
         L_op_retry:
         s_sub_u32 s5, s5, 1
         s_cbranch_scc1 L_op_ok''')
    for g in gather:
        a(g)
    a('s_waitcnt vmcnt(0)\ns_branch L_op_chk')
    cold_paths(a, fl)
    a('L_code_end:')
    a('s_endpgm')
    return a.text()


def main(path):
    hdr = ''.join(l for l in open(f'cdna_kernels/{NAME}.s.ref') if l.startswith(';') and '@launch' not in l)
    out = hdr + f'; @launch grid=(256,1,1) block=(512,1,1) lds={LDS_BYTES}\n'
    out += f'''.amdgcn_target "amdgcn-amd-amdhsa--gfx950"
.text
.globl {NAME}_kernel
.p2align {OPT.get('al', 8)}
.type {NAME}_kernel,@function
{NAME}_kernel:
'''
    out += build()
    out += f'''.section .rodata,"a"
.p2align 6
.amdhsa_kernel {NAME}_kernel
  .amdhsa_next_free_vgpr 256
  .amdhsa_next_free_sgpr {98 if OPT['stamps'] else 96}
  .amdhsa_accum_offset 256
  .amdhsa_group_segment_fixed_size 0
  .amdhsa_kernarg_size 88
  .amdhsa_user_sgpr_count 2
  .amdhsa_user_sgpr_kernarg_segment_ptr 1
  .amdhsa_system_sgpr_workgroup_id_x 1
.end_amdhsa_kernel
'''
    open(path, 'w').write(out)


if __name__ == '__main__':
    for x in sys.argv[1:]:
        if x.startswith('--'):
            k, _, v = x[2:].partition('=')
            OPT[k] = (int(v, 0) if v[0].isdigit() else v) if v else True
    args = [x for x in sys.argv[1:] if not x.startswith('--')]
    main(args[0] if args else f'cdna_kernels/{NAME}.s')
```

```python
import math, struct, sys

NAME = 'concat_heads__spectral_fnet__softmax_full_mha__prompt'
QF, KV, EO, OF, WOF, RR, FLAGS, EPOCH, STAMP, WS_SIZE = (
    0, 0x200000, 0x600000, 0x700000, 0x900000, 0x980000, 0x990000, 0x9A0000, 0x9C0000, 0xB00000)
PFLAGS = 0xA00000
OFFS = 100.0
VLOG = 40
CSCALE = 0.25 * math.log2(math.e)
ONEBF = (127 + VLOG) << 7
SPIN = 400000
OPT = dict(stamps=False, cyc=False, stag=0x4242, stsh=2)


def f2u(x):
    return struct.unpack('<I', struct.pack('<f', x))[0]


class A:
    def __init__(self):
        self.l = []

    def __call__(self, s):
        for ln in s.strip('\n').split('\n'):
            ln = ln.strip()
            if not ln:
                continue
            self.l.append(ln if ln.endswith(':') or ln.startswith('.') else '    ' + ln)

    def text(self):
        return '\n'.join(self.l) + '\n'


def vr(b, n=4):
    return f'v[{b}:{b + n - 1}]'


def srd(a, d, lo, size):
    a(f'''s_mov_b32 s{d}, s{lo}
          s_mov_b32 s{d + 1}, s{lo + 1}
          s_mov_b32 s{d + 2}, {size}
          s_mov_b32 s{d + 3}, 0x20000''')


STV = 126


def stamp(a, slot):
    if not OPT['stamps']:
        return
    a(f'''{'s_memtime' if OPT['cyc'] else 's_memrealtime'} s[94:95]
          s_waitcnt lgkmcnt(0)
          v_writelane_b32 v{STV}, s94, {slot}''')
    if slot == 0:
        a(f'v_writelane_b32 v{STV}, s96, 30')


def stamp_dump(a):
    if not OPT['stamps']:
        return
    a(f'''v_mbcnt_lo_u32_b32 v{STV + 1}, -1, 0
          v_mbcnt_hi_u32_b32 v{STV + 1}, -1, v{STV + 1}
          v_lshlrev_b32 v{STV + 1}, 2, v{STV + 1}
          s_lshl_b32 s92, s2, 3
          s_add_u32 s92, s92, s3
          s_lshl_b32 s92, s92, 7
          s_add_u32 s92, s92, {STAMP}
          s_mov_b32 exec_hi, 0
          buffer_store_dword v{STV}, v{STV + 1}, s[16:19], s92 offen sc1
          s_mov_b64 exec, -1''')


SA, SB, NMA, NMB, OA, OB, QA, QB, KF, V0, V1 = 0, 16, 32, 48, 64, 80, 96, 100, 104, 108, 112
IDX, KA, VA, VINC, L16, WSA, LN, T0, T1, T2 = 116, 117, 118, 119, 120, 121, 122, 123, 124, 125
A2C, A2S, A2E, A2O, WO = 128, 144, 160, 176, 192
ONES, MRG, WST, CNT = 0x20000, 0x22800, 0x27000, 0x27800
QST = MRG
LDS_BYTES = 0x28000


def prologue(a):
    if OPT['stamps']:
        a(f"{'s_memtime' if OPT['cyc'] else 's_memrealtime'} s[96:97]")
    a(f'''s_cmp_ge_u32 s2, 256
          s_cbranch_scc1 L_end
          s_load_dwordx16 s[36:51], s[0:1], 0
          s_load_dwordx4 s[52:55], s[0:1], 64
          s_load_dwordx2 s[56:57], s[0:1], 80
          v_lshrrev_b32 v1, 6, v0
          v_and_b32 v0, 63, v0
          v_readfirstlane_b32 s3, v1
          s_and_b32 s60, s2, 7
          s_lshr_b32 s61, s2, 3
          s_cmp_eq_u32 s3, 0
          s_cbranch_scc0 L_nopf
          v_min_u32 v22, 5, v0
          v_lshl_add_u32 v22, v22, 5, s61
          v_lshlrev_b32 v22, 7, v22
          v_min_u32 v22, L_code_end - L_pc - 4, v22
          s_getpc_b64 s[6:7]
          L_pc:
          global_load_dword v23, v22, s[6:7]
          L_nopf:
          ; phase-1 roles: s62 kind, s63 rb, s64 cb, s65 rot
          s_lshr_b32 s62, s60, 1
          s_and_b32 s63, s60, 1
          s_lshl_b32 s63, s63, 3
          s_and_b32 s4, s61, 7
          s_add_u32 s63, s63, s4
          s_lshr_b32 s64, s61, 3
          s_lshl_b32 s65, s64, {1 if OPT.get('rot', 3) == 7 else 0}
          s_add_u32 s65, s65, s4
          s_cmp_eq_u32 s62, 3
          s_cselect_b32 s66, 1, 3
          s_lshl_b32 s14, s66, 19
          s_lshl_b32 s66, s66, 10          ; W pitch
          s_lshl_b32 s6, s62, 10
          s_lshl_b32 s7, s64, 8
          s_add_u32 s6, s6, s7
          s_and_b32 s7, s7, 256
          s_cmp_eq_u32 s62, 3
          s_cselect_b32 s67, s7, s6
          s_mov_b32 s10, 0x200000
          s_mov_b32 s11, 0x20000
          s_mov_b32 s15, 0x20000''')


def roles(a):
    a(f'''v_mov_b32 v{LN}, v0
          v_lshlrev_b32 v{L16}, 4, v0
          s_and_b32 s4, s61, 7
          s_lshl_b32 s76, s60, 2
          s_and_b32 s5, s61, 3
          s_add_u32 s76, s76, s5           ; head
          s_lshr_b32 s77, s61, 2           ; j
          s_and_b32 s78, s3, 3             ; q pair
          s_lshr_b32 s79, s3, 2
          s_lshl_b32 s80, s60, 3
          s_add_u32 s80, s80, s4           ; qt
          s_mov_b32 s81, s64               ; nb''')


def srds(a):
    a('''s_waitcnt lgkmcnt(0)
         s_cmp_lt_u32 s64, 2
         s_cselect_b32 s4, s42, s44
         s_cselect_b32 s5, s43, s45
         s_cmp_eq_u32 s62, 3
         s_cselect_b32 s8, s36, s46
         s_cselect_b32 s9, s37, s47
         s_cselect_b32 s12, s4, s48
         s_cselect_b32 s13, s5, s49''')


def srds_late(a):
    if OPT.get('wsoff'):
        a(f'''s_add_u32 s56, s56, {OPT['wsoff'] << 20}
              s_addc_u32 s57, s57, 0''')
    srd(a, 16, 56, WS_SIZE)
    srd(a, 32, 50, 0x80000)


def srds_attn(a):
    srd(a, 20, 52, 0x400000)
    srd(a, 24, 38, 0x800000)
    srd(a, 28, 40, 0x800000)


def o_offset(a):
    a(f'''s_lshl_b32 s4, s77, 3
          s_lshl_b32 s5, s78, 1
          s_add_u32 s4, s4, s5
          s_add_u32 s4, s4, s79
          s_lshl_b32 s4, s4, 15
          s_lshl_b32 s5, s76, 10
          s_add_u32 s4, s4, s5
          s_add_u32 s82, s4, {OF}''')


def epoch_load(a):
    a(f'''s_add_u32 s4, s56, {EPOCH}
          s_addc_u32 s5, s57, 0
          s_load_dword s58, s[4:5], 0''')


def p1_loader(a):
    a('''s_sub_u32 s68, s3, 4             ; lw
         v_lshrrev_b32 v1, 3, v0
         v_and_b32 v2, 7, v0
         v_lshrrev_b32 v3, 4, v0
         v_xor_b32 v2, v2, v3
         v_lshlrev_b32 v2, 4, v2
         v_xor_b32 v9, 64, v2
         s_cmp_eq_u32 s62, 3
         s_cbranch_scc1 L_p1_rowsA
         s_lshl_b32 s4, s63, 7
         s_lshl_b32 s5, s68, 5
         s_add_u32 s4, s4, s5
         v_add_u32 v1, s4, v1
         v_lshl_add_u32 v4, v1, 10, v2
         v_lshl_add_u32 v5, v1, 10, v9
         v_add_u32 v5, 0x1c00, v5
         v_add_u32 v6, 0x3800, v4
         v_add_u32 v7, 0x3800, v5
         L_p1_rowsdone:
         v_and_b32 v2, 15, v0
         v_lshlrev_b32 v9, 2, v3
         v_xor_b32 v2, v2, v9
         v_lshlrev_b32 v2, 4, v2
         s_lshl_b32 s4, s68, 4
         v_add_u32 v3, s4, v3
         v_mul_lo_u32 v3, v3, s66
         v_add3_u32 v8, v3, v2, s67
         v_xor_b32 v9, 32, v8
         s_lshl_b32 s72, s66, 2
         s_sub_u32 s72, s72, 1024
         s_lshl_b32 s73, s66, 6           ; 64*pitch
         s_lshl_b32 s74, s68, 12''')
    srds(a)

    def issue(stage):
        slot = stage & 3
        rm = OPT.get('rot', 3)
        if OPT.get('stag') and 1 <= stage <= 4:
            a(f'''s_cmp_ge_u32 s59, {stage}
                  s_addc_u32 s4, s65, {stage - 1}
                  s_and_b32 s4, s4, 3
                  s_cmp_eq_u32 s59, {stage}
                  s_cselect_b32 s4, s75, s4''')
        else:
            if stage:
                a(f's_add_u32 s4, s65, {stage}')
            a(f's_and_b32 s4, s{4 if stage else 65}, {rm}')
            if stage & ~rm:
                a(f's_or_b32 s4, s4, {stage & ~rm}')
        a(f'''s_add_u32 m0, s74, {slot * 32768}
              s_lshl_b32 s5, s4, 7''')
        for i in range(4):
            a(f'buffer_load_dwordx4 v{4 + i}, s[8:11], s5 offen offset:{i * 1024} lds')
        a(f'''s_add_u32 m0, s74, {slot * 32768 + 16384}
              s_mul_i32 s6, s4, s73''')
        for i in range(4):
            a(f'buffer_load_dwordx4 v{8 + (i >> 1)}, s[12:15], s6 offen offset:{i * 1024} lds')
            if i < 3:
                a('s_add_u32 s6, s6, s72')

    stamp(a, 0)
    issue(0)
    a('''s_branch L_p1_rowsskip
         L_p1_rowsA:
         s_lshl_b32 s4, s63, 5
         s_lshr_b32 s5, s68, 1
         s_lshl_b32 s5, s5, 4
         s_add_u32 s4, s4, s5
         v_add_u32 v1, s4, v1
         s_and_b32 s5, s68, 1
         s_lshl_b32 s6, s5, 10            ; B
         s_lshl_b32 s7, s5, 9
         v_cmp_eq_u32 vcc, 0, v1
         v_mov_b32 v10, s7
         v_add_u32 v11, s6, v1            ; B + s'
         v_cndmask_b32 v10, 0, v10, vcc
         s_add_u32 s6, s6, 1024
         v_sub_u32 v12, s6, v1            ; B + 1024 - s'
         v_add_u32 v13, 7, v11
         v_subrev_u32 v14, 11, v12
         v_sub_u32 v11, v11, v10
         v_sub_u32 v12, v12, v10
         v_subrev_u32 v12, 2, v12
         v_lshl_add_u32 v4, v11, 10, v2
         v_lshl_add_u32 v5, v13, 10, v9
         v_lshl_add_u32 v6, v12, 10, v2
         v_lshl_add_u32 v7, v14, 10, v9
         s_branch L_p1_rowsdone
         L_p1_rowsskip:''')
    roles(a)
    srds_late(a)
    epoch_load(a)
    o_offset(a)
    a(f'''v_and_b32 v1, 11, v0
          v_cmp_eq_u32 vcc, 0, v1
          v_mov_b32 v2, {ONEBF * 0x10001}
          s_mul_i32 s4, s68, 2560
          v_cndmask_b32 v16, 0, v2, vcc
          v_mov_b32 v17, v16
          v_mov_b32 v18, v16
          v_mov_b32 v19, v16
          s_add_u32 s4, s4, {ONES}
          v_add_u32 v1, s4, v{L16}
          ds_write_b128 v1, v[16:19]
          ds_write_b128 v1, v[16:19] offset:1024
          ds_write_b128 v1, v[16:19] offset:1536
          v_mov_b32 v1, {CNT}
          v_mov_b32 v2, 0
          ds_write_b32 v1, v2''')
    attn_setup(a)
    zero_o(a)
    if OPT.get('stag'):
        a(f'''s_lshr_b32 s4, s61, {OPT.get('stsh', 0)}
              s_and_b32 s4, s4, 3
              s_lshl_b32 s4, s4, 2
              s_lshr_b32 s59, {OPT['stag']}, s4
              s_and_b32 s59, s59, 7
              s_and_b32 s75, s65, 3
              s_or_b32 s75, s75, 4''')
    issue(1)
    stamp(a, 1)
    for c in range(8):
        if c == 3:
            stamp(a, 28)
        a(f's_waitcnt vmcnt({[8, 8, 8, 8, 8, 8, 8, 0][c]})')
        if c in (0, 3):
            stamp(a, 2 if c == 0 else 29)
        a('s_barrier')
        stamp(a, 17 + c)
        if c <= 5:
            issue(c + 2)
    a('''s_waitcnt lgkmcnt(0)
         s_barrier''')
    a('s_add_u32 s58, s58, 1            ; nonce')
    stamp(a, 25)
    a(f'''s_lshr_b32 s4, s76, 3
          s_lshl_b32 s4, s4, 5
          s_add_u32 s4, s4, s61
          s_lshl_b32 s4, s4, 11
          s_add_u32 s4, s4, {PFLAGS}
          s_add_u32 s8, s56, s4
          s_addc_u32 s9, s57, 0
          s_mov_b32 s6, 1024
          s_lshl_b32 s70, s76, 16
          s_lshl_b32 s71, s77, 13
          s_add_u32 s70, s70, s71
          s_mov_b32 s71, {QST}
          s_cmp_eq_u32 s68, 1
          s_cselect_b32 s6, 0, s6
          s_cselect_b32 s70, s88, s70
          s_cselect_b32 s71, 0, s71
          s_cmp_eq_u32 s68, 2
          s_cselect_b32 s6, 1160, s6
          s_cselect_b32 s70, s89, s70
          s_cselect_b32 s71, 0x10000, s71
          s_mov_b32 s5, {SPIN}
          s_mov_b32 s59, s58
          s_mov_b32 m0, s71
          s_add_u32 s72, s70, 0x1000
          s_cmp_eq_u32 s68, 3
          s_barrier
          s_cbranch_scc0 L_s1_poll
          L_s1_poll7:                      ; wave 7: the other K, V blocks''')
    regs = [36, 40, 44, 48, 64, 72, 12]
    for i, r in enumerate(regs):
        a(f's_load_dwordx4 s[{r}:{r + 3}], s[8:9], {128 * (i + 1)} glc')
    a('''s_sub_u32 s5, s5, 1
         s_cbranch_scc1 L_p1_join
         s_mov_b64 s[6:7], 0
         s_waitcnt lgkmcnt(0)''')
    for r in regs:
        for h in (0, 2):
            a(f'''s_xor_b64 s[10:11], s[{r + h}:{r + h + 1}], s[58:59]
                  s_or_b64 s[6:7], s[6:7], s[10:11]''')
    a('''s_cbranch_scc1 L_s1_poll7
         s_branch L_p1_join
         L_s1_poll:
         s_load_dwordx2 s[10:11], s[8:9], s6 glc
         s_sub_u32 s5, s5, 1
         s_cbranch_scc1 L_s1_pdone
         s_waitcnt lgkmcnt(0)
         s_cmp_eq_u64 s[10:11], s[58:59]
         s_cbranch_scc0 L_s1_poll
         L_s1_pdone:''')
    stamp(a, 26)
    for i in range(4):
        a(f'buffer_load_dwordx4 v{L16}, s[16:19], s70 offen offset:{i * 1024} sc1 lds')
    a('''s_add_u32 m0, s71, 0x1000
         s_nop 0''')
    for i in range(4):
        a(f'buffer_load_dwordx4 v{L16}, s[16:19], s72 offen offset:{i * 1024} sc1 lds')
    a('s_waitcnt vmcnt(0)')


def p1_compute(a):
    roles(a)
    a('''s_and_b32 s68, s3, 1             ; wr
         s_lshr_b32 s69, s3, 1            ; wc
         v_and_b32 v1, 15, v0
         v_lshrrev_b32 v2, 4, v0          ; g
         v_lshrrev_b32 v3, 1, v1
         v_xor_b32 v3, v3, v2
         v_lshlrev_b32 v3, 4, v3
         v_lshl_add_u32 v3, v1, 7, v3
         s_lshl_b32 s4, s68, 13
         v_add_u32 v4, s4, v3
         v_xor_b32 v5, 64, v4
         v_bfe_u32 v10, v0, 2, 2          ; r
         v_lshl_add_u32 v11, v2, 3, v10   ; 8g + r
         v_lshlrev_b32 v11, 8, v11
         v_lshlrev_b32 v10, 1, v10
         v_and_b32 v12, 1, v2
         v_or_b32 v10, v10, v12           ; z
         s_lshl_b32 s4, s69, 2
         v_xor_b32 v10, s4, v10
         v_lshl_add_u32 v11, v10, 5, v11
         v_and_b32 v10, 3, v0
         v_lshl_add_u32 v11, v10, 3, v11
         v_add_u32 v6, 16384, v11
         v_xor_b32 v7, 32, v6
         v_xor_b32 v8, 64, v6
         v_xor_b32 v9, 96, v6''')
    for i in range(32):
        a(f'v_mov_b64 {vr(128 + 2 * i, 2)}, 0')
    o_offset(a)
    a('s_waitcnt lgkmcnt(0)')
    stamp(a, 0)
    srds_late(a)
    epoch_load(a)
    if OPT.get('warm', 1):
        a(f'''s_cmp_eq_u32 s3, 1
              s_cbranch_scc0 L_p1_nowarm
              s_lshr_b32 s4, s76, 3
              s_lshl_b32 s4, s4, 5
              s_add_u32 s4, s4, s61
              s_lshl_b32 s4, s4, 11
              s_add_u32 s4, s4, {PFLAGS}
              v_lshlrev_b32 v1, 7, v0
              v_mov_b32 v2, 0
              s_mov_b64 exec, 0x3ff
              buffer_atomic_add v2, v1, s[16:19], s4 offen sc1
              s_mov_b64 exec, -1
              L_p1_nowarm:''')

    def rset(st):
        return 32 + 32 * st

    def reads(st, slot, ks):
        b = rset(st)
        L = []
        for i in range(4):
            L.append(f'ds_read_b128 {vr(b + 4 * i)}, v{4 + ks} offset:{slot * 32768 + i * 2048}')
            L.append(f'ds_read_b64_tr_b16 {vr(b + 16 + 4 * i, 2)}, v{6 + i} offset:{slot * 32768 + ks * 8192}')
            L.append(f'ds_read_b64_tr_b16 {vr(b + 18 + 4 * i, 2)}, v{6 + i} offset:{slot * 32768 + ks * 8192 + 1024}')
        return L

    def step(st, T, rd, extra=(), patch=False):
        b = rset(st)
        rd = list(rd)
        extra = list(extra)
        order = [(rt, ct) for ct in ((1, 2, 3, 0) if patch else range(4)) for rt in range(4)]
        for n, (rt, ct) in enumerate(order):
            acc = vr(128 + 16 * rt + 4 * ct)
            x, w = vr(b + 4 * rt), vr(b + 16 + 4 * ct)
            a(f'v_mfma_f32_16x16x32_bf16 {acc}, {w if T else x}, {x if T else w}, {acc}')
            for _ in range(2):
                if rd:
                    a(rd.pop(0))
            if patch and n < 4:
                a(f'v_cndmask_b32 v{b + 16 + n}, v{b + 16 + n}, v14, s[54:55]')
            if not rd and n >= 7 and extra:
                a(extra.pop(0))
        a('s_waitcnt lgkmcnt(0)')

    def mfma(st, T, rt, ct):
        b = rset(st)
        acc = vr(128 + 16 * rt + 4 * ct)
        x, w = vr(b + 4 * rt), vr(b + 16 + 4 * ct)
        a(f'v_mfma_f32_16x16x32_bf16 {acc}, {w if T else x}, {x if T else w}, {acc}')

    def epi(ct, pk):
        L = []
        for rp in range(2):
            d = 192 + 4 * (2 * ct + rp)
            for u in range(2):
                src = 128 + 16 * (2 * rp + u) + 4 * ct
                if pk:
                    L += [f'v_pk_mul_f32 {vr(src + i, 2)}, {vr(src + i, 2)}, s[52:53]' for i in (0, 2)]
                else:
                    L += [f'v_mul_f32 v{src + i}, s52, v{src + i}' for i in range(4)]
            for i in range(2):
                for u in range(2):
                    src = 128 + 16 * (2 * rp + u) + 4 * ct
                    L.append(f'v_cvt_pk_bf16_f32 v{d + 2 * u + i}, v{src + 2 * i}, v{src + 2 * i + 1}')
            L += [f'v_permlane16_swap_b32 v{d}, v{d + 2}',
                  f's_nop 0\nv_permlane16_swap_b32 v{d + 1}, v{d + 3}',
                  f'buffer_store_dwordx4 {vr(d)}, v{12 + rp}, s[16:19], s73 offen sc1' + ('\ns_add_u32 s73, s73, s74' if rp and ct < 3 else '')]
        return L

    def loop(T, tag):
        stamp(a, 2)
        a('s_barrier')
        stamp(a, 17)
        for r in reads(0, 0, 0):
            a(r)
        a(f'''s_waitcnt lgkmcnt(0)
              .p2align 3
              L_p1_loop{tag}:''')
        P = tag == 'A'
        step(0, T, reads(1, 0, 1), [], P)
        a('s_barrier')
        step(1, T, reads(0, 1, 0), [] if P else ['s_sub_u32 s70, s70, 1'], P)
        if not P:
            a(f's_cbranch_scc1 L_p1_last{tag}')
        step(0, T, reads(1, 1, 1), [f'v_xor_b32 v{r}, 0x10000, v{r}' for r in range(4, 10)], P)
        a('s_barrier')
        step(1, T, reads(0, 0, 0), ['s_sub_u32 s70, s70, 1'] if P else [], P)
        if P:
            a('s_cbranch_scc0 L_p1_loopA')
            stamp(a, 3)
            return
        a(f's_branch L_p1_loop{tag}')
        a(f'L_p1_last{tag}:')
        rd = reads(1, 1, 1)
        for ct in range(2):
            for rt in range(4):
                mfma(0, T, rt, ct)
                for _ in range(3):
                    if rd:
                        a(rd.pop(0))
        a('''s_waitcnt lgkmcnt(0)
             s_barrier''')
        seq = [(1, 0), (1, 1), (0, 2), (1, 2), (0, 3), (1, 3)]
        pend, ready = [], {1: 0, 2: 1, 4: 2}
        PER = OPT.get('eper', 2)
        for k, (st, ct) in enumerate(seq):
            for rt in range(4):
                mfma(st, T, rt, ct)
                if rt == 1 and k in ready:
                    if not pend:
                        a('s_nop 3')
                    pend += epi(ready[k], False)
                for _ in range(PER):
                    if pend:
                        a(pend.pop(0))
        stamp(a, 3)
        n = len(pend)
        for x in pend:
            a(x)
        if n < 8:
            a(f's_nop {7 - n}')
        for x in epi(3, True):
            a(x)
        a('s_barrier')

    attn_setup(a)
    a('''s_cmp_eq_u32 s62, 3
         s_cbranch_scc1 L_p1_A''')
    a(f'''s_cmp_eq_u32 s62, 2
          s_cselect_b32 s52, {f2u(2.0 ** VLOG)}, 1.0
          s_cselect_b32 s73, 1024, 0
          s_cselect_b32 s7, 12, 0
          s_add_u32 s73, s73, {KV}
          s_cmp_eq_u32 s62, 0
          s_cselect_b32 s52, {f2u(CSCALE)}, s52
          s_cselect_b32 s71, 16, 17
          s_cselect_b32 s72, 10, 11
          s_cselect_b32 s73, {QF}, s73
          s_mov_b32 s53, s52
          s_lshl_b32 s4, s64, 3
          s_lshl_b32 s5, s69, 2
          s_add_u32 s4, s4, s5             ; head0
          s_lshl_b32 s4, s4, s71
          s_lshl_b32 s5, s63, 2
          s_lshl_b32 s6, s68, 1
          s_add_u32 s5, s5, s6             ; tile0
          s_lshl_b32 s5, s5, s72
          s_add_u32 s73, s73, s4
          s_add_u32 s73, s73, s5
          s_lshl_b32 s74, 1, s71
          s_lshl_b32 s75, 1, s72
          v_lshrrev_b32 v1, 1, v0
          v_xor_b32 v1, v1, v0
          v_and_b32 v1, 4, v1
          v_mul_u32_u24 v1, 3, v1
          v_and_b32 v1, s7, v1
          v_xor_b32 v1, v1, v0
          v_lshlrev_b32 v12, 4, v1
          v_add_u32 v13, s75, v12
          s_mov_b32 s70, 3''')
    if OPT.get('pw') == 1:
        a('''v_and_b32 v1, 7, v0
             v_bfe_u32 v2, v0, 3, 1
             v_lshrrev_b32 v3, 4, v0
             v_lshlrev_b32 v1, 7, v1
             v_lshl_add_u32 v1, v2, s72, v1
             v_lshl_add_u32 v1, v3, s71, v1
             buffer_store_dword v128, v1, s[16:19], s73 offen sc1''')
    if OPT.get('pw') == 3:
        a('''v_lshlrev_b32 v1, s71, v0
             s_mov_b64 exec, 15
             buffer_store_dword v128, v1, s[16:19], s73 offen sc1
             s_mov_b64 exec, -1''')
    if OPT.get('pw') in (4, 5):
        a('s_mov_b32 s4, s73')
        for ct in range(4 if OPT['pw'] == 4 else 1):
            a('''s_load_dword s5, s[56:57], s4 glc
                 s_add_u32 s4, s4, s74''')
    if OPT.get('pw') == 2:
        a('s_mov_b32 s4, s73')
        for ct in range(4):
            a(f'''buffer_store_dwordx4 v[128:131], v12, s[16:19], s4 offen sc1
                  buffer_store_dwordx4 v[128:131], v13, s[16:19], s4 offen sc1
                  s_add_u32 s4, s4, s74''')
    a(f'''s_setprio {OPT.get('cprio', 1)}
          s_cmp_eq_u32 s62, 2
          s_cbranch_scc1 L_p1_N''')
    loop(True, 'T')
    a('''s_branch L_p1_cdone
         L_p1_N:''')
    loop(False, 'N')
    a('''s_branch L_p1_cdone
         L_p1_A:''')
    a(f'''v_lshrrev_b32 v1, 2, v0
          v_and_b32 v2, 3, v0
          v_lshlrev_b32 v3, 4, v2
          v_lshl_add_u32 v15, v1, 10, v3
          v_lshrrev_b32 v3, 4, v0
          v_bfe_u32 v10, v0, 2, 2
          v_lshl_add_u32 v3, v3, 3, v10
          v_lshlrev_b32 v3, 6, v3
          v_lshl_add_u32 v3, v2, 3, v3
          s_lshl_b32 s71, s3, 11
          s_add_u32 s71, s71, {QST}
          v_add_u32 v20, s71, v3
          s_lshl_b32 s6, s64, 2
          s_add_u32 s6, s6, s3
          s_lshl_b32 s4, s63, 15
          s_lshl_b32 s5, s6, 6
          s_add_u32 s72, s4, s5
          s_mov_b32 m0, s71
          s_add_u32 s73, s72, 0x3c00
          buffer_load_dwordx4 v15, s[32:35], s72 offen lds
          buffer_load_dwordx4 v15, s[32:35], s73 offen offset:1024 lds
          s_lshl_b32 s6, s6, 15
          s_lshl_b32 s70, s63, 10
          s_add_u32 s70, s70, s6
          s_add_u32 s92, s70, {WOF}        ; destination
          s_lshl_b32 s4, s64, 1
          s_add_u32 s4, s4, s69
          s_cmp_eq_u32 s4, 4
          s_cselect_b32 s54, 0x10001, 0
          s_mov_b32 s55, s54
          v_mov_b32 v14, 0xbf803f80
          s_mov_b32 s70, 3''')
    loop(False, 'A')
    a(f'''s_waitcnt vmcnt(0)
          ds_read_b64_tr_b16 v[24:25], v20
          ds_read_b64_tr_b16 v[26:27], v20 offset:256
          ds_read_b64_tr_b16 v[28:29], v20 offset:32
          ds_read_b64_tr_b16 v[30:31], v20 offset:288
          s_add_u32 s4, s92, 0x4000
          s_waitcnt lgkmcnt(0)
          s_barrier
          buffer_store_dwordx4 v[24:27], v{L16}, s[16:19], s92 offen sc1
          buffer_store_dwordx4 v[28:31], v{L16}, s[16:19], s4 offen sc1''')
    a(f'''s_cmp_lt_u32 s64, 2
          s_cselect_b32 s70, 1.0, -1.0
          v_mov_b32 v10, s70
          v_mov_b32 v11, s70
          s_lshl_b32 s4, s64, 1
          s_add_u32 s4, s4, s69
          s_cmp_eq_u32 s4, 4
          s_cselect_b32 s5, 0x10001, 0
          s_mov_b32 vcc_lo, s5
          s_mov_b32 vcc_hi, s5
          v_mov_b32 v3, 1.0
          v_cndmask_b32 v10, v10, v3, vcc
          s_lshl_b32 s5, s63, 1
          s_add_u32 s5, s5, s68
          s_cmp_eq_u32 s5, 0
          s_cbranch_scc0 L_p1_noR
          s_lshl_b32 s6, s4, 8
          s_add_u32 s6, s6, {RR}
          v_lshlrev_b32 v2, 2, v0
          s_mov_b64 exec, 0xffff''')
    for ct in range(4):
        a(f'''v_fma_f32 v{12 + ct}, v{10 if ct == 0 else 11}, v{176 + 4 * ct}, v{160 + 4 * ct}
              v_mov_b32 v{160 + 4 * ct}, 0
              v_mov_b32 v{176 + 4 * ct}, 0
              buffer_store_dword v{12 + ct}, v2, s[16:19], s6 offen offset:{ct * 64} sc1''')
    a(f'''s_mov_b64 exec, -1
          L_p1_noR:
          s_lshr_b32 s6, s64, 1
          s_lshl_b32 s6, s6, 19
          s_and_b32 s4, s4, 3
          s_lshl_b32 s4, s4, 16
          s_lshl_b32 s5, s5, 10
          s_add_u32 s73, s4, s5
          s_add_u32 s73, s73, s6
          s_add_u32 s73, s73, {EO}
          s_add_u32 s74, s73, 0x40000''')
    for cp in range(2):
        for u in range(2):
            ct = 2 * cp + u
            sg = 10 if ct == 0 else 11
            for i in range(4):
                a0, a1, a2, a3 = (128 + 16 * k + 4 * ct + i for k in range(4))
                a(f'''v_fmac_f32 v{a0}, v{sg}, v{a3}
                      v_fmac_f32 v{a1}, v{sg}, v{a2}''')
            for i in range(4):
                a0, a1, a2, a3 = (128 + 16 * k + 4 * ct + i for k in range(4))
                a(f'''v_fma_f32 v{a2}, v{sg}, v{a1}, v{a0}
                      v_fma_f32 v{a3}, -v{sg}, v{a1}, v{a0}''')
        for par in range(2):
            d = 32 + 4 * (2 * cp + par)
            for u in range(2):
                src = 160 + 16 * par + 4 * (2 * cp + u)
                for i in range(2):
                    a(f'v_cvt_pk_bf16_f32 v{d + 2 * u + i}, v{src + 2 * i}, v{src + 2 * i + 1}')
            a(f'''s_nop 1
                  v_permlane16_swap_b32 v{d}, v{d + 2}
                  v_permlane16_swap_b32 v{d + 1}, v{d + 3}
                  buffer_store_dwordx4 {vr(d)}, v{L16}, s[16:19], s{73 + par} offen sc1''')
        if cp == 0:
            a('''s_add_u32 s73, s73, 0x8000
                 s_add_u32 s74, s74, 0x8000''')
    a('L_p1_cdone:')


def attn_setup(a):
    srds_attn(a)
    a(f'''s_lshl_b32 s4, s79, 16
          v_add_u32 v{KA}, s4, v{L16}
          v_and_b32 v1, 16, v{LN}
          v_cmp_ne_u32 vcc, 0, v1
          v_and_b32 v2, 15, v{LN}
          v_lshlrev_b32 v2, 4, v2
          v_add_u32 v2, {ONES}, v2
          v_cndmask_b32 v{VA}, v{KA}, v2, vcc
          v_mov_b32 v2, 0x2000
          v_cndmask_b32 v{VINC}, v2, 0, vcc
          v_mov_b32 v{IDX}, 0xdddddddd
          v_and_b32 v1, 31, v{LN}
          s_and_b32 s4, s76, 15
          s_lshl_b32 s4, s4, 6
          s_lshr_b32 s83, s76, 4           ; p
          s_add_u32 s84, s4, s83
          v_lshl_add_u32 v1, v1, 1, s84
          v_lshlrev_b32 v1, 12, v1
          v_lshrrev_b32 v2, 5, v{LN}
          v_lshl_add_u32 v1, v2, 4, v1
          s_lshl_b32 s4, s3, 7
          v_add_u32 v{WSA}, s4, v1
          s_lshl_b32 s85, s83, 18
          s_lshl_b32 s4, s77, 15
          s_add_u32 s85, s85, s4
          s_lshl_b32 s4, s3, 12
          s_add_u32 s85, s85, s4
          s_add_u32 s85, s85, {EO}         ; E fragments
          s_add_u32 s86, s85, 0x80000      ; O fragments
          s_lshl_b32 s87, s81, 3
          s_add_u32 s87, s87, s3
          s_lshl_b32 s87, s87, 14
          s_add_u32 s87, s87, {WOF}
          s_lshl_b32 s88, s76, 17
          s_add_u32 s88, s88, {KV}
          s_lshl_b32 s4, s79, 16
          s_add_u32 s89, s88, s4
          s_lshl_b32 s91, s78, 11
          s_add_u32 s90, s89, s91
          s_add_u32 s5, s91, {QST}
          v_add_u32 v{T0}, s5, v{L16}
          s_add_u32 s91, s91, s4
          s_lshl_b32 s4, s64, 6
          s_lshl_b32 s5, s62, 4
          s_add_u32 s4, s4, s5
          s_add_u32 s4, s4, s63
          s_lshl_b32 s4, s4, 4
          s_add_u32 s93, s4, {FLAGS}''')


def zero_o(a):
    for i in range(16):
        a(f'v_mov_b64 {vr(OA + 2 * i, 2)}, 0')


def kv_dma(c):
    return [f's_add_u32 s4, s90, {c * 8192}',
            f's_add_u32 m0, s91, {c * 8192}',
            's_nop 0',
            f'buffer_load_dwordx4 v{L16}, s[16:19], s4 offen sc1 lds',
            f'buffer_load_dwordx4 v{L16}, s[16:19], s4 offen offset:1024 sc1 lds']


def publish1(a):
    a(f'''s_cmp_eq_u32 s62, 3
          s_cbranch_scc1 L_p1_join
          s_and_b32 s4, s63, 7
          s_cmp_eq_u32 s63, 8
          s_cselect_b32 s4, 9, s4
          s_lshl_b32 s4, s4, 7
          s_and_b32 s5, s63, 8
          s_lshl_b32 s6, s62, 2
          s_add_u32 s5, s5, s6
          s_add_u32 s4, s4, s5
          s_sub_u32 s4, s4, 4
          s_and_b32 s5, s63, 1
          s_lshl_b32 s5, s5, 2
          s_lshr_b32 s6, s63, 1
          s_lshl_b32 s6, s6, 13
          s_add_u32 s5, s5, s6
          s_add_u32 s5, s5, 1024
          s_cmp_eq_u32 s62, 0
          s_cselect_b32 s4, s5, s4
          s_cselect_b32 s6, 15, -1
          s_lshl_b32 s5, s64, 16
          s_add_u32 s4, s4, s5
          s_add_u32 s4, s4, {PFLAGS}
          v_lshlrev_b32 v1, 11, v{LN}
          v_mov_b32 v2, s58
          v_mov_b32 v3, {CNT}
          v_mov_b32 v4, 1
          s_mov_b64 exec, 1
          s_waitcnt vmcnt(0)
          ds_add_rtn_u32 v4, v3, v4
          s_waitcnt lgkmcnt(0)
          v_readfirstlane_b32 s5, v4
          s_mov_b32 exec_lo, s6
          s_cmp_eq_u32 s5, 3
          s_cbranch_scc0 L_s1_noflag
          buffer_store_dword v2, v1, s[16:19], s4 offen sc1
          L_s1_noflag:
          s_mov_b64 exec, -1''')


def a2mm(D, x, y, ks):
    return f'v_mfma_f32_32x32x16_bf16 {vr(D, 16)}, {vr(x + 4 * ks)}, {vr(y + 4 * ks)}, {vr(D, 16) if ks else 0}'


CC, SS, X3, X4 = NMA, NMB, SA, SB
MG = 0x8000


def unit(a, tau, b, side, last=False):
    X, Y = (SB, SA) if b else (SA, SB)
    OX, OY = (OB, OA) if b else (OA, OB)
    QY, NY = (QA, NMA) if b else (QB, NMB)
    vo = (tau & 3) * 2048
    side = list(side)
    e = lambda i: a(f'v_exp_f32 v{X + i}, v{X + i}')
    u = 2 * tau + b
    pr = OPT.get('pr', 1)
    p0, p1 = {0: (0, 1), 1: (3 - (u & 3), None), 2: (3 - ((2 * u) & 3), 3 - ((2 * u + 1) & 3)), 3: (None if b else 3 - (tau & 3), None),
              4: (None, None), 5: (2 - 2 * (u & 1), 3 - 2 * (u & 1)), 6: (None, 3 - (u & 3)), 7: (2 - 2 * (tau & 1), 3 - 2 * (tau & 1)),
              8: (2 - (u % 3), 3 - (u % 3)), 9: (1, 0)}[pr]
    if p0 is not None:
        a(f's_setprio {p0}')
    e(0); e(1)
    if b:
        a('s_waitcnt lgkmcnt(0)')
    if b or tau > 0:
        a(f'v_smfmac_f32_32x32x32_bf16 {vr(OY, 16)}, {vr(V1)}, {vr(Y + 8, 8)}, v{IDX}')
    if not b:
        a(f'ds_read_b128 {vr(V1)}, v{VA} offset:{vo + 1280}')
    e(2); e(3); e(4)
    if not (b and last):
        a(f'v_mfma_f32_32x32x16_bf16 {vr(Y, 16)}, {vr(KF)}, {vr(QY)}, {vr(NY, 16)}')
    else:
        a(a2mm(CC, A2C, A2E, 2))
    if not b and not last:
        a(f'ds_read_b128 {vr(KF)}, v{KA} offset:{(tau + 1) * 2048}')
    if p1 is not None:
        a(f's_setprio {p1}')
    for i in range(5, 10):
        e(i)
        if last and i == 7:
            a(a2mm(CC, A2C, A2E, 3 if b else 0))
    if not b:
        a(f's_waitcnt lgkmcnt({1 if last else 2})')
    a(f'v_smfmac_f32_32x32x32_bf16 {vr(OX, 16)}, {vr(V0)}, {vr(X, 8)}, v{IDX}')
    if b and not last:
        a(f'ds_read_b128 {vr(V0)}, v{VA} offset:{vo + 2048 + 1024}')
        if (tau & 3) == 3:
            a(f'v_add_u32 v{VA}, v{VINC}, v{VA}')
    for i in range(10, 16):
        e(i)
        if i == 12:
            for s in side:
                a(s)


def attention(a):
    stamp(a, 4)
    a('s_barrier')
    stamp(a, 6)
    a(f'''ds_read_b128 {vr(QA)}, v{T0}
          ds_read_b128 {vr(V1)}, v{L16}
          ds_read_b128 {vr(QB)}, v{T0} offset:1024
          ds_read_b128 {vr(KF)}, v{KA}
          ds_read_b128 {vr(V0)}, v{VA} offset:1024''')
    for s_ in kv_dma(1):
        a(s_)
    a(f'''s_waitcnt lgkmcnt(3)
          v_mfma_f32_32x32x16_bf16 {vr(SA, 16)}, {vr(V1)}, {vr(QA)}, 0
          s_waitcnt lgkmcnt(2)
          v_mfma_f32_32x32x16_bf16 {vr(SB, 16)}, {vr(V1)}, {vr(QB)}, 0
          v_mov_b64 {vr(A2C, 2)}, -1
          v_mov_b64 {vr(A2C + 2, 2)}, -1''')
    for s_ in kv_dma(2):
        a(s_)
    a(f'''buffer_store_dwordx4 {vr(A2C)}, v{L16}, s[16:19], s82 offen sc1
          s_nop 1''')
    for S, NM, t in ((SA, NMA, T0), (SB, NMB, T1)):
        a(f'v_max3_f32 v{t}, v{S}, v{S + 1}, v{S + 2}')
        for i in range(3, 15, 2):
            a(f'v_max3_f32 v{t}, v{t}, v{S + i}, v{S + i + 1}')
        a(f'''v_max_f32 v{t}, v{t}, v{S + 15}
              v_mov_b32 v{T2}, v{t}
              s_nop 1
              v_permlane32_swap_b32 v{t}, v{T2}
              v_max_f32 v{t}, v{t}, v{T2}
              v_sub_f32 v{NM}, {f2u(-OFFS)}, v{t}
              v_sub_f32 v{NM + 1}, {f2u(-OFFS)}, v{t}''')
        for i in range(2, 16, 2):
            a(f'v_mov_b64 {vr(NM + i, 2)}, {vr(NM, 2)}')
        if S == SA:
            a(f'''s_waitcnt lgkmcnt(0)
                  s_nop 0
                  v_mfma_f32_32x32x16_bf16 {vr(SA, 16)}, {vr(KF)}, {vr(QA)}, {vr(NMA, 16)}''')
    stamp(a, 7)

    side = {}

    def put(tau, b, ins):
        side.setdefault((tau, b), []).extend(ins)

    put(3, 0, ['s_cmp_eq_u32 s3, 0', 's_cbranch_scc0 L_at_noflag2', f'v_mov_b32 v{T0}, s58', 's_mov_b64 exec, 1',
               f'buffer_store_dword v{T0}, v{L16}, s[16:19], s93 offen sc1', 's_mov_b64 exec, -1', 'L_at_noflag2:'])
    for c in range(3, 8):
        put(c, 1, kv_dma(c))
    flag_loads = [f'buffer_load_dword v{A2E + i}, v{L16}, s[16:19], s92 offen offset:{i * 1024} sc1' for i in range(4)]
    put(8, 0, [f's_mov_b32 s92, {FLAGS}'] + flag_loads)
    put(10, 0, ['s_waitcnt vmcnt(0)', 'L_at_fchk:',
                f'v_cmp_ne_u32 vcc, s58, v{A2E}', f'v_cmp_ne_u32 s[4:5], s58, v{A2E + 1}',
                f'v_cmp_ne_u32 s[6:7], s58, v{A2E + 2}', f'v_cmp_ne_u32 s[62:63], s58, v{A2E + 3}',
                's_or_b64 vcc, vcc, s[4:5]', 's_or_b64 s[6:7], s[6:7], s[62:63]', 's_or_b64 vcc, vcc, s[6:7]',
                's_cbranch_vccnz L_at_fretry', 'L_at_fok:'])
    put(10, 1, ['s_or_b32 s4, s2, s3', 's_cmp_eq_u32 s4, 0', 's_cbranch_scc0 L_at_noepoch',
                f's_mov_b32 s4, {EPOCH}', 's_mov_b64 exec, 1',
                f'buffer_store_dword v{A2E}, v{L16}, s[16:19], s4 offen sc1',
                's_mov_b64 exec, -1', 'L_at_noepoch:'])
    loads = []
    for m in range(2):
        for ks in range(4):
            loads.append(f'buffer_load_dwordx4 {vr(A2C + 16 * m + 4 * ks)}, v{WSA}, s[{24 + 4 * m}:{27 + 4 * m}], 0 offen offset:{ks * 32}')
    for m in range(2):
        for ks in range(4):
            loads.append(f'buffer_load_dwordx4 {vr(A2E + 16 * m + 4 * ks)}, v{L16}, s[16:19], s{85 + m} offen offset:{ks * 1024} sc1')
    for ks in range(16):
        pre = 's_add_u32 s87, s87, 0x1000\n' if ks and ks % 4 == 0 else ''
        loads.append(pre + f'buffer_load_dwordx4 {vr(WO + 4 * ks)}, v{L16}, s[16:19], s87 offen offset:{(ks & 3) * 1024} sc1')
    u = 22
    sched = OPT.get('sched', 4)
    if sched == 0:
        for k in range(0, 8, 2):
            put(u >> 1, u & 1, loads[k:k + 2]); u += 1
        for ld in loads[8:]:
            put(u >> 1, u & 1, [ld]); u += 1
    elif sched == 1:
        for ld in loads[8:]:
            put(u >> 1, u & 1, [ld]); u += 1
    elif sched == 2:
        pass
    elif sched == 3:
        for k in range(8, 32, 2):
            put(u >> 1, u & 1, loads[k:k + 2]); u += 1
        for k, uu in enumerate((35, 41, 43, 45, 47, 53, 55, 57)):
            put(uu >> 1, uu & 1, [loads[k]])
    elif sched == 4:
        for k, uu in enumerate((22, 34, 36, 38, 28, 40, 42, 44)):
            put(uu >> 1, uu & 1, [loads[k]])
        u = 45
        for k in range(8, 32, 2):
            put(u >> 1, u & 1, loads[k:k + 2]); u += 1
    put(u >> 1, u & 1, [f'v_and_b32 v{T0}, 31, v{LN}', f'v_lshlrev_b32 v{T0}, 2, v{T0}', f'v_mov_b32 v{T1}, 0',
                        's_lshl_b32 s4, s77, 7', 's_lshl_b32 s5, s83, 10', 's_add_u32 s4, s4, s5',
                        f's_add_u32 s4, s4, {RR}', f's_mov_b32 s5, {RR + 1024}',
                        f'buffer_load_dword v{T0}, v{T0}, s[16:19], s4 offen sc1',
                        f'buffer_load_dword v{T1}, v{T1}, s[16:19], s5 offen sc1'])
    assert u < 60
    put(30, 0, ['s_waitcnt vmcnt(0)', 's_cmp_eq_u32 s76, 0', 's_cbranch_scc0 L_a2_nopatch', 's_mov_b32 exec_lo, 1', 's_mov_b32 exec_hi, 1'] +
        [f'v_mov_b32 v{A2S + i}, 0xbf803f80' for i in range(16)] + ['s_mov_b64 exec, -1', 'L_a2_nopatch:'])
    put(30, 1, ['s_mul_i32 s4, s3, 2304', f's_add_u32 m0, s4, {MG}', 's_xor_b32 s5, s3, 4', 's_mul_i32 s5, s5, 2304',
                f's_add_u32 s70, s5, {MG}', f"s_mov_b32 s71, {0 if OPT.get('forcefb') else f2u(2.0 ** 120)}"])
    put(31, 0, [a2mm(CC, A2C, A2E, 1)])
    put(31, 1, [a2mm(SS, A2S, A2O, 0), 's_cmp_eq_u32 s79, 0'])
    a('.p2align 3')
    for tau in range(32):
        if tau == 3:
            a('s_waitcnt vmcnt(0)\ns_barrier')
            stamp(a, 8)
        if tau == 11:
            a('s_barrier')
            stamp(a, 9)
        for b in range(2):
            unit(a, tau, b, side.get((tau, b), []), last=(tau == 31))
    a(f'''s_setprio 0
          s_cbranch_scc1 L_mg_k0''')
    R = KF
    for kh in (1, 0):
        snd, kp = (OA, OB) if kh else (OB, OA)
        if kh == 0:
            a('L_mg_k0:')
        a(f'v_smfmac_f32_32x32x32_bf16 {vr(OB, 16)}, {vr(V1)}, {vr(SB + 8, 8)}, v{IDX}')
        stamp(a, 10)
        if kh == 0:
            a('s_nop 11')
        for i in range(9):
            a(f'ds_write_addtid_b32 v{snd + i} offset:{MG + i * 256}')
        a(a2mm(SS, A2S, A2O, 1))
        a('''s_mov_b32 m0, s70
             s_waitcnt lgkmcnt(0)
             s_barrier''')
        for i in (8, 0, 1, 2, 3, 4, 5, 6, 7):
            a(f'ds_read_addtid_b32 v{R + i} offset:{MG + i * 256}')
        a(a2mm(SS, A2S, A2O, 2))
        a(f'''s_waitcnt lgkmcnt(8)
              v_add_f32 v{R + 8}, v{R + 8}, v{kp + 8}
              v_rcp_f32 v{R + 10}, v{R + 8}''')
        for i in range(4):
            a(f'''s_waitcnt lgkmcnt({6 - 2 * i})
                  v_pk_add_f32 {vr(R + 2 * i, 2)}, {vr(R + 2 * i, 2)}, {vr(kp + 2 * i, 2)}''')
        if kh:
            a('s_branch L_mg_j')
    a('L_mg_j:')
    for i in range(4):
        a(f'v_pk_mul_f32 {vr(R + 2 * i, 2)}, {vr(R + 2 * i, 2)}, {vr(R + 10, 2)} op_sel_hi:[1,0]')
    for i in range(4):
        a(f'v_cvt_pk_bf16_f32 v{OB + i}, v{R + 2 * i}, v{R + 2 * i + 1}')
    for i in range(4):
        a(f'v_dot2c_f32_bf16 v{R + 8}, v{OB + i}, v{OB + i}')
    a(a2mm(SS, A2S, A2O, 3))
    a(f'''s_nop 1
          v_cmp_ngt_f32 vcc, s71, v{R + 8}
          s_cbranch_vccnz L_fallback
          L_at_final:
          buffer_store_dwordx4 {vr(OB)}, v{L16}, s[16:19], s82 offen sc1''')
    stamp(a, 11)
    return flag_loads


def cold_paths(a, flag_loads):
    a(f'''L_at_fretry:
          s_mov_b32 s93, {SPIN}
          L_at_fretry2:''')
    for s in flag_loads:
        a(s)
    a(f'''s_waitcnt vmcnt(0)
          v_cmp_ne_u32 vcc, s58, v{A2E}
          v_cmp_ne_u32 s[4:5], s58, v{A2E + 1}
          v_cmp_ne_u32 s[6:7], s58, v{A2E + 2}
          v_cmp_ne_u32 s[62:63], s58, v{A2E + 3}
          s_or_b64 vcc, vcc, s[4:5]
          s_or_b64 s[6:7], s[6:7], s[62:63]
          s_or_b64 vcc, vcc, s[6:7]
          s_cbranch_vccz L_at_fok
          s_sub_u32 s93, s93, 1
          s_cbranch_scc0 L_at_fretry2
          s_branch L_at_fok''')
    a(f'''L_fallback:
          s_cmp_eq_u32 s79, 0
          s_cbranch_scc1 L_fb_q
          v_mov_b64 {vr(QA, 2)}, {vr(QB, 2)}
          v_mov_b64 {vr(QA + 2, 2)}, {vr(QB + 2, 2)}
          L_fb_q:
          v_mov_b32 v{SB}, 0xff800000
          s_mov_b32 s4, s88
          s_mov_b32 s5, 64
          L_fb_max:
          buffer_load_dwordx4 {vr(KF)}, v{L16}, s[16:19], s4 offen sc1
          s_waitcnt vmcnt(0)
          v_mfma_f32_32x32x16_bf16 {vr(SA, 16)}, {vr(KF)}, {vr(QA)}, 0
          s_nop 11''')
    for i in range(0, 16, 2):
        a(f'v_max3_f32 v{SB}, v{SB}, v{SA + i}, v{SA + i + 1}')
    a(f'''s_add_u32 s4, s4, 2048
          s_sub_u32 s5, s5, 1
          s_cmp_lg_u32 s5, 0
          s_cbranch_scc1 L_fb_max
          v_mov_b32 v{SB + 1}, v{SB}
          s_nop 1
          v_permlane32_swap_b32 v{SB}, v{SB + 1}
          v_max_f32 v{SB}, v{SB}, v{SB + 1}
          v_sub_f32 v{SB}, {f2u(-float(VLOG))}, v{SB}''')
    for i in range(1, 16):
        a(f'v_mov_b32 v{SB + i}, v{SB}')
    for i in range(16):
        a(f'v_mov_b32 v{OA + i}, 0')
    for i in range(8):
        a(f'v_mov_b32 v{V0 + i}, {ONEBF * 0x10001}')
    a(f'''s_mov_b32 s4, s88
          s_mov_b32 s5, 64
          s_mov_b32 s6, 0xffff
          s_mov_b32 s7, 0xffff
          L_fb_pv:
          buffer_load_dwordx4 {vr(KF)}, v{L16}, s[16:19], s4 offen sc1
          s_mov_b64 exec, s[6:7]
          buffer_load_dwordx4 {vr(V0)}, v{L16}, s[16:19], s4 offen offset:1024 sc1
          buffer_load_dwordx4 {vr(V1)}, v{L16}, s[16:19], s4 offen offset:1280 sc1
          s_mov_b64 exec, -1
          s_waitcnt vmcnt(0)
          v_mfma_f32_32x32x16_bf16 {vr(SA, 16)}, {vr(KF)}, {vr(QA)}, {vr(SB, 16)}
          s_nop 11''')
    for i in range(16):
        a(f'v_exp_f32 v{SA + i}, v{SA + i}')
    a(f'''s_nop 1
          v_smfmac_f32_32x32x32_bf16 {vr(OA, 16)}, {vr(V0)}, {vr(SA, 8)}, v{IDX}
          v_smfmac_f32_32x32x32_bf16 {vr(OA, 16)}, {vr(V1)}, {vr(SA + 8, 8)}, v{IDX}
          s_add_u32 s4, s4, 2048
          s_sub_u32 s5, s5, 1
          s_cmp_lg_u32 s5, 0
          s_cbranch_scc1 L_fb_pv
          s_nop 11
          v_rcp_f32 v{SB}, v{OA + 8}
          s_nop 0''')
    for i in range(8):
        a(f'v_mul_f32 v{OA + i}, v{SB}, v{OA + i}')
    for i in range(4):
        a(f'v_cvt_pk_bf16_f32 v{OB + i}, v{OA + 2 * i}, v{OA + 2 * i + 1}')
    for i in range(4):
        a(f'v_min_u32 v{OB + i}, -2, v{OB + i}')
    a('s_branch L_at_final')


def tail(a):
    OST, XP = 0x18000, 0x16000
    PA, XA3, XA4, SA0, CO, OSR, OUTA, VRA = 96, 97, 98, 100, 106, 109, 110, 111
    gather = [f'buffer_load_dwordx4 v{L16}, s[16:19], s70 offen offset:{i * 1024} sc1 lds' for i in range(4)]
    gp = OPT.get('gp', 2)
    a(f'''s_lshl_b32 s4, s3, 13
          v_add_u32 v64, s4, v{L16}
          s_mul_i32 s73, s76, s77
          s_lshl_b32 s4, s80, 15
          s_lshl_b32 s5, s3, 12
          s_add_u32 s70, s4, s5
          s_add_u32 s70, s70, {OF}
          s_add_u32 s5, s5, {OST}
          s_mov_b32 m0, s5
          v_add_u32 v{VRA}, s5, v{L16}''')
    calc = (f'''s_lshl_b32 s4, s3, 7
          s_add_u32 s4, s4, {XP}
          v_lshl_add_u32 v66, v{LN}, 2, s4
          v_lshrrev_b32 v67, 5, v{LN}
          v_and_b32 v71, 31, v{LN}
          s_lshl_b32 s6, s3, 9
          v_lshl_add_u32 v{PA}, v71, 4, s6
          v_lshl_add_u32 v{PA}, v67, 12, v{PA}   ; partial read address
          s_lshl_b32 s6, s3, 2
          v_lshl_add_u32 v73, v67, 1, s6         ; tl (even)
          v_lshlrev_b32 v{XA3}, 2, v73
          v_add_u32 v{XA3}, {XP}, v{XA3}
          v_lshlrev_b32 v{XA4}, 2, v71
          v_add_u32 v{XA4}, {XP + 1024}, v{XA4}
          s_lshl_b32 s4, s80, 5
          v_add_u32 v{OUTA}, s4, v71
          v_lshlrev_b32 v{OUTA}, 11, v{OUTA}
          v_lshl_add_u32 v{OUTA}, v67, 4, v{OUTA}   ; out offset
          s_lshl_b32 s4, s77, 5
          v_add_u32 v71, s4, v71           ; e
          v_lshl_add_u32 v73, v73, 1, s84  ; t0 ; t1 = t0 + 2
          v_cmp_eq_u32 s[74:75], 0, v73
          v_cmp_eq_u32 s[64:65], 0, v71
          v_sub_u32 v84, 0x800, v73
          v_mov_b32 v85, 0x400
          v_cndmask_b32 v85, v84, v85, s[74:75]   ; row2 of t0
          v_subrev_u32 v84, 2, v84                ; row2 of t1
          v_sub_u32 v86, 0x200, v71
          v_mov_b32 v87, 0x100
          v_cndmask_b32 v86, v86, v87, s[64:65]   ; col2
          v_lshlrev_b32 v87, 1, v71
          v_lshlrev_b32 v86, 1, v86
          v_lshl_add_u32 v{SA0}, v73, 11, v87
          v_lshl_add_u32 v{SA0 + 1}, v73, 11, v86
          v_lshl_add_u32 v{SA0 + 2}, v85, 11, v87
          v_lshl_add_u32 v{SA0 + 3}, v85, 11, v86
          v_lshl_add_u32 v{SA0 + 4}, v84, 11, v87
          v_lshl_add_u32 v{SA0 + 5}, v84, 11, v86
          s_cmp_eq_u32 s83, 0
          s_cselect_b64 vcc, -1, 0
          v_cndmask_b32 v{CO}, 0, v{T0}, vcc          ; cos correction
          v_cndmask_b32 v{CO + 1}, 0, v{T1}, vcc      ; column-256 correction
          v_cndmask_b32 v{CO + 2}, v{T0}, 0, vcc      ; sin correction
          s_or_b64 s[66:67], s[74:75], s[64:65]
          s_and_b64 s[68:69], s[74:75], s[64:65]
          s_mov_b32 s71, 4096
          v_lshrrev_b32 v65, 4, v{LN}      ; g
          v_and_b32 v88, 15, v{LN}
          v_lshlrev_b32 v88, 4, v88
          v_lshl_add_u32 v{OSR}, v65, 9, v88
          v_add_u32 v{OSR}, {OST}, v{OSR}  ; staging read address
          s_lshl_b32 s4, s81, 8
          s_lshl_b32 s5, s3, 5
          s_add_u32 s72, s4, s5
          s_add_u32 s72, s72, 1024
          s_mov_b32 s5, {SPIN}''').split('\n')
    per = (len(calc) + 6) // 7
    for q in range(8):
        a(f'ds_write_b128 v64, {vr(CC + 4 * q)} offset:{q * 1024}')
        if q == 0:
            a('''s_cmp_eq_u32 s73, 0
                 s_cbranch_scc0 L_a2_nox''')
            for ks in range(4):
                a(a2mm(X3, A2O, A2C, ks))
                a(a2mm(X4, A2S, A2E, ks))
            a('L_a2_nox:')
        for x in calc[q * per:(q + 1) * per]:
            a(x)
    a(f'''s_cmp_eq_u32 s73, 0
          s_cbranch_scc0 L_a2_nox2
          s_mov_b32 exec_hi, 0
          ds_write_b32 v66, v{X3}
          ds_write_b32 v66, v{X4} offset:1024
          s_mov_b32 exec_hi, -1
          L_a2_nox2:''')
    a('s_waitcnt lgkmcnt(0)')
    if gp == 2:
        for g in gather:
            a(g)
    a('s_barrier')
    stamp(a, 12)
    for w in range(8):
        a(f'ds_read_b128 {vr(128 + 4 * w)}, v{PA} offset:{w * 8192}')
    if gp == 3:
        for g in gather:
            a(g)
    a('s_cbranch_scc0 L_a2_nox3')
    for w in range(8):
        a(f'''ds_read_b64 {vr(160 + 2 * w, 2)}, v{XA3} offset:{w * 128}
              ds_read_b32 v{176 + w}, v{XA4} offset:{w * 128}''')
    a('L_a2_nox3:')
    V = []
    for step in (4, 2, 1):
        for w in range(step):
            for i in (0, 2):
                if OPT.get('nopk'):
                    V.append('\n'.join(f'v_add_f32 v{128 + 4 * w + i + k}, v{128 + 4 * w + i + k}, v{128 + 4 * (w + step) + i + k}' for k in range(2)))
                else:
                    V.append(f'v_pk_add_f32 {vr(128 + 4 * w + i, 2)}, {vr(128 + 4 * w + i, 2)}, {vr(128 + 4 * (w + step) + i, 2)}')
    X = ['s_cbranch_scc0 L_a2_nox4']
    for step in (4, 2, 1):
        for w in range(step):
            X += [f'v_pk_add_f32 {vr(160 + 2 * w, 2)}, {vr(160 + 2 * w, 2)}, {vr(160 + 2 * (w + step), 2)}',
                  f'v_add_f32 v{176 + w}, v{176 + w}, v{176 + w + step}']
    X += [f'v_add_f32 v160, v160, v{CO + 1}', f'v_sub_f32 v161, v161, v{CO + 1}', f'v_add_f32 v176, v176, v{CO}', 'L_a2_nox4:', 's_nop 0']
    V.append('\n'.join(X))
    V += f'''v_permlane32_swap_b32 v128, v130
         v_permlane32_swap_b32 v129, v131
         v_add_f32 v128, v128, v{CO}
         v_sub_f32 v129, v129, v{CO}
         v_add_f32 v177, v130, v{CO + 1}
         v_sub_f32 v130, v130, v{CO + 2}
         v_add_f32 v131, v131, v{CO + 2}
         v_cndmask_b32 v130, v130, 0, s[66:67]
         v_cndmask_b32 v131, v131, 0, s[64:65]
         v_sub_f32 v132, v128, v130
         v_sub_f32 v134, v129, v131
         v_add_f32 v133, v128, v130
         v_add_f32 v135, v129, v131
         v_cvt_pk_bf16_f32 v144, v132, v134
         buffer_store_short v144, v{SA0}, s[20:23], 0 offen
         v_cndmask_b32 v136, v133, v160, s[64:65]
         buffer_store_short_d16_hi v144, v{SA0}, s[20:23], s71 offen
         v_cndmask_b32 v139, v135, v161, s[64:65]
         v_cvt_pk_bf16_f32 v145, v136, v139
         v_cndmask_b32 v137, v133, v176, s[74:75]
         buffer_store_short v145, v{SA0 + 1}, s[20:23], 0 offen
         v_cvt_pk_bf16_f32 v146, v137, v135
         buffer_store_short_d16_hi v145, v{SA0 + 1}, s[20:23], s71 offen
         v_cndmask_b32 v138, v132, v160, s[64:65]
         buffer_store_short v146, v{SA0 + 2}, s[20:23], 0 offen
         v_cndmask_b32 v138, v138, v176, s[74:75]
         buffer_store_short_d16_hi v146, v{SA0 + 4}, s[20:23], 0 offen
         v_cndmask_b32 v138, v138, v177, s[68:69]
         v_cndmask_b32 v140, v134, v161, s[64:65]
         v_cvt_pk_bf16_f32 v147, v138, v140
         buffer_store_short v147, v{SA0 + 3}, s[20:23], 0 offen
         buffer_store_short_d16_hi v147, v{SA0 + 5}, s[20:23], 0 offen'''.split('\n')
    a('s_waitcnt lgkmcnt(0)')
    for x in V:
        a(x)
    stamp(a, 13)
    a('''s_waitcnt vmcnt(8)
         L_op_chk:''')
    for i in range(4):
        a(f'ds_read_b128 {vr(48 + 4 * i)}, v{VRA} offset:{i * 1024}')
    a('''s_waitcnt lgkmcnt(3)
         v_max3_u32 v84, v48, v49, v50
         s_waitcnt lgkmcnt(2)
         v_max3_u32 v84, v84, v51, v52
         v_max3_u32 v84, v84, v53, v54
         s_waitcnt lgkmcnt(1)
         v_max3_u32 v84, v84, v55, v56
         v_max3_u32 v84, v84, v57, v58
         s_waitcnt lgkmcnt(0)
         v_max3_u32 v84, v84, v59, v60
         v_max3_u32 v84, v84, v61, v62
         v_max_u32 v84, v84, v63
         v_cmp_eq_u32 vcc, -1, v84
         s_cbranch_vccnz L_op_retry
         L_op_ok:
         s_barrier''')
    stamp(a, 14)
    NB = 12
    rd = lambda n: a(f'ds_read_b128 {vr(4 * (n % NB))}, v{OSR} offset:{(n >> 1) * 2048 + (n & 1) * 256}')
    for n in range(NB - 2):
        rd(n)
    for n in range(32):
        nxt = n + NB - 2
        if nxt < 32:
            rd(nxt)
        out = min(31, nxt) - n
        acc = vr(72 + 4 * (n & 1))
        a(f'''s_waitcnt lgkmcnt({out})
              v_mfma_f32_16x16x32_bf16 {acc}, {vr(WO + 4 * (n >> 1))}, {vr(4 * (n % NB))}, {acc if n >= 2 else 0}''')
    a(f'''s_nop 7
          v_cvt_pk_bf16_f32 v80, v72, v73
          v_cvt_pk_bf16_f32 v81, v74, v75
          v_cvt_pk_bf16_f32 v82, v76, v77
          v_cvt_pk_bf16_f32 v83, v78, v79
          s_nop 1
          v_permlane16_swap_b32 v80, v82
          v_permlane16_swap_b32 v81, v83
          buffer_store_dwordx4 v[80:83], v{OUTA}, s[20:23], s72 offen''')
    stamp(a, 15)
    if OPT['stamps']:
        a('s_waitcnt vmcnt(0)')
    stamp(a, 16)
    stamp_dump(a)
    return gather


def build():
    a = A()
    prologue(a)
    a('''s_cmp_ge_u32 s3, 4
         s_cbranch_scc0 L_p1_compute''')
    p1_loader(a)
    a('''s_branch L_p1_join
         L_p1_compute:''')
    p1_compute(a)
    stamp(a, 25)
    a('s_add_u32 s58, s58, 1            ; nonce')
    zero_o(a)
    publish1(a)
    a('L_p1_join:\ns_setprio 0')
    fl = attention(a)
    gather = tail(a)
    a('''L_end:
         s_endpgm
         L_op_retry:
         s_sub_u32 s5, s5, 1
         s_cbranch_scc1 L_op_ok''')
    for g in gather:
        a(g)
    a('s_waitcnt vmcnt(0)\ns_branch L_op_chk')
    cold_paths(a, fl)
    a('L_code_end:')
    a('s_endpgm')
    return a.text()


def main(path):
    hdr = ''.join(l for l in open(f'cdna_kernels/{NAME}.s.ref') if l.startswith(';') and '@launch' not in l)
    out = hdr + f'; @launch grid=(256,1,1) block=(512,1,1) lds={LDS_BYTES}\n'
    out += f'''.amdgcn_target "amdgcn-amd-amdhsa--gfx950"
.text
.globl {NAME}_kernel
.p2align {OPT.get('al', 8)}
.type {NAME}_kernel,@function
{NAME}_kernel:
'''
    out += build()
    out += f'''.section .rodata,"a"
.p2align 6
.amdhsa_kernel {NAME}_kernel
  .amdhsa_next_free_vgpr 256
  .amdhsa_next_free_sgpr {98 if OPT['stamps'] else 96}
  .amdhsa_accum_offset 256
  .amdhsa_group_segment_fixed_size 0
  .amdhsa_kernarg_size 88
  .amdhsa_user_sgpr_count 2
  .amdhsa_user_sgpr_kernarg_segment_ptr 1
  .amdhsa_system_sgpr_workgroup_id_x 1
.end_amdhsa_kernel
'''
    open(path, 'w').write(out)


if __name__ == '__main__':
    for x in sys.argv[1:]:
        if x.startswith('--'):
            k, _, v = x[2:].partition('=')
            OPT[k] = (int(v, 0) if v[0].isdigit() else v) if v else True
    args = [x for x in sys.argv[1:] if not x.startswith('--')]
    main(args[0] if args else f'cdna_kernels/{NAME}.s')
```

```python
import math, struct, sys

NAME = 'concat_heads__spectral_fnet__softmax_full_mha__prompt'
QF, KV, EO, OF, WOF, RR, FLAGS, EPOCH, STAMP, WS_SIZE = (
    0, 0x200000, 0x600000, 0x700000, 0x900000, 0x980000, 0x990000, 0x9A0000, 0x9C0000, 0xB00000)
PFLAGS = 0xA00000
OFFS = 100.0
VLOG = 40
CSCALE = 0.25 * math.log2(math.e)
ONEBF = (127 + VLOG) << 7
SPIN = 400000
NB1 = 4
OPT = dict(stamps=False, cyc=False, stag=0x4242, stsh=2)


def f2u(x):
    return struct.unpack('<I', struct.pack('<f', x))[0]


class A:
    def __init__(self):
        self.l = []

    def __call__(self, s):
        for ln in s.strip('\n').split('\n'):
            ln = ln.strip()
            if not ln:
                continue
            self.l.append(ln if ln.endswith(':') or ln.startswith('.') else '    ' + ln)

    def text(self):
        return '\n'.join(self.l) + '\n'


def vr(b, n=4):
    return f'v[{b}:{b + n - 1}]'


def srd(a, d, lo, size):
    a(f'''s_mov_b32 s{d}, s{lo}
          s_mov_b32 s{d + 1}, s{lo + 1}
          s_mov_b32 s{d + 2}, {size}
          s_mov_b32 s{d + 3}, 0x20000''')


STV = 126


def stamp(a, slot):
    if not OPT['stamps']:
        return
    a(f'''{'s_memtime' if OPT['cyc'] else 's_memrealtime'} s[94:95]
          s_waitcnt lgkmcnt(0)
          v_writelane_b32 v{STV}, s94, {slot}''')
    if slot == 0:
        a(f'v_writelane_b32 v{STV}, s96, 30')


def stamp_dump(a):
    if not OPT['stamps']:
        return
    a(f'''v_mbcnt_lo_u32_b32 v{STV + 1}, -1, 0
          v_mbcnt_hi_u32_b32 v{STV + 1}, -1, v{STV + 1}
          v_lshlrev_b32 v{STV + 1}, 2, v{STV + 1}
          s_lshl_b32 s92, s2, 3
          s_add_u32 s92, s92, s3
          s_lshl_b32 s92, s92, 7
          s_add_u32 s92, s92, {STAMP}
          s_mov_b32 exec_hi, 0
          buffer_store_dword v{STV}, v{STV + 1}, s[16:19], s92 offen sc1
          s_mov_b64 exec, -1''')


SA, SB, NMA, NMB, OA, OB, QA, QB, KF, V0, V1 = 0, 16, 32, 48, 64, 80, 96, 100, 104, 108, 112
IDX, KA, VA, VINC, L16, WSA, LN, T0, T1, T2 = 116, 117, 118, 119, 120, 121, 122, 123, 124, 125
A2C, A2S, A2E, A2O, WO = 128, 144, 160, 176, 192
ONES, MRG, WST, CNT = 0x20000, 0x22800, 0x27000, 0x27800
QST = MRG
LDS_BYTES = 0x28000


def prologue(a):
    if OPT['stamps']:
        a(f"{'s_memtime' if OPT['cyc'] else 's_memrealtime'} s[96:97]")
    a(f'''s_cmp_ge_u32 s2, 256
          s_cbranch_scc1 L_end
          s_load_dwordx16 s[36:51], s[0:1], 0
          s_load_dwordx4 s[52:55], s[0:1], 64
          s_load_dwordx2 s[56:57], s[0:1], 80
          v_lshrrev_b32 v1, 6, v0
          v_and_b32 v0, 63, v0
          v_readfirstlane_b32 s3, v1
          s_and_b32 s60, s2, 7
          s_lshr_b32 s61, s2, 3
          s_cmp_eq_u32 s3, 0
          s_cbranch_scc0 L_nopf
          v_min_u32 v22, 5, v0
          v_lshl_add_u32 v22, v22, 5, s61
          v_lshlrev_b32 v22, 7, v22
          v_min_u32 v22, L_code_end - L_pc - 4, v22
          s_getpc_b64 s[6:7]
          L_pc:
          global_load_dword v23, v22, s[6:7]
          L_nopf:
          ; phase-1 roles: s62 kind, s63 rb, s64 cb, s65 rot
          s_lshr_b32 s62, s60, 1
          s_and_b32 s63, s60, 1
          s_lshl_b32 s63, s63, 3
          s_and_b32 s4, s61, 7
          s_add_u32 s63, s63, s4
          s_lshr_b32 s64, s61, 3
          s_lshl_b32 s65, s64, {1 if OPT.get('rot', 3) == 7 else 0}
          s_add_u32 s65, s65, s4
          s_cmp_eq_u32 s62, 3
          s_cselect_b32 s66, 1, 3
          s_lshl_b32 s14, s66, 19
          s_lshl_b32 s66, s66, 10          ; W pitch
          s_lshl_b32 s6, s62, 10
          s_lshl_b32 s7, s64, 8
          s_add_u32 s6, s6, s7
          s_and_b32 s7, s7, 256
          s_cmp_eq_u32 s62, 3
          s_cselect_b32 s67, s7, s6
          s_mov_b32 s10, 0x200000
          s_mov_b32 s11, 0x20000
          s_mov_b32 s15, 0x20000''')


def roles(a):
    a(f'''v_mov_b32 v{LN}, v0
          v_lshlrev_b32 v{L16}, 4, v0
          v_mov_b32 v224, 2.0
          v_mov_b32 v225, 2.0
          s_mov_b32 s75, 0
          s_mov_b32 s92, 0
          s_and_b32 s4, s61, 7
          s_lshl_b32 s76, s60, 2
          s_and_b32 s5, s61, 3
          s_add_u32 s76, s76, s5           ; head
          s_lshr_b32 s77, s61, 2           ; j
          s_and_b32 s78, s3, 3             ; q pair
          s_lshr_b32 s79, s3, 2
          s_lshl_b32 s80, s60, 3
          s_add_u32 s80, s80, s4           ; qt
          s_mov_b32 s81, s64               ; nb''')


def srds(a):
    a('''s_waitcnt lgkmcnt(0)
         s_cmp_lt_u32 s64, 2
         s_cselect_b32 s4, s42, s44
         s_cselect_b32 s5, s43, s45
         s_cmp_eq_u32 s62, 3
         s_cselect_b32 s8, s36, s46
         s_cselect_b32 s9, s37, s47
         s_cselect_b32 s12, s4, s48
         s_cselect_b32 s13, s5, s49''')


def srds_late(a):
    if OPT.get('wsoff'):
        a(f'''s_add_u32 s56, s56, {OPT['wsoff'] << 20}
              s_addc_u32 s57, s57, 0''')
    srd(a, 16, 56, WS_SIZE)
    srd(a, 32, 50, 0x80000)


def srds_attn(a):
    srd(a, 20, 52, 0x400000)
    srd(a, 24, 38, 0x800000)
    srd(a, 28, 40, 0x800000)


def o_offset(a):
    a(f'''s_lshl_b32 s4, s77, 3
          s_lshl_b32 s5, s78, 1
          s_add_u32 s4, s4, s5
          s_add_u32 s4, s4, s79
          s_lshl_b32 s4, s4, 15
          s_lshl_b32 s5, s76, 10
          s_add_u32 s4, s4, s5
          s_add_u32 s82, s4, {OF}''')


def epoch_load(a):
    a(f'''s_add_u32 s4, s56, {EPOCH}
          s_addc_u32 s5, s57, 0
          s_load_dword s58, s[4:5], 0''')


def p1_loader(a):
    a('''s_sub_u32 s68, s3, 4             ; lw
         v_lshrrev_b32 v1, 3, v0
         v_and_b32 v2, 7, v0
         v_lshrrev_b32 v3, 4, v0
         v_xor_b32 v2, v2, v3
         v_lshlrev_b32 v2, 4, v2
         v_xor_b32 v9, 64, v2
         s_cmp_eq_u32 s62, 3
         s_cbranch_scc1 L_p1_rowsA
         s_lshl_b32 s4, s63, 7
         s_lshl_b32 s5, s68, 5
         s_add_u32 s4, s4, s5
         v_add_u32 v1, s4, v1
         v_lshl_add_u32 v4, v1, 10, v2
         v_lshl_add_u32 v5, v1, 10, v9
         v_add_u32 v5, 0x1c00, v5
         v_add_u32 v6, 0x3800, v4
         v_add_u32 v7, 0x3800, v5
         L_p1_rowsdone:
         v_and_b32 v2, 15, v0
         v_lshlrev_b32 v9, 2, v3
         v_xor_b32 v2, v2, v9
         v_lshlrev_b32 v2, 4, v2
         s_lshl_b32 s4, s68, 4
         v_add_u32 v3, s4, v3
         v_mul_lo_u32 v3, v3, s66
         v_add3_u32 v8, v3, v2, s67
         v_xor_b32 v9, 32, v8
         s_lshl_b32 s72, s66, 2
         s_sub_u32 s72, s72, 1024
         s_lshl_b32 s73, s66, 6           ; 64*pitch
         s_lshl_b32 s74, s68, 12''')
    srds(a)

    def issue(stage):
        slot = stage & 3
        rm = OPT.get('rot', 3)
        if OPT.get('stag') and 1 <= stage <= 4:
            a(f'''s_cmp_ge_u32 s59, {stage}
                  s_addc_u32 s4, s65, {stage - 1}
                  s_and_b32 s4, s4, 3
                  s_cmp_eq_u32 s59, {stage}
                  s_cselect_b32 s4, s75, s4''')
        else:
            if stage:
                a(f's_add_u32 s4, s65, {stage}')
            a(f's_and_b32 s4, s{4 if stage else 65}, {rm}')
            if stage & ~rm:
                a(f's_or_b32 s4, s4, {stage & ~rm}')
        a(f'''s_add_u32 m0, s74, {slot * 32768}
              s_lshl_b32 s5, s4, 7''')
        for i in range(4):
            a(f'buffer_load_dwordx4 v{4 + i}, s[8:11], s5 offen offset:{i * 1024} lds')
        a(f'''s_add_u32 m0, s74, {slot * 32768 + 16384}
              s_mul_i32 s6, s4, s73''')
        for i in range(4):
            a(f'buffer_load_dwordx4 v{8 + (i >> 1)}, s[12:15], s6 offen offset:{i * 1024} lds')
            if i < 3:
                a('s_add_u32 s6, s6, s72')

    stamp(a, 0)
    issue(0)
    a('''s_branch L_p1_rowsskip
         L_p1_rowsA:
         s_lshl_b32 s4, s63, 5
         s_lshr_b32 s5, s68, 1
         s_lshl_b32 s5, s5, 4
         s_add_u32 s4, s4, s5
         v_add_u32 v1, s4, v1
         s_and_b32 s5, s68, 1
         s_lshl_b32 s6, s5, 10            ; B
         s_lshl_b32 s7, s5, 9
         v_cmp_eq_u32 vcc, 0, v1
         v_mov_b32 v10, s7
         v_add_u32 v11, s6, v1            ; B + s'
         v_cndmask_b32 v10, 0, v10, vcc
         s_add_u32 s6, s6, 1024
         v_sub_u32 v12, s6, v1            ; B + 1024 - s'
         v_add_u32 v13, 7, v11
         v_subrev_u32 v14, 11, v12
         v_sub_u32 v11, v11, v10
         v_sub_u32 v12, v12, v10
         v_subrev_u32 v12, 2, v12
         v_lshl_add_u32 v4, v11, 10, v2
         v_lshl_add_u32 v5, v13, 10, v9
         v_lshl_add_u32 v6, v12, 10, v2
         v_lshl_add_u32 v7, v14, 10, v9
         s_branch L_p1_rowsdone
         L_p1_rowsskip:''')
    roles(a)
    srds_late(a)
    epoch_load(a)
    o_offset(a)
    a(f'''v_and_b32 v1, 11, v0
          v_cmp_eq_u32 vcc, 0, v1
          v_mov_b32 v2, {ONEBF * 0x10001}
          s_mul_i32 s4, s68, 2560
          v_cndmask_b32 v16, 0, v2, vcc
          v_mov_b32 v17, v16
          v_mov_b32 v18, v16
          v_mov_b32 v19, v16
          s_add_u32 s4, s4, {ONES}
          v_add_u32 v1, s4, v{L16}
          ds_write_b128 v1, v[16:19]
          ds_write_b128 v1, v[16:19] offset:1024
          ds_write_b128 v1, v[16:19] offset:1536
          v_mov_b32 v1, {CNT}
          v_mov_b32 v2, 0
          ds_write2_b32 v1, v2, v2 offset1:1''')
    attn_setup(a)
    zero_o(a)
    if OPT.get('stag'):
        a(f'''s_lshr_b32 s4, s61, {OPT.get('stsh', 0)}
              s_and_b32 s4, s4, 3
              s_lshl_b32 s4, s4, 2
              s_lshr_b32 s59, {OPT['stag']}, s4
              s_and_b32 s59, s59, 7
              s_and_b32 s75, s65, 3
              s_or_b32 s75, s75, 4''')
    issue(1)
    stamp(a, 1)
    for c in range(8):
        if c == 3:
            stamp(a, 28)
        a(f's_waitcnt vmcnt({[8, 8, 8, 8, 8, 8, 8, 0][c]})')
        if c in (0, 3):
            stamp(a, 2 if c == 0 else 29)
        a('s_barrier')
        if c in (0, 7):
            stamp(a, 17 + c)
        if c <= 5:
            issue(c + 2)
    a('''s_waitcnt lgkmcnt(0)
         s_barrier''')
    a('s_add_u32 s58, s58, 1            ; nonce')
    stamp(a, 25)
    a(f'''s_lshr_b32 s4, s76, 3
          s_lshl_b32 s4, s4, 5
          s_add_u32 s4, s4, s61
          s_lshl_b32 s4, s4, 11
          s_add_u32 s4, s4, {PFLAGS}
          s_add_u32 s8, s56, s4
          s_addc_u32 s9, s57, 0
          s_mov_b32 s6, 1024
          s_lshl_b32 s70, s76, 16
          s_lshl_b32 s71, s77, 13
          s_add_u32 s70, s70, s71
          s_mov_b32 s71, {QST}
          s_cmp_eq_u32 s68, 1
          s_cselect_b32 s6, 0, s6
          s_cselect_b32 s70, s88, s70
          s_cselect_b32 s71, 0, s71
          s_cmp_eq_u32 s68, 2
          s_cselect_b32 s6, 1160, s6
          s_cselect_b32 s70, s89, s70
          s_cselect_b32 s71, 0x10000, s71
          s_mov_b32 s5, {SPIN}
          s_mov_b32 s59, s58
          s_mov_b64 s[12:13], 0
          s_mov_b32 m0, s71
          s_add_u32 s72, s70, 0x1000
          s_cmp_eq_u32 s68, 3
          s_barrier
          s_cbranch_scc0 L_s1_poll
          L_s1_poll7:                      ; wave 7: the other K, V blocks''')
    regs = [36, 40, 44][:NB1 - 1]
    for i, r in enumerate(regs):
        a(f's_load_dwordx4 s[{r}:{r + 3}], s[8:9], {128 * (i + 1)} glc')
    a('''s_sub_u32 s5, s5, 1
         s_cbranch_scc1 L_p1_join
         s_mov_b64 s[6:7], 0
         s_waitcnt lgkmcnt(0)''')
    for r in regs:
        for h in (0, 2):
            a(f'''s_xor_b64 s[10:11], s[{r + h}:{r + h + 1}], s[58:59]
                  s_or_b64 s[6:7], s[6:7], s[10:11]''')
    a('''s_cbranch_scc1 L_s1_poll7
         s_branch L_p1_join
         L_s1_poll:
         s_load_dwordx2 s[10:11], s[8:9], s6 glc
         s_sub_u32 s5, s5, 1
         s_cbranch_scc1 L_s1_pdone
         s_waitcnt lgkmcnt(0)
         s_cmp_eq_u64 s[10:11], s[58:59]
         s_cbranch_scc0 L_s1_poll
         L_s1_pdone:''')
    stamp(a, 26)
    for i in range(4):
        a(f'buffer_load_dwordx4 v{L16}, s[16:19], s70 offen offset:{i * 1024} sc1 lds')
    a('''s_add_u32 m0, s71, 0x1000
         s_nop 0''')
    for i in range(4):
        a(f'buffer_load_dwordx4 v{L16}, s[16:19], s72 offen offset:{i * 1024} sc1 lds')
    a('s_waitcnt vmcnt(0)')


def p1_compute(a):
    roles(a)
    a('''s_and_b32 s68, s3, 1             ; wr
         s_lshr_b32 s69, s3, 1            ; wc
         v_and_b32 v1, 15, v0
         v_lshrrev_b32 v2, 4, v0          ; g
         v_lshrrev_b32 v3, 1, v1
         v_xor_b32 v3, v3, v2
         v_lshlrev_b32 v3, 4, v3
         v_lshl_add_u32 v3, v1, 7, v3
         s_lshl_b32 s4, s68, 13
         v_add_u32 v4, s4, v3
         v_xor_b32 v5, 64, v4
         v_bfe_u32 v10, v0, 2, 2          ; r
         v_lshl_add_u32 v11, v2, 3, v10   ; 8g + r
         v_lshlrev_b32 v11, 8, v11
         v_lshlrev_b32 v10, 1, v10
         v_and_b32 v12, 1, v2
         v_or_b32 v10, v10, v12           ; z
         s_lshl_b32 s4, s69, 2
         v_xor_b32 v10, s4, v10
         v_lshl_add_u32 v11, v10, 5, v11
         v_and_b32 v10, 3, v0
         v_lshl_add_u32 v11, v10, 3, v11
         v_add_u32 v6, 16384, v11
         v_xor_b32 v7, 32, v6
         v_xor_b32 v8, 64, v6
         v_xor_b32 v9, 96, v6''')
    for i in range(32):
        a(f'v_mov_b64 {vr(128 + 2 * i, 2)}, 0')
    o_offset(a)
    a('s_waitcnt lgkmcnt(0)')
    stamp(a, 0)
    srds_late(a)
    epoch_load(a)
    if OPT.get('warm', 1):
        a(f'''s_cmp_eq_u32 s3, 1
              s_cbranch_scc0 L_p1_nowarm
              s_lshr_b32 s4, s76, 3
              s_lshl_b32 s4, s4, 5
              s_add_u32 s4, s4, s61
              s_lshl_b32 s4, s4, 11
              s_add_u32 s4, s4, {PFLAGS}
              v_lshlrev_b32 v1, 7, v0
              v_mov_b32 v2, 0
              s_mov_b64 exec, 0x3ff
              buffer_atomic_add v2, v1, s[16:19], s4 offen sc1
              s_mov_b64 exec, -1
              L_p1_nowarm:''')

    def rset(st):
        return 32 + 32 * st

    def reads(st, slot, ks):
        b = rset(st)
        L = []
        for i in range(4):
            L.append(f'ds_read_b128 {vr(b + 4 * i)}, v{4 + ks} offset:{slot * 32768 + i * 2048}')
            L.append(f'ds_read_b64_tr_b16 {vr(b + 16 + 4 * i, 2)}, v{6 + i} offset:{slot * 32768 + ks * 8192}')
            L.append(f'ds_read_b64_tr_b16 {vr(b + 18 + 4 * i, 2)}, v{6 + i} offset:{slot * 32768 + ks * 8192 + 1024}')
        return L

    def step(st, T, rd, extra=(), patch=False):
        b = rset(st)
        rd = list(rd)
        extra = list(extra)
        order = [(rt, ct) for ct in ((1, 2, 3, 0) if patch else range(4)) for rt in range(4)]
        for n, (rt, ct) in enumerate(order):
            acc = vr(128 + 16 * rt + 4 * ct)
            x, w = vr(b + 4 * rt), vr(b + 16 + 4 * ct)
            a(f'v_mfma_f32_16x16x32_bf16 {acc}, {w if T else x}, {x if T else w}, {acc}')
            for _ in range(2):
                if rd:
                    a(rd.pop(0))
            if patch and n < 4:
                a(f'v_cndmask_b32 v{b + 16 + n}, v{b + 16 + n}, v14, s[50:51]')
            if not rd and n >= 7 and extra:
                a(extra.pop(0))
        a('s_waitcnt lgkmcnt(0)')

    def mfma(st, T, rt, ct):
        b = rset(st)
        acc = vr(128 + 16 * rt + 4 * ct)
        x, w = vr(b + 4 * rt), vr(b + 16 + 4 * ct)
        a(f'v_mfma_f32_16x16x32_bf16 {acc}, {w if T else x}, {x if T else w}, {acc}')

    def epi(ct, pk):
        L = []
        for rp in range(2):
            d = 192 + 4 * (2 * ct + rp)
            for u in range(2):
                src = 128 + 16 * (2 * rp + u) + 4 * ct
                if pk:
                    L += [f'v_pk_mul_f32 {vr(src + i, 2)}, {vr(src + i, 2)}, s[52:53]' for i in (0, 2)]
                else:
                    L += [f'v_mul_f32 v{src + i}, s52, v{src + i}' for i in range(4)]
            for i in range(2):
                for u in range(2):
                    src = 128 + 16 * (2 * rp + u) + 4 * ct
                    L.append(f'v_cvt_pk_bf16_f32 v{d + 2 * u + i}, v{src + 2 * i}, v{src + 2 * i + 1}')
            L += [f'v_permlane16_swap_b32 v{d}, v{d + 2}',
                  f's_nop 0\nv_permlane16_swap_b32 v{d + 1}, v{d + 3}',
                  f'buffer_store_dwordx4 {vr(d)}, v{12 + rp}, s[16:19], s73 offen sc1' + ('\ns_add_u32 s73, s73, s74' if rp and ct < 3 else '')]
        return L

    def loop(T, tag):
        stamp(a, 2)
        a('s_barrier')
        stamp(a, 17)
        for r in reads(0, 0, 0):
            a(r)
        a(f'''s_waitcnt lgkmcnt(0)
              .p2align 3
              L_p1_loop{tag}:''')
        P = tag == 'A'
        step(0, T, reads(1, 0, 1), [], P)
        a('s_barrier')
        step(1, T, reads(0, 1, 0), [] if P else ['s_sub_u32 s70, s70, 1'], P)
        if not P:
            a(f's_cbranch_scc1 L_p1_last{tag}')
        step(0, T, reads(1, 1, 1), [f'v_xor_b32 v{r}, 0x10000, v{r}' for r in range(4, 10)], P)
        a('s_barrier')
        step(1, T, reads(0, 0, 0), ['s_sub_u32 s70, s70, 1'] if P else [], P)
        if P:
            a('s_cbranch_scc0 L_p1_loopA')
            stamp(a, 3)
            return
        a(f's_branch L_p1_loop{tag}')
        a(f'L_p1_last{tag}:')
        rd = reads(1, 1, 1)
        for ct in range(2):
            for rt in range(4):
                mfma(0, T, rt, ct)
                for _ in range(3):
                    if rd:
                        a(rd.pop(0))
        a('''s_waitcnt lgkmcnt(0)
             s_barrier''')
        seq = [(1, 0), (1, 1), (0, 2), (1, 2), (0, 3), (1, 3)]
        pend, ready = [], {1: 0, 2: 1, 4: 2}
        PER = OPT.get('eper', 2)
        for k, (st, ct) in enumerate(seq):
            for rt in range(4):
                mfma(st, T, rt, ct)
                if rt == 1 and k in ready:
                    if not pend:
                        a('s_nop 3')
                    pend += epi(ready[k], False)
                for _ in range(PER):
                    if pend:
                        a(pend.pop(0))
        stamp(a, 3)
        n = len(pend)
        for x in pend:
            a(x)
        if n < 8:
            a(f's_nop {7 - n}')
        for x in epi(3, True):
            a(x)
        a('s_barrier')

    attn_setup(a)
    a('''s_cmp_eq_u32 s62, 3
         s_cbranch_scc1 L_p1_A''')
    a(f'''s_cmp_eq_u32 s62, 2
          s_cselect_b32 s52, {f2u(2.0 ** VLOG)}, 1.0
          s_cselect_b32 s73, 1024, 0
          s_cselect_b32 s7, 12, 0
          s_add_u32 s73, s73, {KV}
          s_cmp_eq_u32 s62, 0
          s_cselect_b32 s52, {f2u(CSCALE)}, s52
          s_cselect_b32 s71, 16, 17
          s_cselect_b32 s72, 10, 11
          s_cselect_b32 s73, {QF}, s73
          s_mov_b32 s53, s52
          s_lshl_b32 s4, s64, 3
          s_lshl_b32 s5, s69, 2
          s_add_u32 s4, s4, s5             ; head0
          s_lshl_b32 s4, s4, s71
          s_lshl_b32 s5, s63, 2
          s_lshl_b32 s6, s68, 1
          s_add_u32 s5, s5, s6             ; tile0
          s_lshl_b32 s5, s5, s72
          s_add_u32 s73, s73, s4
          s_add_u32 s73, s73, s5
          s_lshl_b32 s74, 1, s71
          s_lshl_b32 s75, 1, s72
          v_lshrrev_b32 v1, 1, v0
          v_xor_b32 v1, v1, v0
          v_and_b32 v1, 4, v1
          v_mul_u32_u24 v1, 3, v1
          v_and_b32 v1, s7, v1
          v_xor_b32 v1, v1, v0
          v_lshlrev_b32 v12, 4, v1
          v_add_u32 v13, s75, v12
          s_mov_b32 s70, 3''')
    a(f'''s_and_b32 s4, s63, 7
          s_cmp_ge_u32 s4, {NB1}
          s_cselect_b32 s12, s62, 0
          s_mov_b32 s13, 0
          s_cmp_lg_u32 s12, 0
          s_cselect_b32 s4, 2.0, 0
          s_mov_b32 s75, s73
          v_mov_b32 v224, v12
          v_mov_b32 v225, v13
          v_or_b32 v12, s4, v12
          v_or_b32 v13, s4, v13''')
    a(f'''s_setprio {OPT.get('cprio', 1)}
          s_cmp_eq_u32 s62, 2
          s_cbranch_scc1 L_p1_N''')
    loop(True, 'T')
    a('''s_branch L_p1_cdone
         L_p1_N:''')
    loop(False, 'N')
    a('''s_branch L_p1_cdone
         L_p1_A:''')
    a(f'''v_lshrrev_b32 v1, 2, v0
          v_and_b32 v2, 3, v0
          v_lshlrev_b32 v3, 4, v2
          v_lshl_add_u32 v15, v1, 10, v3
          v_lshrrev_b32 v3, 4, v0
          v_bfe_u32 v10, v0, 2, 2
          v_lshl_add_u32 v3, v3, 3, v10
          v_lshlrev_b32 v3, 6, v3
          v_lshl_add_u32 v3, v2, 3, v3
          s_lshl_b32 s71, s3, 11
          s_add_u32 s71, s71, {QST}
          v_add_u32 v20, s71, v3
          s_lshl_b32 s6, s64, 2
          s_add_u32 s6, s6, s3
          s_lshl_b32 s4, s63, 15
          s_lshl_b32 s5, s6, 6
          s_add_u32 s72, s4, s5
          s_mov_b32 m0, s71
          s_add_u32 s73, s72, 0x3c00
          buffer_load_dwordx4 v15, s[32:35], s72 offen lds
          buffer_load_dwordx4 v15, s[32:35], s73 offen offset:1024 lds
          s_lshl_b32 s6, s6, 15
          s_lshl_b32 s70, s63, 10
          s_add_u32 s70, s70, s6
          s_add_u32 s92, s70, {WOF}        ; destination
          s_lshl_b32 s4, s64, 1
          s_add_u32 s4, s4, s69
          s_cmp_eq_u32 s4, 4
          s_cselect_b32 s50, 0x10001, 0
          s_mov_b32 s51, s50
          v_mov_b32 v14, 0xbf803f80
          s_mov_b32 s70, 3''')
    loop(False, 'A')
    a(f'''s_waitcnt vmcnt(0)
          ds_read_b64_tr_b16 v[208:209], v20
          ds_read_b64_tr_b16 v[210:211], v20 offset:256
          ds_read_b64_tr_b16 v[212:213], v20 offset:32
          ds_read_b64_tr_b16 v[214:215], v20 offset:288
          s_mov_b32 s12, 0
          s_mov_b32 s13, 1
          s_waitcnt lgkmcnt(0)
          s_barrier''')
    a(f'''s_cmp_lt_u32 s64, 2
          s_cselect_b32 s70, 1.0, -1.0
          v_mov_b32 v10, s70
          v_mov_b32 v11, s70
          s_lshl_b32 s4, s64, 1
          s_add_u32 s4, s4, s69
          s_cmp_eq_u32 s4, 4
          s_cselect_b32 s5, 0x10001, 0
          s_mov_b32 vcc_lo, s5
          s_mov_b32 vcc_hi, s5
          v_mov_b32 v3, 1.0
          v_cndmask_b32 v10, v10, v3, vcc
          s_lshl_b32 s5, s63, 1
          s_add_u32 s5, s5, s68
          s_cmp_eq_u32 s5, 0
          s_cbranch_scc0 L_p1_noR
          s_lshl_b32 s6, s4, 8
          s_add_u32 s6, s6, {RR}
          s_mov_b64 exec, 0xffff
          v_lshl_add_u32 v224, v0, 2, s6''')
    for ct in range(4):
        a(f'''v_fma_f32 v{216 + ct}, v{10 if ct == 0 else 11}, v{176 + 4 * ct}, v{160 + 4 * ct}
              v_mov_b32 v{160 + 4 * ct}, 0
              v_mov_b32 v{176 + 4 * ct}, 0''')
    a(f'''s_mov_b64 exec, -1
          L_p1_noR:
          s_lshr_b32 s6, s64, 1
          s_lshl_b32 s6, s6, 19
          s_and_b32 s4, s4, 3
          s_lshl_b32 s4, s4, 16
          s_lshl_b32 s5, s5, 10
          s_add_u32 s73, s4, s5
          s_add_u32 s73, s73, s6
          s_add_u32 s73, s73, {EO}
          s_add_u32 s74, s73, 0x40000''')
    for cp in range(2):
        for u in range(2):
            ct = 2 * cp + u
            sg = 10 if ct == 0 else 11
            for i in range(4):
                a0, a1, a2, a3 = (128 + 16 * k + 4 * ct + i for k in range(4))
                a(f'''v_fmac_f32 v{a0}, v{sg}, v{a3}
                      v_fmac_f32 v{a1}, v{sg}, v{a2}''')
            for i in range(4):
                a0, a1, a2, a3 = (128 + 16 * k + 4 * ct + i for k in range(4))
                a(f'''v_fma_f32 v{a2}, v{sg}, v{a1}, v{a0}
                      v_fma_f32 v{a3}, -v{sg}, v{a1}, v{a0}''')
        for par in range(2):
            d = 192 + 4 * (2 * cp + par)
            for u in range(2):
                src = 160 + 16 * par + 4 * (2 * cp + u)
                for i in range(2):
                    a(f'v_cvt_pk_bf16_f32 v{d + 2 * u + i}, v{src + 2 * i}, v{src + 2 * i + 1}')
            a(f'''s_nop 1
                  v_permlane16_swap_b32 v{d}, v{d + 2}
                  v_permlane16_swap_b32 v{d + 1}, v{d + 3}
                  ''')
    a('L_p1_cdone:')


def attn_setup(a):
    srds_attn(a)
    a(f'''s_lshl_b32 s4, s79, 16
          v_add_u32 v{KA}, s4, v{L16}
          v_and_b32 v1, 16, v{LN}
          v_cmp_ne_u32 vcc, 0, v1
          v_and_b32 v2, 15, v{LN}
          v_lshlrev_b32 v2, 4, v2
          v_add_u32 v2, {ONES}, v2
          v_cndmask_b32 v{VA}, v{KA}, v2, vcc
          v_mov_b32 v2, 0x2000
          v_cndmask_b32 v{VINC}, v2, 0, vcc
          v_mov_b32 v{IDX}, 0xdddddddd
          v_and_b32 v1, 31, v{LN}
          s_and_b32 s4, s76, 15
          s_lshl_b32 s4, s4, 6
          s_lshr_b32 s83, s76, 4           ; p
          s_add_u32 s84, s4, s83
          v_lshl_add_u32 v1, v1, 1, s84
          v_lshlrev_b32 v1, 12, v1
          v_lshrrev_b32 v2, 5, v{LN}
          v_lshl_add_u32 v1, v2, 4, v1
          s_lshl_b32 s4, s3, 7
          v_add_u32 v{WSA}, s4, v1
          s_lshl_b32 s85, s83, 18
          s_lshl_b32 s4, s77, 15
          s_add_u32 s85, s85, s4
          s_lshl_b32 s4, s3, 12
          s_add_u32 s85, s85, s4
          s_add_u32 s85, s85, {EO}         ; E fragments
          s_add_u32 s86, s85, 0x80000      ; O fragments
          s_lshl_b32 s87, s81, 3
          s_add_u32 s87, s87, s3
          s_lshl_b32 s87, s87, 14
          s_add_u32 s87, s87, {WOF}
          s_lshl_b32 s88, s76, 17
          s_add_u32 s88, s88, {KV}
          s_lshl_b32 s4, s79, 16
          s_add_u32 s89, s88, s4
          s_lshl_b32 s91, s78, 11
          s_add_u32 s90, s89, s91
          s_add_u32 s5, s91, {QST}
          v_add_u32 v{T0}, s5, v{L16}
          s_add_u32 s91, s91, s4
          s_lshl_b32 s4, s64, 6
          s_lshl_b32 s5, s62, 4
          s_add_u32 s4, s4, s5
          s_add_u32 s4, s4, s63
          s_lshl_b32 s4, s4, 4
          s_add_u32 s93, s4, {FLAGS}
          s_lshr_b32 s4, s76, 3
          s_lshl_b32 s4, s4, 5
          s_add_u32 s4, s4, s61
          s_lshl_b32 s4, s4, 11
          s_add_u32 s55, s4, {PFLAGS}
          s_and_b32 s4, s63, 7
          s_lshl_b32 s5, s4, 7
          s_and_b32 s6, s63, 8
          s_add_u32 s5, s5, s6
          s_lshl_b32 s6, s62, 2
          s_add_u32 s5, s5, s6
          s_lshl_b32 s6, s64, 16
          s_add_u32 s5, s5, s6
          s_add_u32 s5, s5, {PFLAGS - 4}
          s_cmp_ge_u32 s4, {NB1}
          s_cselect_b32 s4, s62, 0
          s_sub_u32 s4, s4, 1
          s_cmp_lt_u32 s4, 2
          s_cselect_b32 s54, s5, 0''')


def zero_o(a):
    for i in range(16):
        a(f'v_mov_b64 {vr(OA + 2 * i, 2)}, 0')


def kv_dma(c):
    return [f's_add_u32 s4, s90, {c * 8192}',
            f's_add_u32 m0, s91, {c * 8192}',
            's_nop 0',
            f'buffer_load_dwordx4 v{L16}, s[16:19], s4 offen sc1 lds',
            f'buffer_load_dwordx4 v{L16}, s[16:19], s4 offen offset:1024 sc1 lds']


def publish1(a):
    a(f'''s_cmp_eq_u32 s62, 3
          s_cbranch_scc1 L_p1_join
          s_and_b32 s4, s63, 7
          s_cmp_eq_u32 s63, 8
          s_cselect_b32 s4, 9, s4
          s_lshl_b32 s4, s4, 7
          s_and_b32 s5, s63, 8
          s_lshl_b32 s6, s62, 2
          s_add_u32 s5, s5, s6
          s_add_u32 s4, s4, s5
          s_sub_u32 s4, s4, 4
          s_and_b32 s5, s63, 1
          s_lshl_b32 s5, s5, 2
          s_lshr_b32 s6, s63, 1
          s_lshl_b32 s6, s6, 13
          s_add_u32 s5, s5, s6
          s_add_u32 s5, s5, 1024
          s_cmp_eq_u32 s62, 0
          s_cselect_b32 s4, s5, s4
          s_cselect_b32 s6, 15, -1
          s_lshl_b32 s5, s64, 16
          s_add_u32 s4, s4, s5
          s_add_u32 s4, s4, {PFLAGS}
          s_cmp_lg_u32 s12, 0
          s_cbranch_scc1 L_p1_join
          v_lshlrev_b32 v1, 11, v{LN}
          v_mov_b32 v2, s58
          v_mov_b32 v3, {CNT}
          v_mov_b32 v4, 1
          s_mov_b64 exec, 1
          s_waitcnt vmcnt(0)
          ds_add_rtn_u32 v4, v3, v4
          s_waitcnt lgkmcnt(0)
          v_readfirstlane_b32 s5, v4
          s_mov_b32 exec_lo, s6
          s_cmp_eq_u32 s5, 3
          s_cbranch_scc0 L_s1_noflag
          buffer_store_dword v2, v1, s[16:19], s4 offen sc1
          L_s1_noflag:
          s_mov_b64 exec, -1''')


def a2mm(D, x, y, ks):
    return f'v_mfma_f32_32x32x16_bf16 {vr(D, 16)}, {vr(x + 4 * ks)}, {vr(y + 4 * ks)}, {vr(D, 16) if ks else 0}'


CC, SS, X3, X4 = NMA, NMB, SA, SB
MG = 0x8000


def unit(a, tau, b, side, last=False):
    X, Y = (SB, SA) if b else (SA, SB)
    OX, OY = (OB, OA) if b else (OA, OB)
    QY, NY = (QA, NMA) if b else (QB, NMB)
    vo = (tau & 3) * 2048
    side = list(side)
    e = lambda i: a(f'v_exp_f32 v{X + i}, v{X + i}')
    u = 2 * tau + b
    pr = OPT.get('pr', 1)
    p0, p1 = {0: (0, 1), 1: (3 - (u & 3), None), 2: (3 - ((2 * u) & 3), 3 - ((2 * u + 1) & 3)), 3: (None if b else 3 - (tau & 3), None),
              4: (None, None), 5: (2 - 2 * (u & 1), 3 - 2 * (u & 1)), 6: (None, 3 - (u & 3)), 7: (2 - 2 * (tau & 1), 3 - 2 * (tau & 1)),
              8: (2 - (u % 3), 3 - (u % 3)), 9: (1, 0)}[pr]
    if p0 is not None:
        a(f's_setprio {p0}')
    e(0); e(1)
    if b:
        a('s_waitcnt lgkmcnt(0)')
    if b or tau > 0:
        a(f'v_smfmac_f32_32x32x32_bf16 {vr(OY, 16)}, {vr(V1)}, {vr(Y + 8, 8)}, v{IDX}')
    if not b:
        a(f'ds_read_b128 {vr(V1)}, v{VA} offset:{vo + 1280}')
    e(2); e(3); e(4)
    if not (b and last):
        a(f'v_mfma_f32_32x32x16_bf16 {vr(Y, 16)}, {vr(KF)}, {vr(QY)}, {vr(NY, 16)}')
    else:
        a(a2mm(CC, A2C, A2E, 2))
    if not b and not last:
        a(f'ds_read_b128 {vr(KF)}, v{KA} offset:{(tau + 1) * 2048}')
    if p1 is not None:
        a(f's_setprio {p1}')
    for i in range(5, 10):
        e(i)
        if last and i == 7:
            a(a2mm(CC, A2C, A2E, 3 if b else 0))
    if not b:
        a(f's_waitcnt lgkmcnt({1 if last else 2})')
    a(f'v_smfmac_f32_32x32x32_bf16 {vr(OX, 16)}, {vr(V0)}, {vr(X, 8)}, v{IDX}')
    if b and not last:
        a(f'ds_read_b128 {vr(V0)}, v{VA} offset:{vo + 2048 + 1024}')
        if (tau & 3) == 3:
            a(f'v_add_u32 v{VA}, v{VINC}, v{VA}')
    for i in range(10, 16):
        e(i)
        if i == 12:
            for s in side:
                a(s)


def attention(a):
    stamp(a, 4)
    a('''s_mov_b64 s[14:15], s[54:55]
         s_barrier''')
    stamp(a, 6)
    a(f'''ds_read_b128 {vr(QA)}, v{T0}
          ds_read_b128 {vr(V1)}, v{L16}
          ds_read_b128 {vr(QB)}, v{T0} offset:1024
          ds_read_b128 {vr(KF)}, v{KA}
          ds_read_b128 {vr(V0)}, v{VA} offset:1024''')
    for s_ in kv_dma(1):
        a(s_)
    a(f'''s_waitcnt lgkmcnt(3)
          v_mfma_f32_32x32x16_bf16 {vr(SA, 16)}, {vr(V1)}, {vr(QA)}, 0
          s_waitcnt lgkmcnt(2)
          v_mfma_f32_32x32x16_bf16 {vr(SB, 16)}, {vr(V1)}, {vr(QB)}, 0
          s_nop 0''')
    for s_ in kv_dma(2):
        a(s_)
    a('s_nop 3')
    for S, NM, t in ((SA, NMA, T0), (SB, NMB, T1)):
        a(f'v_max3_f32 v{t}, v{S}, v{S + 1}, v{S + 2}')
        for i in range(3, 15, 2):
            a(f'v_max3_f32 v{t}, v{t}, v{S + i}, v{S + i + 1}')
        a(f'''v_max_f32 v{t}, v{t}, v{S + 15}
              v_mov_b32 v{T2}, v{t}
              s_nop 1
              v_permlane32_swap_b32 v{t}, v{T2}
              v_max_f32 v{t}, v{t}, v{T2}
              v_sub_f32 v{NM}, {f2u(-OFFS)}, v{t}
              v_sub_f32 v{NM + 1}, {f2u(-OFFS)}, v{t}''')
        for i in range(2, 16, 2):
            a(f'v_mov_b64 {vr(NM + i, 2)}, {vr(NM, 2)}')
        if S == SA:
            a(f'''s_waitcnt lgkmcnt(0)
                  s_nop 0
                  v_mfma_f32_32x32x16_bf16 {vr(SA, 16)}, {vr(KF)}, {vr(QA)}, {vr(NMA, 16)}''')
    stamp(a, 7)

    side = {}

    def put(tau, b, ins):
        side.setdefault((tau, b), []).extend(ins)

    assert NB1 == 4
    putu = lambda u, ins: put(u >> 1, u & 1, ins)
    putu(0, kv_dma(3))
    kvs = [[f'buffer_store_dwordx4 {vr(192 + 4 * (2 * ct + rp))}, v{224 + rp}, s[16:19], s75 offen sc1' for rp in range(2)] +
           ['s_add_u32 s75, s75, s74'] for ct in range(4)]
    eo = lambda cp: [f'buffer_store_dwordx4 {vr(192 + 4 * (2 * cp + par))}, v{L16}, s[16:19], s{73 + par} offen sc1' for par in range(2)]
    rs = lambda k: [f'buffer_store_dword v{216 + ct}, v224, s[16:19], 0 offen offset:{ct * 64} sc1' for ct in (k, k + 1)]
    a1s = [eo(0) + ['s_add_u32 s73, s73, 0x8000', 's_add_u32 s74, s74, 0x8000'], eo(1),
           [f'buffer_store_dwordx4 {vr(208)}, v{L16}, s[16:19], s92 offen sc1', 's_add_u32 s92, s92, 0x4000',
            f'buffer_store_dwordx4 {vr(212)}, v{L16}, s[16:19], s92 offen sc1'], rs(0), rs(2)]
    cold = []
    UP, UF, UA = OPT.get('up', 10), OPT.get('uf', 19), OPT.get('ua', 8)
    assert UP % 2 == 0 and UF % 2 == 1
    for k in range(5):
        if k < 4:
            putu(2 + k, ['s_cmp_eq_u32 s12, 0', f's_cbranch_scc1 L_at_nokv{k}'] + kvs[k] + [f'L_at_nokv{k}:'])
        putu(UA + k, ['s_cmp_eq_u32 s13, 0', f's_cbranch_scc0 L_at_a1s{k}', f'L_at_a1r{k}:'])
        cold += [f'L_at_a1s{k}:'] + a1s[k] + [f's_branch L_at_a1r{k}']
    count_in = lambda off: [f'v_mov_b32 v{T0}, {CNT + off}', f'v_mov_b32 v{T1}, 1', 's_mov_b64 exec, 1',
                            f'ds_add_rtn_u32 v{T1}, v{T0}, v{T1}', 's_mov_b64 exec, -1']
    putu(UP, ['s_cmp_eq_u32 s12, 0', 's_cbranch_scc0 L_at_cnt1', 'L_at_cnt1r:'])
    cold += ['L_at_cnt1:', 's_waitcnt vmcnt(0)'] + count_in(0) + ['s_branch L_at_cnt1r']
    putu(UP + 1, ['s_cmp_eq_u32 s12, 0', 's_cbranch_scc0 L_at_pub1', 'L_at_pub1r:'])
    cold += ['L_at_pub1:', f'v_readfirstlane_b32 s4, v{T1}', f'v_mov_b32 v{T0}, s58', 's_cmp_eq_u32 s4, 3', 's_cbranch_scc0 L_at_pub1r',
             f'v_lshlrev_b32 v{T1}, 11, v{LN}', 's_mov_b32 exec_hi, 0',
             f'buffer_store_dword v{T0}, v{T1}, s[16:19], s14 offen sc1', 's_mov_b32 exec_hi, -1', 's_branch L_at_pub1r']
    putu(UP + 2, [f'v_mov_b64 {vr(228, 2)}, -1', f'v_mov_b64 {vr(230, 2)}, -1',
                  f'buffer_store_dwordx4 {vr(228)}, v{L16}, s[16:19], s82 offen sc1'])
    f1 = f'buffer_load_dword v{T0}, v{T2}, s[16:19], s15 offen offset:{128 * NB1} sc1'
    putu(UF - 1, [f'v_bfe_u32 v{T0}, v{LN}, 2, 2', f'v_and_b32 v{T2}, 3, v{LN}', f'v_lshlrev_b32 v{T2}, 2, v{T2}', f'v_lshl_add_u32 v{T2}, v{T0}, 7, v{T2}'])
    putu(UF, [f1])
    putu(UF + 3, ['s_waitcnt vmcnt(0)', f'v_cmp_ne_u32 vcc, s58, v{T0}', 's_cbranch_vccnz L_at_f1retry', 'L_at_f1ok:'] + count_in(4))
    putu(UF + 4, [f'v_readfirstlane_b32 s4, v{T1}', 's_nop 0', 's_cmp_eq_u32 s4, 7', 's_cbranch_scc1 L_at_pub2', 'L_at_pub2r:'])
    cold += ['L_at_pub2:', f'v_mov_b32 v{T0}, s58', 's_mov_b64 exec, 1',
             f'buffer_store_dword v{T0}, v{L16}, s[16:19], s93 offen sc1', 's_mov_b64 exec, -1', 's_branch L_at_pub2r']
    for c in range(4, 8):
        putu(UF + c - 1, kv_dma(c))
    flag_loads = [f'buffer_load_dword v{A2E + i}, v{L16}, s[16:19], s92 offen offset:{i * 1024} sc1' for i in range(4)]
    putu(35, [f's_mov_b32 s92, {FLAGS}'] + flag_loads[:2])
    putu(37, flag_loads[2:])
    putu(43, ['s_waitcnt vmcnt(3)',
              f'v_cmp_ne_u32 vcc, s58, v{A2E}', f'v_cmp_ne_u32 s[4:5], s58, v{A2E + 1}',
              f'v_cmp_ne_u32 s[6:7], s58, v{A2E + 2}', f'v_cmp_ne_u32 s[62:63], s58, v{A2E + 3}',
              's_or_b64 vcc, vcc, s[4:5]', 's_or_b64 s[6:7], s[6:7], s[62:63]', 's_or_b64 vcc, vcc, s[6:7]',
              's_cbranch_vccnz L_at_fretry', 'L_at_fok:', 's_or_b32 s4, s2, s3', 's_cbranch_scc0 L_at_epoch', 'L_at_epochr:'])
    cold += ['L_at_epoch:', f's_mov_b32 s4, {EPOCH}', 's_mov_b64 exec, 1', f'buffer_store_dword v{A2E}, v{L16}, s[16:19], s4 offen sc1',
             's_mov_b64 exec, -1', 's_branch L_at_epochr']
    flag_loads = (flag_loads, f1, cold)
    loads = []
    for m in range(2):
        for ks in range(4):
            loads.append(f'buffer_load_dwordx4 {vr(A2C + 16 * m + 4 * ks)}, v{WSA}, s[{24 + 4 * m}:{27 + 4 * m}], 0 offen offset:{ks * 32}')
    for m in range(2):
        for ks in range(4):
            loads.append(f'buffer_load_dwordx4 {vr(A2E + 16 * m + 4 * ks)}, v{L16}, s[16:19], s{85 + m} offen offset:{ks * 1024} sc1')
    for ks in range(16):
        pre = 's_add_u32 s87, s87, 0x1000\n' if ks and ks % 4 == 0 else ''
        loads.append(pre + f'buffer_load_dwordx4 {vr(WO + 4 * ks)}, v{L16}, s[16:19], s87 offen offset:{(ks & 3) * 1024} sc1')
    for k, uu in enumerate((UP + 4, 32, 34, 36, UF + 7, 38, 40, 42)):
        putu(uu, [loads[k]])
    u = 44
    for k in range(8, 32, 2):
        putu(u, loads[k:k + 2]); u += 1
    put(u >> 1, u & 1, [f'v_and_b32 v{T0}, 31, v{LN}', f'v_lshlrev_b32 v{T0}, 2, v{T0}', f'v_mov_b32 v{T1}, 0',
                        's_lshl_b32 s4, s77, 7', 's_lshl_b32 s5, s83, 10', 's_add_u32 s4, s4, s5',
                        f's_add_u32 s4, s4, {RR}', f's_mov_b32 s5, {RR + 1024}',
                        f'buffer_load_dword v{T0}, v{T0}, s[16:19], s4 offen sc1',
                        f'buffer_load_dword v{T1}, v{T1}, s[16:19], s5 offen sc1'])
    assert u < 60
    put(30, 0, ['s_waitcnt vmcnt(0)', 's_cmp_eq_u32 s76, 0', 's_cbranch_scc0 L_a2_nopatch', 's_mov_b32 exec_lo, 1', 's_mov_b32 exec_hi, 1'] +
        [f'v_mov_b32 v{A2S + i}, 0xbf803f80' for i in range(16)] + ['s_mov_b64 exec, -1', 'L_a2_nopatch:'])
    put(30, 1, ['s_mul_i32 s4, s3, 2304', f's_add_u32 m0, s4, {MG}', 's_xor_b32 s5, s3, 4', 's_mul_i32 s5, s5, 2304',
                f's_add_u32 s70, s5, {MG}', f"s_mov_b32 s71, {0 if OPT.get('forcefb') else f2u(2.0 ** 120)}"])
    put(31, 0, [a2mm(CC, A2C, A2E, 1)])
    put(31, 1, [a2mm(SS, A2S, A2O, 0), 's_cmp_eq_u32 s79, 0'])
    a('.p2align 3')
    for tau in range(32):
        if tau == 3:
            a('''s_waitcnt vmcnt(8)
                 s_cmp_lg_u32 s12, 0
                 s_cbranch_scc1 L_at_w3
                 s_waitcnt vmcnt(0)
                 L_at_w3:
                 s_barrier''')
            stamp(a, 8)
        if tau == 15:
            a('s_waitcnt vmcnt(1)\ns_barrier')
            stamp(a, 9)
        if tau in (8, 11, 19, 22, 26):
            stamp(a, {8: 18, 11: 5, 19: 19, 22: 20, 26: 21}[tau])
        for b in range(2):
            unit(a, tau, b, side.get((tau, b), []), last=(tau == 31))
    a(f'''s_setprio 0
          s_cbranch_scc1 L_mg_k0''')
    R = KF
    for kh in (1, 0):
        snd, kp = (OA, OB) if kh else (OB, OA)
        if kh == 0:
            a('L_mg_k0:')
        a(f'v_smfmac_f32_32x32x32_bf16 {vr(OB, 16)}, {vr(V1)}, {vr(SB + 8, 8)}, v{IDX}')
        stamp(a, 10)
        if kh == 0:
            a('s_nop 11')
        for i in range(9):
            a(f'ds_write_addtid_b32 v{snd + i} offset:{MG + i * 256}')
        a(a2mm(SS, A2S, A2O, 1))
        a('''s_mov_b32 m0, s70
             s_waitcnt lgkmcnt(0)
             s_barrier''')
        for i in (8, 0, 1, 2, 3, 4, 5, 6, 7):
            a(f'ds_read_addtid_b32 v{R + i} offset:{MG + i * 256}')
        a(a2mm(SS, A2S, A2O, 2))
        a(f'''s_waitcnt lgkmcnt(8)
              v_add_f32 v{R + 8}, v{R + 8}, v{kp + 8}
              v_rcp_f32 v{R + 10}, v{R + 8}''')
        for i in range(4):
            a(f'''s_waitcnt lgkmcnt({6 - 2 * i})
                  v_pk_add_f32 {vr(R + 2 * i, 2)}, {vr(R + 2 * i, 2)}, {vr(kp + 2 * i, 2)}''')
        if kh:
            a('s_branch L_mg_j')
    a('L_mg_j:')
    for i in range(4):
        a(f'v_pk_mul_f32 {vr(R + 2 * i, 2)}, {vr(R + 2 * i, 2)}, {vr(R + 10, 2)} op_sel_hi:[1,0]')
    for i in range(4):
        a(f'v_cvt_pk_bf16_f32 v{OB + i}, v{R + 2 * i}, v{R + 2 * i + 1}')
    for i in range(4):
        a(f'v_dot2c_f32_bf16 v{R + 8}, v{OB + i}, v{OB + i}')
    a(a2mm(SS, A2S, A2O, 3))
    a(f'''s_nop 1
          v_cmp_ngt_f32 vcc, s71, v{R + 8}
          s_cbranch_vccnz L_fallback
          L_at_final:
          buffer_store_dwordx4 {vr(OB)}, v{L16}, s[16:19], s82 offen sc1''')
    stamp(a, 11)
    return flag_loads


def cold_paths(a, flag_loads):
    flag_loads, f1, cold = flag_loads
    for x in cold:
        a(x)
    a(f'''L_at_f1retry:
          s_mov_b32 s5, {SPIN}
          L_at_f1retry2:
          {f1}
          s_waitcnt vmcnt(0)
          v_cmp_ne_u32 vcc, s58, v{T0}
          s_cbranch_vccz L_at_f1ok
          s_sub_u32 s5, s5, 1
          s_cbranch_scc0 L_at_f1retry2
          s_branch L_at_f1ok''')
    a(f'''L_at_fretry:
          s_mov_b32 s93, {SPIN}
          L_at_fretry2:''')
    for s in flag_loads:
        a(s)
    a(f'''s_waitcnt vmcnt(0)
          v_cmp_ne_u32 vcc, s58, v{A2E}
          v_cmp_ne_u32 s[4:5], s58, v{A2E + 1}
          v_cmp_ne_u32 s[6:7], s58, v{A2E + 2}
          v_cmp_ne_u32 s[62:63], s58, v{A2E + 3}
          s_or_b64 vcc, vcc, s[4:5]
          s_or_b64 s[6:7], s[6:7], s[62:63]
          s_or_b64 vcc, vcc, s[6:7]
          s_cbranch_vccz L_at_fok
          s_sub_u32 s93, s93, 1
          s_cbranch_scc0 L_at_fretry2
          s_branch L_at_fok''')
    a(f'''L_fallback:
          s_cmp_eq_u32 s79, 0
          s_cbranch_scc1 L_fb_q
          v_mov_b64 {vr(QA, 2)}, {vr(QB, 2)}
          v_mov_b64 {vr(QA + 2, 2)}, {vr(QB + 2, 2)}
          L_fb_q:
          v_mov_b32 v{SB}, 0xff800000
          s_mov_b32 s4, s88
          s_mov_b32 s5, 64
          L_fb_max:
          buffer_load_dwordx4 {vr(KF)}, v{L16}, s[16:19], s4 offen sc1
          s_waitcnt vmcnt(0)
          v_mfma_f32_32x32x16_bf16 {vr(SA, 16)}, {vr(KF)}, {vr(QA)}, 0
          s_nop 11''')
    for i in range(0, 16, 2):
        a(f'v_max3_f32 v{SB}, v{SB}, v{SA + i}, v{SA + i + 1}')
    a(f'''s_add_u32 s4, s4, 2048
          s_sub_u32 s5, s5, 1
          s_cmp_lg_u32 s5, 0
          s_cbranch_scc1 L_fb_max
          v_mov_b32 v{SB + 1}, v{SB}
          s_nop 1
          v_permlane32_swap_b32 v{SB}, v{SB + 1}
          v_max_f32 v{SB}, v{SB}, v{SB + 1}
          v_sub_f32 v{SB}, {f2u(-float(VLOG))}, v{SB}''')
    for i in range(1, 16):
        a(f'v_mov_b32 v{SB + i}, v{SB}')
    for i in range(16):
        a(f'v_mov_b32 v{OA + i}, 0')
    for i in range(8):
        a(f'v_mov_b32 v{V0 + i}, {ONEBF * 0x10001}')
    a(f'''s_mov_b32 s4, s88
          s_mov_b32 s5, 64
          s_mov_b32 s6, 0xffff
          s_mov_b32 s7, 0xffff
          L_fb_pv:
          buffer_load_dwordx4 {vr(KF)}, v{L16}, s[16:19], s4 offen sc1
          s_mov_b64 exec, s[6:7]
          buffer_load_dwordx4 {vr(V0)}, v{L16}, s[16:19], s4 offen offset:1024 sc1
          buffer_load_dwordx4 {vr(V1)}, v{L16}, s[16:19], s4 offen offset:1280 sc1
          s_mov_b64 exec, -1
          s_waitcnt vmcnt(0)
          v_mfma_f32_32x32x16_bf16 {vr(SA, 16)}, {vr(KF)}, {vr(QA)}, {vr(SB, 16)}
          s_nop 11''')
    for i in range(16):
        a(f'v_exp_f32 v{SA + i}, v{SA + i}')
    a(f'''s_nop 1
          v_smfmac_f32_32x32x32_bf16 {vr(OA, 16)}, {vr(V0)}, {vr(SA, 8)}, v{IDX}
          v_smfmac_f32_32x32x32_bf16 {vr(OA, 16)}, {vr(V1)}, {vr(SA + 8, 8)}, v{IDX}
          s_add_u32 s4, s4, 2048
          s_sub_u32 s5, s5, 1
          s_cmp_lg_u32 s5, 0
          s_cbranch_scc1 L_fb_pv
          s_nop 11
          v_rcp_f32 v{SB}, v{OA + 8}
          s_nop 0''')
    for i in range(8):
        a(f'v_mul_f32 v{OA + i}, v{SB}, v{OA + i}')
    for i in range(4):
        a(f'v_cvt_pk_bf16_f32 v{OB + i}, v{OA + 2 * i}, v{OA + 2 * i + 1}')
    for i in range(4):
        a(f'v_min_u32 v{OB + i}, -2, v{OB + i}')
    a('s_branch L_at_final')


def tail(a):
    OST, XP = 0x18000, 0x16000
    PA, XA3, XA4, SA0, CO, OSR, OUTA, VRA = 96, 97, 98, 100, 106, 109, 110, 111
    gather = [f'buffer_load_dwordx4 v{L16}, s[16:19], s70 offen offset:{i * 1024} sc1 lds' for i in range(4)]
    gp = OPT.get('gp', 2)
    a(f'''s_lshl_b32 s4, s3, 13
          v_add_u32 v64, s4, v{L16}
          s_mul_i32 s73, s76, s77
          s_lshl_b32 s4, s80, 15
          s_lshl_b32 s5, s3, 12
          s_add_u32 s70, s4, s5
          s_add_u32 s70, s70, {OF}
          s_add_u32 s5, s5, {OST}
          s_mov_b32 m0, s5
          v_add_u32 v{VRA}, s5, v{L16}''')
    calc = (f'''s_lshl_b32 s4, s3, 7
          s_add_u32 s4, s4, {XP}
          v_lshl_add_u32 v66, v{LN}, 2, s4
          v_lshrrev_b32 v67, 5, v{LN}
          v_and_b32 v71, 31, v{LN}
          s_lshl_b32 s6, s3, 9
          v_lshl_add_u32 v{PA}, v71, 4, s6
          v_lshl_add_u32 v{PA}, v67, 12, v{PA}   ; partial read address
          s_lshl_b32 s6, s3, 2
          v_lshl_add_u32 v73, v67, 1, s6         ; tl (even)
          v_lshlrev_b32 v{XA3}, 2, v73
          v_add_u32 v{XA3}, {XP}, v{XA3}
          v_lshlrev_b32 v{XA4}, 2, v71
          v_add_u32 v{XA4}, {XP + 1024}, v{XA4}
          s_lshl_b32 s4, s80, 5
          v_add_u32 v{OUTA}, s4, v71
          v_lshlrev_b32 v{OUTA}, 11, v{OUTA}
          v_lshl_add_u32 v{OUTA}, v67, 4, v{OUTA}   ; out offset
          s_lshl_b32 s4, s77, 5
          v_add_u32 v71, s4, v71           ; e
          v_lshl_add_u32 v73, v73, 1, s84  ; t0 ; t1 = t0 + 2
          v_cmp_eq_u32 s[74:75], 0, v73
          v_cmp_eq_u32 s[64:65], 0, v71
          v_sub_u32 v84, 0x800, v73
          v_mov_b32 v85, 0x400
          v_cndmask_b32 v85, v84, v85, s[74:75]   ; row2 of t0
          v_subrev_u32 v84, 2, v84                ; row2 of t1
          v_sub_u32 v86, 0x200, v71
          v_mov_b32 v87, 0x100
          v_cndmask_b32 v86, v86, v87, s[64:65]   ; col2
          v_lshlrev_b32 v87, 1, v71
          v_lshlrev_b32 v86, 1, v86
          v_lshl_add_u32 v{SA0}, v73, 11, v87
          v_lshl_add_u32 v{SA0 + 1}, v73, 11, v86
          v_lshl_add_u32 v{SA0 + 2}, v85, 11, v87
          v_lshl_add_u32 v{SA0 + 3}, v85, 11, v86
          v_lshl_add_u32 v{SA0 + 4}, v84, 11, v87
          v_lshl_add_u32 v{SA0 + 5}, v84, 11, v86
          s_cmp_eq_u32 s83, 0
          s_cselect_b64 vcc, -1, 0
          v_cndmask_b32 v{CO}, 0, v{T0}, vcc          ; cos correction
          v_cndmask_b32 v{CO + 1}, 0, v{T1}, vcc      ; column-256 correction
          v_cndmask_b32 v{CO + 2}, v{T0}, 0, vcc      ; sin correction
          s_or_b64 s[66:67], s[74:75], s[64:65]
          s_and_b64 s[68:69], s[74:75], s[64:65]
          s_mov_b32 s71, 4096
          v_lshrrev_b32 v65, 4, v{LN}      ; g
          v_and_b32 v88, 15, v{LN}
          v_lshlrev_b32 v88, 4, v88
          v_lshl_add_u32 v{OSR}, v65, 9, v88
          v_add_u32 v{OSR}, {OST}, v{OSR}  ; staging read address
          s_lshl_b32 s4, s81, 8
          s_lshl_b32 s5, s3, 5
          s_add_u32 s72, s4, s5
          s_add_u32 s72, s72, 1024
          s_mov_b32 s5, {SPIN}''').split('\n')
    per = (len(calc) + 6) // 7
    for q in range(8):
        a(f'ds_write_b128 v64, {vr(CC + 4 * q)} offset:{q * 1024}')
        if q == 0:
            a('''s_cmp_eq_u32 s73, 0
                 s_cbranch_scc0 L_a2_nox''')
            for ks in range(4):
                a(a2mm(X3, A2O, A2C, ks))
                a(a2mm(X4, A2S, A2E, ks))
            a('L_a2_nox:')
        for x in calc[q * per:(q + 1) * per]:
            a(x)
    a(f'''s_cmp_eq_u32 s73, 0
          s_cbranch_scc0 L_a2_nox2
          s_mov_b32 exec_hi, 0
          ds_write_b32 v66, v{X3}
          ds_write_b32 v66, v{X4} offset:1024
          s_mov_b32 exec_hi, -1
          L_a2_nox2:''')
    a('s_waitcnt lgkmcnt(0)')
    if gp == 2:
        for g in gather:
            a(g)
    a('s_barrier')
    stamp(a, 12)
    for w in range(8):
        a(f'ds_read_b128 {vr(128 + 4 * w)}, v{PA} offset:{w * 8192}')
    if gp == 3:
        for g in gather:
            a(g)
    a('s_cbranch_scc0 L_a2_nox3')
    for w in range(8):
        a(f'''ds_read_b64 {vr(160 + 2 * w, 2)}, v{XA3} offset:{w * 128}
              ds_read_b32 v{176 + w}, v{XA4} offset:{w * 128}''')
    a('L_a2_nox3:')
    V = []
    for step in (4, 2, 1):
        for w in range(step):
            for i in (0, 2):
                if OPT.get('nopk'):
                    V.append('\n'.join(f'v_add_f32 v{128 + 4 * w + i + k}, v{128 + 4 * w + i + k}, v{128 + 4 * (w + step) + i + k}' for k in range(2)))
                else:
                    V.append(f'v_pk_add_f32 {vr(128 + 4 * w + i, 2)}, {vr(128 + 4 * w + i, 2)}, {vr(128 + 4 * (w + step) + i, 2)}')
    X = ['s_cbranch_scc0 L_a2_nox4']
    for step in (4, 2, 1):
        for w in range(step):
            X += [f'v_pk_add_f32 {vr(160 + 2 * w, 2)}, {vr(160 + 2 * w, 2)}, {vr(160 + 2 * (w + step), 2)}',
                  f'v_add_f32 v{176 + w}, v{176 + w}, v{176 + w + step}']
    X += [f'v_add_f32 v160, v160, v{CO + 1}', f'v_sub_f32 v161, v161, v{CO + 1}', f'v_add_f32 v176, v176, v{CO}', 'L_a2_nox4:', 's_nop 0']
    V.append('\n'.join(X))
    V += f'''v_permlane32_swap_b32 v128, v130
         v_permlane32_swap_b32 v129, v131
         v_add_f32 v128, v128, v{CO}
         v_sub_f32 v129, v129, v{CO}
         v_add_f32 v177, v130, v{CO + 1}
         v_sub_f32 v130, v130, v{CO + 2}
         v_add_f32 v131, v131, v{CO + 2}
         v_cndmask_b32 v130, v130, 0, s[66:67]
         v_cndmask_b32 v131, v131, 0, s[64:65]
         v_sub_f32 v132, v128, v130
         v_sub_f32 v134, v129, v131
         v_add_f32 v133, v128, v130
         v_add_f32 v135, v129, v131
         v_cvt_pk_bf16_f32 v144, v132, v134
         buffer_store_short v144, v{SA0}, s[20:23], 0 offen
         v_cndmask_b32 v136, v133, v160, s[64:65]
         buffer_store_short_d16_hi v144, v{SA0}, s[20:23], s71 offen
         v_cndmask_b32 v139, v135, v161, s[64:65]
         v_cvt_pk_bf16_f32 v145, v136, v139
         v_cndmask_b32 v137, v133, v176, s[74:75]
         buffer_store_short v145, v{SA0 + 1}, s[20:23], 0 offen
         v_cvt_pk_bf16_f32 v146, v137, v135
         buffer_store_short_d16_hi v145, v{SA0 + 1}, s[20:23], s71 offen
         v_cndmask_b32 v138, v132, v160, s[64:65]
         buffer_store_short v146, v{SA0 + 2}, s[20:23], 0 offen
         v_cndmask_b32 v138, v138, v176, s[74:75]
         buffer_store_short_d16_hi v146, v{SA0 + 4}, s[20:23], 0 offen
         v_cndmask_b32 v138, v138, v177, s[68:69]
         v_cndmask_b32 v140, v134, v161, s[64:65]
         v_cvt_pk_bf16_f32 v147, v138, v140
         buffer_store_short v147, v{SA0 + 3}, s[20:23], 0 offen
         buffer_store_short_d16_hi v147, v{SA0 + 5}, s[20:23], 0 offen'''.split('\n')
    a('s_waitcnt lgkmcnt(0)')
    for x in V:
        a(x)
    stamp(a, 13)
    a('''s_waitcnt vmcnt(8)
         L_op_chk:''')
    for i in range(4):
        a(f'ds_read_b128 {vr(48 + 4 * i)}, v{VRA} offset:{i * 1024}')
    a('''s_waitcnt lgkmcnt(3)
         v_max3_u32 v84, v48, v49, v50
         s_waitcnt lgkmcnt(2)
         v_max3_u32 v84, v84, v51, v52
         v_max3_u32 v84, v84, v53, v54
         s_waitcnt lgkmcnt(1)
         v_max3_u32 v84, v84, v55, v56
         v_max3_u32 v84, v84, v57, v58
         s_waitcnt lgkmcnt(0)
         v_max3_u32 v84, v84, v59, v60
         v_max3_u32 v84, v84, v61, v62
         v_max_u32 v84, v84, v63
         v_cmp_eq_u32 vcc, -1, v84
         s_cbranch_vccnz L_op_retry
         L_op_ok:
         s_barrier''')
    stamp(a, 14)
    NB = 12
    rd = lambda n: a(f'ds_read_b128 {vr(4 * (n % NB))}, v{OSR} offset:{(n >> 1) * 2048 + (n & 1) * 256}')
    for n in range(NB - 2):
        rd(n)
    for n in range(32):
        nxt = n + NB - 2
        if nxt < 32:
            rd(nxt)
        out = min(31, nxt) - n
        acc = vr(72 + 4 * (n & 1))
        a(f'''s_waitcnt lgkmcnt({out})
              v_mfma_f32_16x16x32_bf16 {acc}, {vr(WO + 4 * (n >> 1))}, {vr(4 * (n % NB))}, {acc if n >= 2 else 0}''')
    a(f'''s_nop 7
          v_cvt_pk_bf16_f32 v80, v72, v73
          v_cvt_pk_bf16_f32 v81, v74, v75
          v_cvt_pk_bf16_f32 v82, v76, v77
          v_cvt_pk_bf16_f32 v83, v78, v79
          s_nop 1
          v_permlane16_swap_b32 v80, v82
          v_permlane16_swap_b32 v81, v83
          buffer_store_dwordx4 v[80:83], v{OUTA}, s[20:23], s72 offen''')
    stamp(a, 15)
    if OPT['stamps']:
        a('s_waitcnt vmcnt(0)')
    stamp(a, 16)
    stamp_dump(a)
    return gather


def build():
    a = A()
    prologue(a)
    a('''s_cmp_ge_u32 s3, 4
         s_cbranch_scc0 L_p1_compute''')
    p1_loader(a)
    a('''s_branch L_p1_join
         L_p1_compute:''')
    p1_compute(a)
    stamp(a, 25)
    a('s_add_u32 s58, s58, 1            ; nonce')
    zero_o(a)
    publish1(a)
    a('L_p1_join:\ns_setprio 0')
    fl = attention(a)
    gather = tail(a)
    a('''L_end:
         s_endpgm
         L_op_retry:
         s_sub_u32 s5, s5, 1
         s_cbranch_scc1 L_op_ok''')
    for g in gather:
        a(g)
    a('s_waitcnt vmcnt(0)\ns_branch L_op_chk')
    cold_paths(a, fl)
    a('L_code_end:')
    a('s_endpgm')
    return a.text()


def main(path):
    hdr = ''.join(l for l in open(f'cdna_kernels/{NAME}.s.ref') if l.startswith(';') and '@launch' not in l)
    out = hdr + f'; @launch grid=(256,1,1) block=(512,1,1) lds={LDS_BYTES}\n'
    out += f'''.amdgcn_target "amdgcn-amd-amdhsa--gfx950"
.text
.globl {NAME}_kernel
.p2align {OPT.get('al', 8)}
.type {NAME}_kernel,@function
{NAME}_kernel:
'''
    out += build()
    out += f'''.section .rodata,"a"
.p2align 6
.amdhsa_kernel {NAME}_kernel
  .amdhsa_next_free_vgpr 256
  .amdhsa_next_free_sgpr {98 if OPT['stamps'] else 96}
  .amdhsa_accum_offset 256
  .amdhsa_group_segment_fixed_size 0
  .amdhsa_kernarg_size 88
  .amdhsa_user_sgpr_count 2
  .amdhsa_user_sgpr_kernarg_segment_ptr 1
  .amdhsa_system_sgpr_workgroup_id_x 1
.end_amdhsa_kernel
'''
    open(path, 'w').write(out)


if __name__ == '__main__':
    for x in sys.argv[1:]:
        if x.startswith('--'):
            k, _, v = x[2:].partition('=')
            OPT[k] = (int(v, 0) if v[0].isdigit() else v) if v else True
    args = [x for x in sys.argv[1:] if not x.startswith('--')]
    main(args[0] if args else f'cdna_kernels/{NAME}.s')
```

```python
import math, struct, sys

NAME = 'concat_heads__spectral_fnet__softmax_full_mha__prompt'
QF, KV, EO, OF, WOF, RR, FLAGS, EPOCH, STAMP, WS_SIZE = (
    0, 0x200000, 0x600000, 0x700000, 0x900000, 0x980000, 0x990000, 0x9A0000, 0x9C0000, 0xB00000)
PFLAGS = 0xA00000
OFFS = 100.0
VLOG = 40
CSCALE = 0.25 * math.log2(math.e)
ONEBF = (127 + VLOG) << 7
SPIN = 400000
OPT = dict(stamps=False, cyc=False, stag=0x4242, stsh=2, xm=1)


def f2u(x):
    return struct.unpack('<I', struct.pack('<f', x))[0]


class A:
    def __init__(self):
        self.l = []

    def __call__(self, s):
        for ln in s.strip('\n').split('\n'):
            ln = ln.strip()
            if not ln:
                continue
            self.l.append(ln if ln.endswith(':') or ln.startswith('.') else '    ' + ln)

    def text(self):
        return '\n'.join(self.l) + '\n'


def vr(b, n=4):
    return f'v[{b}:{b + n - 1}]'


def srd(a, d, lo, size):
    a(f'''s_mov_b32 s{d}, s{lo}
          s_mov_b32 s{d + 1}, s{lo + 1}
          s_mov_b32 s{d + 2}, {size}
          s_mov_b32 s{d + 3}, 0x20000''')


STV = 126


def stamp(a, slot):
    if not OPT['stamps']:
        return
    a(f'''{'s_memtime' if OPT['cyc'] else 's_memrealtime'} s[94:95]
          s_waitcnt lgkmcnt(0)
          v_writelane_b32 v{STV}, s94, {slot}''')
    if slot == 0:
        a(f'v_writelane_b32 v{STV}, s96, 30')


def stamp_dump(a):
    if not OPT['stamps']:
        return
    a(f'''v_mbcnt_lo_u32_b32 v{STV + 1}, -1, 0
          v_mbcnt_hi_u32_b32 v{STV + 1}, -1, v{STV + 1}
          v_lshlrev_b32 v{STV + 1}, 2, v{STV + 1}
          s_lshl_b32 s92, s2, 3
          s_add_u32 s92, s92, s3
          s_lshl_b32 s92, s92, 7
          s_add_u32 s92, s92, {STAMP}
          s_mov_b32 exec_hi, 0
          buffer_store_dword v{STV}, v{STV + 1}, s[16:19], s92 offen sc1
          s_mov_b64 exec, -1''')


SA, SB, NMA, NMB, OA, OB, QA, QB, KF, V0, V1 = 0, 16, 32, 48, 64, 80, 96, 100, 104, 108, 112
IDX, KA, VA, VINC, L16, WSA, LN, T0, T1, T2 = 116, 117, 118, 119, 120, 121, 122, 123, 124, 125
A2C, A2S, A2E, A2O, WO = 128, 144, 160, 176, 192
ONES, MRG, WST, CNT = 0x20000, 0x22800, 0x27000, 0x27800
QST = MRG
LDS_BYTES = 0x28000


def prologue(a):
    if OPT['stamps']:
        a(f"{'s_memtime' if OPT['cyc'] else 's_memrealtime'} s[96:97]")
    a(f'''s_cmp_ge_u32 s2, 256
          s_cbranch_scc1 L_end
          s_load_dwordx16 s[36:51], s[0:1], 0
          s_load_dwordx4 s[52:55], s[0:1], 64
          s_load_dwordx2 s[56:57], s[0:1], 80
          v_lshrrev_b32 v1, 6, v0
          v_and_b32 v0, 63, v0
          v_readfirstlane_b32 s3, v1
          s_and_b32 s60, s2, 7
          s_lshr_b32 s61, s2, 3
          s_cmp_eq_u32 s3, 0
          s_cbranch_scc0 L_nopf
          v_min_u32 v22, 5, v0
          v_lshl_add_u32 v22, v22, 5, s61
          v_lshlrev_b32 v22, 7, v22
          v_min_u32 v22, L_code_end - L_pc - 4, v22
          s_getpc_b64 s[6:7]
          L_pc:
          global_load_dword v23, v22, s[6:7]
          L_nopf:
          ; phase-1 roles: s62 kind, s63 rb, s64 cb, s65 rot
          s_lshr_b32 s62, s60, 1
          s_and_b32 s63, s60, 1
          s_lshl_b32 s63, s63, 3
          s_and_b32 s4, s61, 7
          s_add_u32 s63, s63, s4
          s_lshr_b32 s64, s61, 3
          s_lshl_b32 s65, s64, {1 if OPT.get('rot', 3) == 7 else 0}
          s_add_u32 s65, s65, s4
          s_cmp_eq_u32 s62, 3
          s_cselect_b32 s66, 1, 3
          s_lshl_b32 s14, s66, 19
          s_lshl_b32 s66, s66, 10          ; W pitch
          s_lshl_b32 s6, s62, 10
          s_lshl_b32 s7, s64, 8
          s_add_u32 s6, s6, s7
          s_and_b32 s7, s7, 256
          s_cmp_eq_u32 s62, 3
          s_cselect_b32 s67, s7, s6
          s_mov_b32 s10, 0x200000
          s_mov_b32 s11, 0x20000
          s_mov_b32 s15, 0x20000''')


def roles(a):
    a(f'''v_mov_b32 v{LN}, v0
          v_lshlrev_b32 v{L16}, 4, v0
          s_and_b32 s4, s61, 7
          s_lshl_b32 s76, s60, 2
          s_and_b32 s5, s61, 3
          s_add_u32 s76, s76, s5           ; head
          s_lshr_b32 s77, s61, 2           ; j
          s_and_b32 s78, s3, 3             ; q pair
          s_lshr_b32 s79, s3, 2
          s_lshl_b32 s80, s60, 3
          s_add_u32 s80, s80, s4           ; qt
          s_mov_b32 s81, s64               ; nb''')


def srds(a):
    a('''s_waitcnt lgkmcnt(0)
         s_cmp_lt_u32 s64, 2
         s_cselect_b32 s4, s42, s44
         s_cselect_b32 s5, s43, s45
         s_cmp_eq_u32 s62, 3
         s_cselect_b32 s8, s36, s46
         s_cselect_b32 s9, s37, s47
         s_cselect_b32 s12, s4, s48
         s_cselect_b32 s13, s5, s49''')


def srds_late(a):
    srd(a, 16, 56, WS_SIZE)
    srd(a, 32, 50, 0x80000)


def srds_attn(a):
    srd(a, 20, 52, 0x400000)
    srd(a, 24, 38, 0x800000)
    srd(a, 28, 40, 0x800000)


def o_offset(a):
    a(f'''s_lshl_b32 s4, s77, 3
          s_lshl_b32 s5, s78, 1
          s_add_u32 s4, s4, s5
          s_add_u32 s4, s4, s79
          s_lshl_b32 s4, s4, 15
          s_lshl_b32 s5, s76, 10
          s_add_u32 s4, s4, s5
          s_add_u32 s82, s4, {OF}''')


def epoch_load(a):
    a(f'''s_add_u32 s4, s56, {EPOCH}
          s_addc_u32 s5, s57, 0
          s_load_dword s58, s[4:5], 0''')


def p1_loader(a):
    a('''s_sub_u32 s68, s3, 4             ; lw
         v_lshrrev_b32 v1, 3, v0
         v_and_b32 v2, 7, v0
         v_lshrrev_b32 v3, 4, v0
         v_xor_b32 v2, v2, v3
         v_lshlrev_b32 v2, 4, v2
         v_xor_b32 v9, 64, v2
         s_cmp_eq_u32 s62, 3
         s_cbranch_scc1 L_p1_rowsA
         s_lshl_b32 s4, s63, 7
         s_lshl_b32 s5, s68, 5
         s_add_u32 s4, s4, s5
         v_add_u32 v1, s4, v1
         v_lshl_add_u32 v4, v1, 10, v2
         v_lshl_add_u32 v5, v1, 10, v9
         v_add_u32 v5, 0x1c00, v5
         v_add_u32 v6, 0x3800, v4
         v_add_u32 v7, 0x3800, v5
         L_p1_rowsdone:
         v_and_b32 v2, 15, v0
         v_lshlrev_b32 v9, 2, v3
         v_xor_b32 v2, v2, v9
         v_lshlrev_b32 v2, 4, v2
         s_lshl_b32 s4, s68, 4
         v_add_u32 v3, s4, v3
         v_mul_lo_u32 v3, v3, s66
         v_add3_u32 v8, v3, v2, s67
         v_xor_b32 v9, 32, v8
         s_lshl_b32 s72, s66, 2
         s_sub_u32 s72, s72, 1024
         s_lshl_b32 s73, s66, 6           ; 64*pitch
         s_lshl_b32 s74, s68, 12''')
    srds(a)

    def issue(stage):
        slot = stage & 3
        rm = OPT.get('rot', 3)
        if OPT.get('stag') and 1 <= stage <= 4:
            a(f'''s_cmp_ge_u32 s59, {stage}
                  s_addc_u32 s4, s65, {stage - 1}
                  s_and_b32 s4, s4, 3
                  s_cmp_eq_u32 s59, {stage}
                  s_cselect_b32 s4, s75, s4''')
        else:
            if stage:
                a(f's_add_u32 s4, s65, {stage}')
            a(f's_and_b32 s4, s{4 if stage else 65}, {rm}')
            if stage & ~rm:
                a(f's_or_b32 s4, s4, {stage & ~rm}')
        a(f'''s_add_u32 m0, s74, {slot * 32768}
              s_lshl_b32 s5, s4, 7''')
        for i in range(4):
            a(f'buffer_load_dwordx4 v{4 + i}, s[8:11], s5 offen offset:{i * 1024} lds')
        a(f'''s_add_u32 m0, s74, {slot * 32768 + 16384}
              s_mul_i32 s6, s4, s73''')
        for i in range(4):
            a(f'buffer_load_dwordx4 v{8 + (i >> 1)}, s[12:15], s6 offen offset:{i * 1024} lds')
            if i < 3:
                a('s_add_u32 s6, s6, s72')

    stamp(a, 0)
    issue(0)
    a('''s_branch L_p1_rowsskip
         L_p1_rowsA:
         s_lshl_b32 s4, s63, 5
         s_lshr_b32 s5, s68, 1
         s_lshl_b32 s5, s5, 4
         s_add_u32 s4, s4, s5
         v_add_u32 v1, s4, v1
         s_and_b32 s5, s68, 1
         s_lshl_b32 s6, s5, 10            ; B
         s_lshl_b32 s7, s5, 9
         v_cmp_eq_u32 vcc, 0, v1
         v_mov_b32 v10, s7
         v_add_u32 v11, s6, v1            ; B + s'
         v_cndmask_b32 v10, 0, v10, vcc
         s_add_u32 s6, s6, 1024
         v_sub_u32 v12, s6, v1            ; B + 1024 - s'
         v_add_u32 v13, 7, v11
         v_subrev_u32 v14, 11, v12
         v_sub_u32 v11, v11, v10
         v_sub_u32 v12, v12, v10
         v_subrev_u32 v12, 2, v12
         v_lshl_add_u32 v4, v11, 10, v2
         v_lshl_add_u32 v5, v13, 10, v9
         v_lshl_add_u32 v6, v12, 10, v2
         v_lshl_add_u32 v7, v14, 10, v9
         s_branch L_p1_rowsdone
         L_p1_rowsskip:''')
    roles(a)
    srds_late(a)
    epoch_load(a)
    o_offset(a)
    a(f'''v_and_b32 v1, 11, v0
          v_cmp_eq_u32 vcc, 0, v1
          v_mov_b32 v2, {ONEBF * 0x10001}
          s_mul_i32 s4, s68, 2560
          v_cndmask_b32 v16, 0, v2, vcc
          v_mov_b32 v17, v16
          v_mov_b32 v18, v16
          v_mov_b32 v19, v16
          s_add_u32 s4, s4, {ONES}
          v_add_u32 v1, s4, v{L16}
          ds_write_b128 v1, v[16:19]
          ds_write_b128 v1, v[16:19] offset:1024
          ds_write_b128 v1, v[16:19] offset:1536
          v_mov_b32 v1, {CNT}
          v_mov_b32 v2, 0
          ds_write_b32 v1, v2''')
    attn_setup(a)
    zero_o(a)
    if OPT.get('stag'):
        a(f'''s_lshr_b32 s4, s61, {OPT.get('stsh', 0)}
              s_and_b32 s4, s4, 3
              s_lshl_b32 s4, s4, 2
              s_lshr_b32 s59, {OPT['stag']}, s4
              s_and_b32 s59, s59, 7
              s_and_b32 s75, s65, 3
              s_or_b32 s75, s75, 4''')
    issue(1)
    stamp(a, 1)
    for c in range(8):
        if c == 3:
            stamp(a, 28)
        a(f's_waitcnt vmcnt({[8, 8, 8, 8, 8, 8, 8, 0][c]})')
        if c in (0, 3):
            stamp(a, 2 if c == 0 else 29)
        a('s_barrier')
        stamp(a, 17 + c)
        if c <= 5:
            issue(c + 2)
    a('''s_waitcnt lgkmcnt(0)
         s_barrier''')
    a('s_add_u32 s58, s58, 1            ; nonce')
    stamp(a, 25)
    a(f'''s_lshr_b32 s4, s76, 3
          s_lshl_b32 s4, s4, 5
          s_add_u32 s4, s4, s61
          s_lshl_b32 s4, s4, 11
          s_add_u32 s4, s4, {PFLAGS}
          s_add_u32 s8, s56, s4
          s_addc_u32 s9, s57, 0
          s_mov_b32 s6, 1024
          s_lshl_b32 s70, s76, 16
          s_lshl_b32 s71, s77, 13
          s_add_u32 s70, s70, s71
          s_mov_b32 s71, {QST}
          s_cmp_eq_u32 s68, 1
          s_cselect_b32 s6, 0, s6
          s_cselect_b32 s70, s88, s70
          s_cselect_b32 s71, 0, s71
          s_cmp_eq_u32 s68, 2
          s_cselect_b32 s6, 1160, s6
          s_cselect_b32 s70, s89, s70
          s_cselect_b32 s71, 0x10000, s71
          s_mov_b32 s5, {SPIN}
          s_mov_b32 s59, s58
          s_mov_b32 m0, s71
          s_add_u32 s72, s70, 0x1000
          s_cmp_eq_u32 s68, 3
          s_barrier
          s_cbranch_scc0 L_s1_poll
          L_s1_poll7:                      ; wave 7: the other K, V blocks''')
    regs = [36, 40, 44, 48, 64, 72, 12]
    for i, r in enumerate(regs):
        a(f's_load_dwordx4 s[{r}:{r + 3}], s[8:9], {128 * (i + 1)} glc')
    a('''s_sub_u32 s5, s5, 1
         s_cbranch_scc1 L_p1_join
         s_mov_b64 s[6:7], 0
         s_waitcnt lgkmcnt(0)''')
    for r in regs:
        for h in (0, 2):
            a(f'''s_xor_b64 s[10:11], s[{r + h}:{r + h + 1}], s[58:59]
                  s_or_b64 s[6:7], s[6:7], s[10:11]''')
    a('''s_cbranch_scc1 L_s1_poll7
         s_branch L_p1_join
         L_s1_poll:
         s_load_dwordx2 s[10:11], s[8:9], s6 glc
         s_sub_u32 s5, s5, 1
         s_cbranch_scc1 L_s1_pdone
         s_waitcnt lgkmcnt(0)
         s_cmp_eq_u64 s[10:11], s[58:59]
         s_cbranch_scc0 L_s1_poll
         L_s1_pdone:''')
    stamp(a, 26)
    for i in range(4):
        a(f'buffer_load_dwordx4 v{L16}, s[16:19], s70 offen offset:{i * 1024} sc1 lds')
    a('''s_add_u32 m0, s71, 0x1000
         s_nop 0''')
    for i in range(4):
        a(f'buffer_load_dwordx4 v{L16}, s[16:19], s72 offen offset:{i * 1024} sc1 lds')
    a('s_waitcnt vmcnt(0)')


def p1_compute(a):
    roles(a)
    a('''s_and_b32 s68, s3, 1             ; wr
         s_lshr_b32 s69, s3, 1            ; wc
         v_and_b32 v1, 15, v0
         v_lshrrev_b32 v2, 4, v0          ; g
         v_lshrrev_b32 v3, 1, v1
         v_xor_b32 v3, v3, v2
         v_lshlrev_b32 v3, 4, v3
         v_lshl_add_u32 v3, v1, 7, v3
         s_lshl_b32 s4, s68, 13
         v_add_u32 v4, s4, v3
         v_xor_b32 v5, 64, v4
         v_bfe_u32 v10, v0, 2, 2          ; r
         v_lshl_add_u32 v11, v2, 3, v10   ; 8g + r
         v_lshlrev_b32 v11, 8, v11
         v_lshlrev_b32 v10, 1, v10
         v_and_b32 v12, 1, v2
         v_or_b32 v10, v10, v12           ; z
         s_lshl_b32 s4, s69, 2
         v_xor_b32 v10, s4, v10
         v_lshl_add_u32 v11, v10, 5, v11
         v_and_b32 v10, 3, v0
         v_lshl_add_u32 v11, v10, 3, v11
         v_add_u32 v6, 16384, v11
         v_xor_b32 v7, 32, v6
         v_xor_b32 v8, 64, v6
         v_xor_b32 v9, 96, v6''')
    for i in range(32):
        a(f'v_mov_b64 {vr(128 + 2 * i, 2)}, 0')
    o_offset(a)
    a('s_waitcnt lgkmcnt(0)')
    stamp(a, 0)
    epoch_load(a)
    srds_late(a)
    if OPT.get('warm', 1):
        a(f'''s_cmp_eq_u32 s3, 1
              s_cbranch_scc0 L_p1_nowarm
              s_lshr_b32 s4, s76, 3
              s_lshl_b32 s4, s4, 5
              s_add_u32 s4, s4, s61
              s_lshl_b32 s4, s4, 11
              s_add_u32 s4, s4, {PFLAGS}
              v_lshlrev_b32 v1, 7, v0
              v_mov_b32 v2, 0
              s_mov_b64 exec, 0x3ff
              buffer_atomic_add v2, v1, s[16:19], s4 offen sc1
              s_mov_b64 exec, -1
              L_p1_nowarm:''')

    def rset(st):
        return 32 + 32 * st

    def reads(st, slot, ks):
        b = rset(st)
        L = []
        for i in range(4):
            L.append(f'ds_read_b128 {vr(b + 4 * i)}, v{4 + ks} offset:{slot * 32768 + i * 2048}')
            L.append(f'ds_read_b64_tr_b16 {vr(b + 16 + 4 * i, 2)}, v{6 + i} offset:{slot * 32768 + ks * 8192}')
            L.append(f'ds_read_b64_tr_b16 {vr(b + 18 + 4 * i, 2)}, v{6 + i} offset:{slot * 32768 + ks * 8192 + 1024}')
        return L

    def step(st, T, rd, extra=(), patch=False):
        b = rset(st)
        rd = list(rd)
        extra = list(extra)
        order = [(rt, ct) for ct in ((1, 2, 3, 0) if patch else range(4)) for rt in range(4)]
        for n, (rt, ct) in enumerate(order):
            acc = vr(128 + 16 * rt + 4 * ct)
            x, w = vr(b + 4 * rt), vr(b + 16 + 4 * ct)
            a(f'v_mfma_f32_16x16x32_bf16 {acc}, {w if T else x}, {x if T else w}, {acc}')
            for _ in range(2):
                if rd:
                    a(rd.pop(0))
            if patch and n < 4:
                a(f'v_cndmask_b32 v{b + 16 + n}, v{b + 16 + n}, v14, s[54:55]')
            if not rd and n >= 7 and extra:
                a(extra.pop(0))
        a('s_waitcnt lgkmcnt(0)')

    def mfma(st, T, rt, ct):
        b = rset(st)
        acc = vr(128 + 16 * rt + 4 * ct)
        x, w = vr(b + 4 * rt), vr(b + 16 + 4 * ct)
        a(f'v_mfma_f32_16x16x32_bf16 {acc}, {w if T else x}, {x if T else w}, {acc}')

    def epi(ct, pk):
        L = []
        for rp in range(2):
            d = 192 + 4 * (2 * ct + rp)
            for u in range(2):
                src = 128 + 16 * (2 * rp + u) + 4 * ct
                if pk:
                    L += [f'v_pk_mul_f32 {vr(src + i, 2)}, {vr(src + i, 2)}, s[52:53]' for i in (0, 2)]
                else:
                    L += [f'v_mul_f32 v{src + i}, s52, v{src + i}' for i in range(4)]
            for i in range(2):
                for u in range(2):
                    src = 128 + 16 * (2 * rp + u) + 4 * ct
                    L.append(f'v_cvt_pk_bf16_f32 v{d + 2 * u + i}, v{src + 2 * i}, v{src + 2 * i + 1}')
            L += [f'v_permlane16_swap_b32 v{d}, v{d + 2}',
                  f's_nop 0\nv_permlane16_swap_b32 v{d + 1}, v{d + 3}',
                  f'buffer_store_dwordx4 {vr(d)}, v{12 + rp}, s[16:19], s73 offen sc1' + ('\ns_add_u32 s73, s73, s74' if rp and ct < 3 else '')]
        return L

    def loop(T, tag):
        stamp(a, 2)
        a('s_barrier')
        stamp(a, 17)
        for r in reads(0, 0, 0):
            a(r)
        a(f'''s_waitcnt lgkmcnt(0)
              .p2align 3
              L_p1_loop{tag}:''')
        P = tag == 'A'
        step(0, T, reads(1, 0, 1), [], P)
        a('s_barrier')
        step(1, T, reads(0, 1, 0), [] if P else ['s_sub_u32 s70, s70, 1'], P)
        if not P:
            a(f's_cbranch_scc1 L_p1_last{tag}')
        step(0, T, reads(1, 1, 1), [f'v_xor_b32 v{r}, 0x10000, v{r}' for r in range(4, 10)], P)
        a('s_barrier')
        step(1, T, reads(0, 0, 0), ['s_sub_u32 s70, s70, 1'] if P else [], P)
        if P:
            a('s_cbranch_scc0 L_p1_loopA')
            stamp(a, 3)
            return
        a(f's_branch L_p1_loop{tag}')
        a(f'L_p1_last{tag}:')
        rd = reads(1, 1, 1)
        for ct in range(2):
            for rt in range(4):
                mfma(0, T, rt, ct)
                for _ in range(3):
                    if rd:
                        a(rd.pop(0))
        a('''s_waitcnt lgkmcnt(0)
             s_barrier''')
        seq = [(1, 0), (1, 1), (0, 2), (1, 2), (0, 3), (1, 3)]
        pend, ready = [], {1: 0, 2: 1, 4: 2}
        PER = OPT.get('eper', 2)
        for k, (st, ct) in enumerate(seq):
            for rt in range(4):
                mfma(st, T, rt, ct)
                if rt == 1 and k in ready:
                    if not pend:
                        a('s_nop 3')
                    pend += epi(ready[k], False)
                for _ in range(PER):
                    if pend:
                        a(pend.pop(0))
        stamp(a, 3)
        n = len(pend)
        for x in pend:
            a(x)
        if n < 8:
            a(f's_nop {7 - n}')
        for x in epi(3, True):
            a(x)
        a('s_barrier')

    attn_setup(a)
    a('''s_cmp_eq_u32 s62, 3
         s_cbranch_scc1 L_p1_A''')
    a(f'''s_cmp_eq_u32 s62, 2
          s_cselect_b32 s52, {f2u(2.0 ** VLOG)}, 1.0
          s_cselect_b32 s73, 1024, 0
          s_cselect_b32 s7, 12, 0
          s_add_u32 s73, s73, {KV}
          s_cmp_eq_u32 s62, 0
          s_cselect_b32 s52, {f2u(CSCALE)}, s52
          s_cselect_b32 s71, 16, 17
          s_cselect_b32 s72, 10, 11
          s_cselect_b32 s73, {QF}, s73
          s_mov_b32 s53, s52
          s_lshl_b32 s4, s64, 3
          s_lshl_b32 s5, s69, 2
          s_add_u32 s4, s4, s5             ; head0
          s_lshl_b32 s4, s4, s71
          s_lshl_b32 s5, s63, 2
          s_lshl_b32 s6, s68, 1
          s_add_u32 s5, s5, s6             ; tile0
          s_lshl_b32 s5, s5, s72
          s_add_u32 s73, s73, s4
          s_add_u32 s73, s73, s5
          s_lshl_b32 s74, 1, s71
          s_lshl_b32 s75, 1, s72
          v_lshrrev_b32 v1, 1, v0
          v_xor_b32 v1, v1, v0
          v_and_b32 v1, 4, v1
          v_mul_u32_u24 v1, 3, v1
          v_and_b32 v1, s7, v1
          v_xor_b32 v1, v1, v0
          v_lshlrev_b32 v12, 4, v1
          v_add_u32 v13, s75, v12
          s_mov_b32 s70, 3
          s_setprio {OPT.get('cprio', 1)}
          s_cmp_eq_u32 s62, 2
          s_cbranch_scc1 L_p1_N''')
    loop(True, 'T')
    a('''s_branch L_p1_cdone
         L_p1_N:''')
    loop(False, 'N')
    a('''s_branch L_p1_cdone
         L_p1_A:''')
    a(f'''v_lshrrev_b32 v1, 2, v0
          v_and_b32 v2, 3, v0
          v_lshlrev_b32 v3, 4, v2
          v_lshl_add_u32 v15, v1, 10, v3
          v_lshrrev_b32 v3, 4, v0
          v_bfe_u32 v10, v0, 2, 2
          v_lshl_add_u32 v3, v3, 3, v10
          v_lshlrev_b32 v3, 6, v3
          v_lshl_add_u32 v3, v2, 3, v3
          s_lshl_b32 s71, s3, 11
          s_add_u32 s71, s71, {QST}
          v_add_u32 v20, s71, v3
          s_lshl_b32 s6, s64, 2
          s_add_u32 s6, s6, s3
          s_lshl_b32 s4, s63, 15
          s_lshl_b32 s5, s6, 6
          s_add_u32 s72, s4, s5
          s_mov_b32 m0, s71
          s_add_u32 s73, s72, 0x3c00
          buffer_load_dwordx4 v15, s[32:35], s72 offen lds
          buffer_load_dwordx4 v15, s[32:35], s73 offen offset:1024 lds
          s_lshl_b32 s6, s6, 15
          s_lshl_b32 s70, s63, 10
          s_add_u32 s70, s70, s6
          s_add_u32 s92, s70, {WOF}        ; destination
          s_lshl_b32 s4, s64, 1
          s_add_u32 s4, s4, s69
          s_cmp_eq_u32 s4, 4
          s_cselect_b32 s54, 0x10001, 0
          s_mov_b32 s55, s54
          v_mov_b32 v14, 0xbf803f80
          s_mov_b32 s70, 3''')
    loop(False, 'A')
    a(f'''s_waitcnt vmcnt(0)
          ds_read_b64_tr_b16 v[24:25], v20
          ds_read_b64_tr_b16 v[26:27], v20 offset:256
          ds_read_b64_tr_b16 v[28:29], v20 offset:32
          ds_read_b64_tr_b16 v[30:31], v20 offset:288
          s_add_u32 s4, s92, 0x4000
          s_waitcnt lgkmcnt(0)
          s_barrier
          buffer_store_dwordx4 v[24:27], v{L16}, s[16:19], s92 offen sc1
          buffer_store_dwordx4 v[28:31], v{L16}, s[16:19], s4 offen sc1''')
    a(f'''s_cmp_lt_u32 s64, 2
          s_cselect_b32 s70, 1.0, -1.0
          v_mov_b32 v10, s70
          v_mov_b32 v11, s70
          s_lshl_b32 s4, s64, 1
          s_add_u32 s4, s4, s69
          s_cmp_eq_u32 s4, 4
          s_cselect_b32 s5, 0x10001, 0
          s_mov_b32 vcc_lo, s5
          s_mov_b32 vcc_hi, s5
          v_mov_b32 v3, 1.0
          v_cndmask_b32 v10, v10, v3, vcc
          s_lshl_b32 s5, s63, 1
          s_add_u32 s5, s5, s68
          s_cmp_eq_u32 s5, 0
          s_cbranch_scc0 L_p1_noR
          s_lshl_b32 s6, s4, 8
          s_add_u32 s6, s6, {RR}
          v_lshlrev_b32 v2, 2, v0
          s_mov_b64 exec, 0xffff''')
    for ct in range(4):
        a(f'''v_fma_f32 v{12 + ct}, v{10 if ct == 0 else 11}, v{176 + 4 * ct}, v{160 + 4 * ct}
              v_mov_b32 v{160 + 4 * ct}, 0
              v_mov_b32 v{176 + 4 * ct}, 0
              buffer_store_dword v{12 + ct}, v2, s[16:19], s6 offen offset:{ct * 64} sc1''')
    a(f'''s_mov_b64 exec, -1
          L_p1_noR:
          s_lshr_b32 s6, s64, 1
          s_lshl_b32 s6, s6, 19
          s_and_b32 s4, s4, 3
          s_lshl_b32 s4, s4, 16
          s_lshl_b32 s5, s5, 10
          s_add_u32 s73, s4, s5
          s_add_u32 s73, s73, s6
          s_add_u32 s73, s73, {EO}
          s_add_u32 s74, s73, 0x40000''')
    for cp in range(2):
        for u in range(2):
            ct = 2 * cp + u
            sg = 10 if ct == 0 else 11
            for i in range(4):
                a0, a1, a2, a3 = (128 + 16 * k + 4 * ct + i for k in range(4))
                a(f'''v_fmac_f32 v{a0}, v{sg}, v{a3}
                      v_fmac_f32 v{a1}, v{sg}, v{a2}''')
            for i in range(4):
                a0, a1, a2, a3 = (128 + 16 * k + 4 * ct + i for k in range(4))
                a(f'''v_fma_f32 v{a2}, v{sg}, v{a1}, v{a0}
                      v_fma_f32 v{a3}, -v{sg}, v{a1}, v{a0}''')
        for par in range(2):
            d = 32 + 4 * (2 * cp + par)
            for u in range(2):
                src = 160 + 16 * par + 4 * (2 * cp + u)
                for i in range(2):
                    a(f'v_cvt_pk_bf16_f32 v{d + 2 * u + i}, v{src + 2 * i}, v{src + 2 * i + 1}')
            a(f'''s_nop 1
                  v_permlane16_swap_b32 v{d}, v{d + 2}
                  v_permlane16_swap_b32 v{d + 1}, v{d + 3}
                  buffer_store_dwordx4 {vr(d)}, v{L16}, s[16:19], s{73 + par} offen sc1''')
        if cp == 0:
            a('''s_add_u32 s73, s73, 0x8000
                 s_add_u32 s74, s74, 0x8000''')
    a('L_p1_cdone:')


def attn_setup(a):
    srds_attn(a)
    a(f'''s_lshl_b32 s4, s79, 16
          v_add_u32 v{KA}, s4, v{L16}
          v_and_b32 v1, 16, v{LN}
          v_cmp_ne_u32 vcc, 0, v1
          v_and_b32 v2, 15, v{LN}
          v_lshlrev_b32 v2, 4, v2
          v_add_u32 v2, {ONES}, v2
          v_cndmask_b32 v{VA}, v{KA}, v2, vcc
          v_mov_b32 v2, 0x2000
          v_cndmask_b32 v{VINC}, v2, 0, vcc
          v_mov_b32 v{IDX}, 0xdddddddd
          v_and_b32 v1, 31, v{LN}
          s_and_b32 s4, s76, 15
          s_lshl_b32 s4, s4, 6
          s_lshr_b32 s83, s76, 4           ; p
          s_add_u32 s84, s4, s83
          v_lshl_add_u32 v1, v1, 1, s84
          v_lshlrev_b32 v1, 12, v1
          v_lshrrev_b32 v2, 5, v{LN}
          v_lshl_add_u32 v1, v2, 4, v1
          s_lshl_b32 s4, s3, 7
          v_add_u32 v{WSA}, s4, v1
          s_lshl_b32 s85, s83, 18
          s_lshl_b32 s4, s77, 15
          s_add_u32 s85, s85, s4
          s_lshl_b32 s4, s3, 12
          s_add_u32 s85, s85, s4
          s_add_u32 s85, s85, {EO}         ; E fragments
          s_add_u32 s86, s85, 0x80000      ; O fragments
          s_lshl_b32 s87, s81, 3
          s_add_u32 s87, s87, s3
          s_lshl_b32 s87, s87, 14
          s_add_u32 s87, s87, {WOF}
          s_lshl_b32 s88, s76, 17
          s_add_u32 s88, s88, {KV}
          s_lshl_b32 s4, s79, 16
          s_add_u32 s89, s88, s4
          s_lshl_b32 s91, s78, 11
          s_add_u32 s90, s89, s91
          s_add_u32 s5, s91, {QST}
          v_add_u32 v{T0}, s5, v{L16}
          s_add_u32 s91, s91, s4
          s_lshl_b32 s4, s64, 6
          s_lshl_b32 s5, s62, 4
          s_add_u32 s4, s4, s5
          s_add_u32 s4, s4, s63
          s_lshl_b32 s4, s4, 4
          s_add_u32 s93, s4, {FLAGS}''')


def zero_o(a):
    for i in range(16):
        a(f'v_mov_b64 {vr(OA + 2 * i, 2)}, 0')


def kv_dma(c):
    return [f's_add_u32 s4, s90, {c * 8192}',
            f's_add_u32 m0, s91, {c * 8192}',
            's_nop 0',
            f'buffer_load_dwordx4 v{L16}, s[16:19], s4 offen sc1 lds',
            f'buffer_load_dwordx4 v{L16}, s[16:19], s4 offen offset:1024 sc1 lds']


def publish1(a):
    a(f'''s_cmp_eq_u32 s62, 3
          s_cbranch_scc1 L_p1_join
          s_and_b32 s4, s63, 7
          s_cmp_eq_u32 s63, 8
          s_cselect_b32 s4, 9, s4
          s_lshl_b32 s4, s4, 7
          s_and_b32 s5, s63, 8
          s_lshl_b32 s6, s62, 2
          s_add_u32 s5, s5, s6
          s_add_u32 s4, s4, s5
          s_sub_u32 s4, s4, 4
          s_and_b32 s5, s63, 1
          s_lshl_b32 s5, s5, 2
          s_lshr_b32 s6, s63, 1
          s_lshl_b32 s6, s6, 13
          s_add_u32 s5, s5, s6
          s_add_u32 s5, s5, 1024
          s_cmp_eq_u32 s62, 0
          s_cselect_b32 s4, s5, s4
          s_cselect_b32 s6, 15, -1
          s_lshl_b32 s5, s64, 16
          s_add_u32 s4, s4, s5
          s_add_u32 s4, s4, {PFLAGS}
          v_lshlrev_b32 v1, 11, v{LN}
          v_mov_b32 v2, s58
          v_mov_b32 v3, {CNT}
          v_mov_b32 v4, 1
          s_mov_b64 exec, 1
          s_waitcnt vmcnt(0)
          ds_add_rtn_u32 v4, v3, v4
          s_waitcnt lgkmcnt(0)
          v_readfirstlane_b32 s5, v4
          s_mov_b32 exec_lo, s6
          s_cmp_eq_u32 s5, 3
          s_cbranch_scc0 L_s1_noflag
          buffer_store_dword v2, v1, s[16:19], s4 offen sc1
          L_s1_noflag:
          s_mov_b64 exec, -1''')


def a2mm(D, x, y, ks):
    return f'v_mfma_f32_32x32x16_bf16 {vr(D, 16)}, {vr(x + 4 * ks)}, {vr(y + 4 * ks)}, {vr(D, 16) if ks else 0}'


CC, SS, X3, X4 = NMA, NMB, SA, SB
MG = 0x8000


def unit(a, tau, b, side, last=False):
    X, Y = (SB, SA) if b else (SA, SB)
    OX, OY = (OB, OA) if b else (OA, OB)
    QY, NY = (QA, NMA) if b else (QB, NMB)
    vo = (tau & 3) * 2048
    side = list(side)
    e = lambda i: a(f'v_exp_f32 v{X + i}, v{X + i}')
    u = 2 * tau + b + OPT.get('po', 0)
    pr = OPT.get('pr', 1)
    p0, p1 = {0: (0, 1), 1: (3 - (u & 3), None), 2: (3 - ((2 * u) & 3), 3 - ((2 * u + 1) & 3)), 3: (None if b else 3 - (tau & 3), None),
              4: (None, None), 5: (2 - 2 * (u & 1), 3 - 2 * (u & 1)), 6: (None, 3 - (u & 3)), 7: (2 - 2 * (tau & 1), 3 - 2 * (tau & 1)),
              8: (2 - (u % 3), 3 - (u % 3)), 9: (1, 0)}[pr]
    if p0 is not None:
        a(f's_setprio {p0}')
    e(0); e(1)
    if b:
        a('s_waitcnt lgkmcnt(0)')
    if b or tau > 0:
        a(f'v_smfmac_f32_32x32x32_bf16 {vr(OY, 16)}, {vr(V1)}, {vr(Y + 8, 8)}, v{IDX}')
    XM = OPT.get('xm') and tau > 0
    if not b and XM:
        a(f'''s_mov_b64 exec, s[54:55]
              ds_read_b128 {vr(V1)}, v{KA} offset:{tau * 2048 + 1280}
              s_mov_b64 exec, -1''')
    elif not b:
        a(f'ds_read_b128 {vr(V1)}, v{VA} offset:{vo + 1280}')
    e(2); e(3); e(4)
    if not (b and last):
        a(f'v_mfma_f32_32x32x16_bf16 {vr(Y, 16)}, {vr(KF)}, {vr(QY)}, {vr(NY, 16)}')
    else:
        a(a2mm(CC, A2C, A2E, 2))
    if not b and not last:
        a(f'ds_read_b128 {vr(KF)}, v{KA} offset:{(tau + 1) * 2048}')
    if p1 is not None:
        a(f's_setprio {p1}')
    for i in range(5, 10):
        e(i)
        if last and i == 7:
            a(a2mm(CC, A2C, A2E, 3 if b else 0))
    if not b:
        a(f's_waitcnt lgkmcnt({1 if last else 2})')
    a(f'v_smfmac_f32_32x32x32_bf16 {vr(OX, 16)}, {vr(V0)}, {vr(X, 8)}, v{IDX}')
    if b and not last and XM:
        a(f'''s_mov_b64 exec, s[54:55]
              ds_read_b128 {vr(V0)}, v{KA} offset:{tau * 2048 + 2048 + 1024}
              s_mov_b64 exec, -1''')
    elif b and not last:
        a(f'ds_read_b128 {vr(V0)}, v{VA} offset:{vo + 2048 + 1024}')
        if (tau & 3) == 3:
            a(f'v_add_u32 v{VA}, v{VINC}, v{VA}')
    for i in range(10, 16):
        e(i)
        if i == 12:
            for s in side:
                a(s)


def attention(a):
    stamp(a, 4)
    a('''s_mov_b32 s54, 0xffff
         s_mov_b32 s55, 0xffff
         s_barrier''')
    stamp(a, 6)
    a(f'''ds_read_b128 {vr(QA)}, v{T0}
          ds_read_b128 {vr(V1)}, v{L16}
          ds_read_b128 {vr(QB)}, v{T0} offset:1024
          ds_read_b128 {vr(KF)}, v{KA}
          ds_read_b128 {vr(V0)}, v{VA} offset:1024''')
    for s_ in kv_dma(1):
        a(s_)
    a(f'''s_waitcnt lgkmcnt(3)
          v_mfma_f32_32x32x16_bf16 {vr(SA, 16)}, {vr(V1)}, {vr(QA)}, 0
          s_waitcnt lgkmcnt(2)
          v_mfma_f32_32x32x16_bf16 {vr(SB, 16)}, {vr(V1)}, {vr(QB)}, 0
          v_mov_b64 {vr(A2C, 2)}, -1
          v_mov_b64 {vr(A2C + 2, 2)}, -1''')
    for s_ in kv_dma(2):
        a(s_)
    a(f'''buffer_store_dwordx4 {vr(A2C)}, v{L16}, s[16:19], s82 offen sc1
          s_nop 1''')
    for S, NM, t in ((SA, NMA, T0), (SB, NMB, T1)):
        a(f'v_max3_f32 v{t}, v{S}, v{S + 1}, v{S + 2}')
        for i in range(3, 15, 2):
            a(f'v_max3_f32 v{t}, v{t}, v{S + i}, v{S + i + 1}')
        a(f'''v_max_f32 v{t}, v{t}, v{S + 15}
              v_mov_b32 v{T2}, v{t}
              s_nop 1
              v_permlane32_swap_b32 v{t}, v{T2}
              v_max_f32 v{t}, v{t}, v{T2}
              v_sub_f32 v{NM}, {f2u(-OFFS)}, v{t}
              v_sub_f32 v{NM + 1}, {f2u(-OFFS)}, v{t}''')
        for i in range(2, 16, 2):
            a(f'v_mov_b64 {vr(NM + i, 2)}, {vr(NM, 2)}')
        if S == SA:
            a(f'''s_waitcnt lgkmcnt(0)
                  s_nop 0
                  v_mfma_f32_32x32x16_bf16 {vr(SA, 16)}, {vr(KF)}, {vr(QA)}, {vr(NMA, 16)}''')
    stamp(a, 7)

    side = {}

    def put(tau, b, ins):
        side.setdefault((tau, b), []).extend(ins)

    put(3, 0, ['s_cmp_eq_u32 s3, 0', 's_cbranch_scc0 L_at_noflag2', f'v_mov_b32 v{T0}, s58', 's_mov_b64 exec, 1',
               f'buffer_store_dword v{T0}, v{L16}, s[16:19], s93 offen sc1', 's_mov_b64 exec, -1', 'L_at_noflag2:'])
    for c in range(3, 8):
        put(c, 1, kv_dma(c))
    flag_loads = [f'buffer_load_dword v{A2E + i}, v{L16}, s[16:19], s92 offen offset:{i * 1024} sc1' for i in range(4)]
    put(8, 0, [f's_mov_b32 s92, {FLAGS}'] + flag_loads)
    put(10, 0, ['s_waitcnt vmcnt(0)', 'L_at_fchk:',
                f'v_cmp_ne_u32 vcc, s58, v{A2E}', f'v_cmp_ne_u32 s[4:5], s58, v{A2E + 1}',
                f'v_cmp_ne_u32 s[6:7], s58, v{A2E + 2}', f'v_cmp_ne_u32 s[62:63], s58, v{A2E + 3}',
                's_or_b64 vcc, vcc, s[4:5]', 's_or_b64 s[6:7], s[6:7], s[62:63]', 's_or_b64 vcc, vcc, s[6:7]',
                's_cbranch_vccnz L_at_fretry', 'L_at_fok:'])
    put(10, 1, ['s_or_b32 s4, s2, s3', 's_cmp_eq_u32 s4, 0', 's_cbranch_scc0 L_at_noepoch',
                f's_mov_b32 s4, {EPOCH}', 's_mov_b64 exec, 1',
                f'buffer_store_dword v{A2E}, v{L16}, s[16:19], s4 offen sc1',
                's_mov_b64 exec, -1', 'L_at_noepoch:'])
    loads = []
    for m in range(2):
        for ks in range(4):
            loads.append(f'buffer_load_dwordx4 {vr(A2C + 16 * m + 4 * ks)}, v{WSA}, s[{24 + 4 * m}:{27 + 4 * m}], 0 offen offset:{ks * 32}')
    for m in range(2):
        for ks in range(4):
            loads.append(f'buffer_load_dwordx4 {vr(A2E + 16 * m + 4 * ks)}, v{L16}, s[16:19], s{85 + m} offen offset:{ks * 1024} sc1')
    for ks in range(16):
        pre = 's_add_u32 s87, s87, 0x1000\n' if ks and ks % 4 == 0 else ''
        loads.append(pre + f'buffer_load_dwordx4 {vr(WO + 4 * ks)}, v{L16}, s[16:19], s87 offen offset:{(ks & 3) * 1024} sc1')
    u = 22
    sched = OPT.get('sched', 4)
    if sched == 0:
        for k in range(0, 8, 2):
            put(u >> 1, u & 1, loads[k:k + 2]); u += 1
        for ld in loads[8:]:
            put(u >> 1, u & 1, [ld]); u += 1
    elif sched == 1:
        for ld in loads[8:]:
            put(u >> 1, u & 1, [ld]); u += 1
    elif sched == 2:
        pass
    elif sched == 3:
        for k in range(8, 32, 2):
            put(u >> 1, u & 1, loads[k:k + 2]); u += 1
        for k, uu in enumerate((35, 41, 43, 45, 47, 53, 55, 57)):
            put(uu >> 1, uu & 1, [loads[k]])
    elif sched == 4:
        for k, uu in enumerate((22, 34, 36, 38, 28, 40, 42, 44)):
            put(uu >> 1, uu & 1, [loads[k]])
        u = 45
        for k in range(8, 32, 2):
            put(u >> 1, u & 1, loads[k:k + 2]); u += 1
    put(u >> 1, u & 1, [f'v_and_b32 v{T0}, 31, v{LN}', f'v_lshlrev_b32 v{T0}, 2, v{T0}', f'v_mov_b32 v{T1}, 0',
                        's_lshl_b32 s4, s77, 7', 's_lshl_b32 s5, s83, 10', 's_add_u32 s4, s4, s5',
                        f's_add_u32 s4, s4, {RR}', f's_mov_b32 s5, {RR + 1024}',
                        f'buffer_load_dword v{T0}, v{T0}, s[16:19], s4 offen sc1',
                        f'buffer_load_dword v{T1}, v{T1}, s[16:19], s5 offen sc1'])
    assert u < 60
    put(30, 0, ['s_waitcnt vmcnt(0)', 's_cmp_eq_u32 s76, 0', 's_cbranch_scc0 L_a2_nopatch', 's_mov_b32 exec_lo, 1', 's_mov_b32 exec_hi, 1'] +
        [f'v_mov_b32 v{A2S + i}, 0xbf803f80' for i in range(16)] + ['s_mov_b64 exec, -1', 'L_a2_nopatch:'])
    put(30, 1, ['s_mul_i32 s4, s3, 2304', f's_add_u32 m0, s4, {MG}', 's_xor_b32 s5, s3, 4', 's_mul_i32 s5, s5, 2304',
                f's_add_u32 s70, s5, {MG}', f"s_mov_b32 s71, {0 if OPT.get('forcefb') else f2u(2.0 ** 120)}"])
    put(31, 0, [a2mm(CC, A2C, A2E, 1)])
    put(31, 1, [a2mm(SS, A2S, A2O, 0), 's_cmp_eq_u32 s79, 0'])
    a('.p2align 3')
    for tau in range(32):
        if tau == 3:
            a('s_waitcnt vmcnt(0)\ns_barrier')
            stamp(a, 8)
        if tau == 11:
            a('s_barrier')
            stamp(a, 9)
        for b in range(2):
            unit(a, tau, b, side.get((tau, b), []), last=(tau == 31))
    a(f'''s_setprio 0
          s_cbranch_scc1 L_mg_k0''')
    R = KF
    for kh in (1, 0):
        snd, kp = (OA, OB) if kh else (OB, OA)
        if kh == 0:
            a('L_mg_k0:')
        a(f'v_smfmac_f32_32x32x32_bf16 {vr(OB, 16)}, {vr(V1)}, {vr(SB + 8, 8)}, v{IDX}')
        stamp(a, 10)
        if kh == 0:
            a('s_nop 11')
        for i in range(9):
            a(f'ds_write_addtid_b32 v{snd + i} offset:{MG + i * 256}')
        a(a2mm(SS, A2S, A2O, 1))
        a('''s_mov_b32 m0, s70
             s_waitcnt lgkmcnt(0)
             s_barrier''')
        for i in (8, 0, 1, 2, 3, 4, 5, 6, 7):
            a(f'ds_read_addtid_b32 v{R + i} offset:{MG + i * 256}')
        a(a2mm(SS, A2S, A2O, 2))
        a(f'''s_waitcnt lgkmcnt(8)
              v_add_f32 v{R + 8}, v{R + 8}, v{kp + 8}
              v_rcp_f32 v{R + 10}, v{R + 8}''')
        for i in range(4):
            a(f'''s_waitcnt lgkmcnt({6 - 2 * i})
                  v_pk_add_f32 {vr(R + 2 * i, 2)}, {vr(R + 2 * i, 2)}, {vr(kp + 2 * i, 2)}''')
        if kh:
            a('s_branch L_mg_j')
    a('L_mg_j:')
    for i in range(4):
        a(f'v_pk_mul_f32 {vr(R + 2 * i, 2)}, {vr(R + 2 * i, 2)}, {vr(R + 10, 2)} op_sel_hi:[1,0]')
    for i in range(4):
        a(f'v_cvt_pk_bf16_f32 v{OB + i}, v{R + 2 * i}, v{R + 2 * i + 1}')
    for i in range(4):
        a(f'v_dot2c_f32_bf16 v{R + 8}, v{OB + i}, v{OB + i}')
    a(a2mm(SS, A2S, A2O, 3))
    a(f'''s_nop 1
          v_cmp_ngt_f32 vcc, s71, v{R + 8}
          s_cbranch_vccnz L_fallback
          L_at_final:
          buffer_store_dwordx4 {vr(OB)}, v{L16}, s[16:19], s82 offen sc1''')
    stamp(a, 11)
    return flag_loads


def cold_paths(a, flag_loads):
    a(f'''L_at_fretry:
          s_mov_b32 s93, {SPIN}
          L_at_fretry2:''')
    for s in flag_loads:
        a(s)
    a(f'''s_waitcnt vmcnt(0)
          v_cmp_ne_u32 vcc, s58, v{A2E}
          v_cmp_ne_u32 s[4:5], s58, v{A2E + 1}
          v_cmp_ne_u32 s[6:7], s58, v{A2E + 2}
          v_cmp_ne_u32 s[62:63], s58, v{A2E + 3}
          s_or_b64 vcc, vcc, s[4:5]
          s_or_b64 s[6:7], s[6:7], s[62:63]
          s_or_b64 vcc, vcc, s[6:7]
          s_cbranch_vccz L_at_fok
          s_sub_u32 s93, s93, 1
          s_cbranch_scc0 L_at_fretry2
          s_branch L_at_fok''')
    a(f'''L_fallback:
          s_cmp_eq_u32 s79, 0
          s_cbranch_scc1 L_fb_q
          v_mov_b64 {vr(QA, 2)}, {vr(QB, 2)}
          v_mov_b64 {vr(QA + 2, 2)}, {vr(QB + 2, 2)}
          L_fb_q:
          v_mov_b32 v{SB}, 0xff800000
          s_mov_b32 s4, s88
          s_mov_b32 s5, 64
          L_fb_max:
          buffer_load_dwordx4 {vr(KF)}, v{L16}, s[16:19], s4 offen sc1
          s_waitcnt vmcnt(0)
          v_mfma_f32_32x32x16_bf16 {vr(SA, 16)}, {vr(KF)}, {vr(QA)}, 0
          s_nop 11''')
    for i in range(0, 16, 2):
        a(f'v_max3_f32 v{SB}, v{SB}, v{SA + i}, v{SA + i + 1}')
    a(f'''s_add_u32 s4, s4, 2048
          s_sub_u32 s5, s5, 1
          s_cmp_lg_u32 s5, 0
          s_cbranch_scc1 L_fb_max
          v_mov_b32 v{SB + 1}, v{SB}
          s_nop 1
          v_permlane32_swap_b32 v{SB}, v{SB + 1}
          v_max_f32 v{SB}, v{SB}, v{SB + 1}
          v_sub_f32 v{SB}, {f2u(-float(VLOG))}, v{SB}''')
    for i in range(1, 16):
        a(f'v_mov_b32 v{SB + i}, v{SB}')
    for i in range(16):
        a(f'v_mov_b32 v{OA + i}, 0')
    for i in range(8):
        a(f'v_mov_b32 v{V0 + i}, {ONEBF * 0x10001}')
    a(f'''s_mov_b32 s4, s88
          s_mov_b32 s5, 64
          s_mov_b32 s6, 0xffff
          s_mov_b32 s7, 0xffff
          L_fb_pv:
          buffer_load_dwordx4 {vr(KF)}, v{L16}, s[16:19], s4 offen sc1
          s_mov_b64 exec, s[6:7]
          buffer_load_dwordx4 {vr(V0)}, v{L16}, s[16:19], s4 offen offset:1024 sc1
          buffer_load_dwordx4 {vr(V1)}, v{L16}, s[16:19], s4 offen offset:1280 sc1
          s_mov_b64 exec, -1
          s_waitcnt vmcnt(0)
          v_mfma_f32_32x32x16_bf16 {vr(SA, 16)}, {vr(KF)}, {vr(QA)}, {vr(SB, 16)}
          s_nop 11''')
    for i in range(16):
        a(f'v_exp_f32 v{SA + i}, v{SA + i}')
    a(f'''s_nop 1
          v_smfmac_f32_32x32x32_bf16 {vr(OA, 16)}, {vr(V0)}, {vr(SA, 8)}, v{IDX}
          v_smfmac_f32_32x32x32_bf16 {vr(OA, 16)}, {vr(V1)}, {vr(SA + 8, 8)}, v{IDX}
          s_add_u32 s4, s4, 2048
          s_sub_u32 s5, s5, 1
          s_cmp_lg_u32 s5, 0
          s_cbranch_scc1 L_fb_pv
          s_nop 11
          v_rcp_f32 v{SB}, v{OA + 8}
          s_nop 0''')
    for i in range(8):
        a(f'v_mul_f32 v{OA + i}, v{SB}, v{OA + i}')
    for i in range(4):
        a(f'v_cvt_pk_bf16_f32 v{OB + i}, v{OA + 2 * i}, v{OA + 2 * i + 1}')
    for i in range(4):
        a(f'v_min_u32 v{OB + i}, -2, v{OB + i}')
    a('s_branch L_at_final')


def tail(a):
    OST, XP = 0x18000, 0x16000
    PA, XA3, XA4, SA0, CO, OSR, OUTA, VRA = 96, 97, 98, 100, 106, 109, 110, 111
    gather = [f'buffer_load_dwordx4 v{L16}, s[16:19], s70 offen offset:{i * 1024} sc1 lds' for i in range(4)]
    gp = OPT.get('gp', 2)
    a(f'''s_lshl_b32 s4, s3, 13
          v_add_u32 v64, s4, v{L16}
          s_mul_i32 s73, s76, s77
          s_lshl_b32 s4, s80, 15
          s_lshl_b32 s5, s3, 12
          s_add_u32 s70, s4, s5
          s_add_u32 s70, s70, {OF}
          s_add_u32 s5, s5, {OST}
          s_mov_b32 m0, s5
          v_add_u32 v{VRA}, s5, v{L16}''')
    calc = (f'''s_lshl_b32 s4, s3, 7
          s_add_u32 s4, s4, {XP}
          v_lshl_add_u32 v66, v{LN}, 2, s4
          v_lshrrev_b32 v67, 5, v{LN}
          v_and_b32 v71, 31, v{LN}
          s_lshl_b32 s6, s3, 9
          v_lshl_add_u32 v{PA}, v71, 4, s6
          v_lshl_add_u32 v{PA}, v67, 12, v{PA}   ; partial read address
          s_lshl_b32 s6, s3, 2
          v_lshl_add_u32 v73, v67, 1, s6         ; tl (even)
          v_lshlrev_b32 v{XA3}, 2, v73
          v_add_u32 v{XA3}, {XP}, v{XA3}
          v_lshlrev_b32 v{XA4}, 2, v71
          v_add_u32 v{XA4}, {XP + 1024}, v{XA4}
          s_lshl_b32 s4, s80, 5
          v_add_u32 v{OUTA}, s4, v71
          v_lshlrev_b32 v{OUTA}, 11, v{OUTA}
          v_lshl_add_u32 v{OUTA}, v67, 4, v{OUTA}   ; out offset
          s_lshl_b32 s4, s77, 5
          v_add_u32 v71, s4, v71           ; e
          v_lshl_add_u32 v73, v73, 1, s84  ; t0 ; t1 = t0 + 2
          v_cmp_eq_u32 s[74:75], 0, v73
          v_cmp_eq_u32 s[64:65], 0, v71
          v_sub_u32 v84, 0x800, v73
          v_mov_b32 v85, 0x400
          v_cndmask_b32 v85, v84, v85, s[74:75]   ; row2 of t0
          v_subrev_u32 v84, 2, v84                ; row2 of t1
          v_sub_u32 v86, 0x200, v71
          v_mov_b32 v87, 0x100
          v_cndmask_b32 v86, v86, v87, s[64:65]   ; col2
          v_lshlrev_b32 v87, 1, v71
          v_lshlrev_b32 v86, 1, v86
          v_lshl_add_u32 v{SA0}, v73, 11, v87
          v_lshl_add_u32 v{SA0 + 1}, v73, 11, v86
          v_lshl_add_u32 v{SA0 + 2}, v85, 11, v87
          v_lshl_add_u32 v{SA0 + 3}, v85, 11, v86
          v_lshl_add_u32 v{SA0 + 4}, v84, 11, v87
          v_lshl_add_u32 v{SA0 + 5}, v84, 11, v86
          s_cmp_eq_u32 s83, 0
          s_cselect_b64 vcc, -1, 0
          v_cndmask_b32 v{CO}, 0, v{T0}, vcc          ; cos correction
          v_cndmask_b32 v{CO + 1}, 0, v{T1}, vcc      ; column-256 correction
          v_cndmask_b32 v{CO + 2}, v{T0}, 0, vcc      ; sin correction
          s_or_b64 s[66:67], s[74:75], s[64:65]
          s_and_b64 s[68:69], s[74:75], s[64:65]
          s_mov_b32 s71, 4096
          v_lshrrev_b32 v65, 4, v{LN}      ; g
          v_and_b32 v88, 15, v{LN}
          v_lshlrev_b32 v88, 4, v88
          v_lshl_add_u32 v{OSR}, v65, 9, v88
          v_add_u32 v{OSR}, {OST}, v{OSR}  ; staging read address
          s_lshl_b32 s4, s81, 8
          s_lshl_b32 s5, s3, 5
          s_add_u32 s72, s4, s5
          s_add_u32 s72, s72, 1024
          s_mov_b32 s5, {SPIN}''').split('\n')
    per = (len(calc) + 6) // 7
    a('''s_cmp_eq_u32 s73, 0
         s_cbranch_scc1 L_a2_x''')
    for special in (0, 1):
        L = []
        mm = [a2mm(D, x, y, ks) for ks in range(4) for D, x, y in ((X3, A2O, A2C), (X4, A2S, A2E))] if special else []
        for q in range(8):
            if mm and q == 0:
                L.append(mm.pop(0))
            L.append(f'ds_write_b128 v64, {vr(CC + 4 * q)} offset:{q * 1024}')
            if mm:
                L.append(mm.pop(0))
            L += calc[q * per:(q + 1) * per]
        if special:
            xcode = ['L_a2_x:'] + L + ['s_mov_b32 exec_hi, 0', 's_nop 7', f'ds_write_b32 v66, v{X3}', f'ds_write_b32 v66, v{X4} offset:1024',
                                       's_mov_b32 exec_hi, -1', 's_branch L_a2_xr']
            assert len(calc) - 6 * per >= 2
        else:
            for x in L:
                a(x)
    a('''L_a2_xr:
         s_cmp_eq_u32 s73, 0''')
    a('s_waitcnt lgkmcnt(0)')
    if gp == 2:
        for g in gather:
            a(g)
    a('s_barrier')
    stamp(a, 12)
    for w in range(8):
        a(f'ds_read_b128 {vr(128 + 4 * w)}, v{PA} offset:{w * 8192}')
    if gp == 3:
        for g in gather:
            a(g)
    a('s_cbranch_scc0 L_a2_nox3')
    for w in range(8):
        a(f'''ds_read_b64 {vr(160 + 2 * w, 2)}, v{XA3} offset:{w * 128}
              ds_read_b32 v{176 + w}, v{XA4} offset:{w * 128}''')
    a('L_a2_nox3:')
    V = []
    for step in (4, 2, 1):
        for w in range(step):
            for i in (0, 2):
                if OPT.get('nopk'):
                    V.append('\n'.join(f'v_add_f32 v{128 + 4 * w + i + k}, v{128 + 4 * w + i + k}, v{128 + 4 * (w + step) + i + k}' for k in range(2)))
                else:
                    V.append(f'v_pk_add_f32 {vr(128 + 4 * w + i, 2)}, {vr(128 + 4 * w + i, 2)}, {vr(128 + 4 * (w + step) + i, 2)}')
    X = ['s_cbranch_scc0 L_a2_nox4']
    for step in (4, 2, 1):
        for w in range(step):
            X += [f'v_pk_add_f32 {vr(160 + 2 * w, 2)}, {vr(160 + 2 * w, 2)}, {vr(160 + 2 * (w + step), 2)}',
                  f'v_add_f32 v{176 + w}, v{176 + w}, v{176 + w + step}']
    X += [f'v_add_f32 v160, v160, v{CO + 1}', f'v_sub_f32 v161, v161, v{CO + 1}', f'v_add_f32 v176, v176, v{CO}', 'L_a2_nox4:', 's_nop 0']
    V.append('\n'.join(X))
    V += f'''v_permlane32_swap_b32 v128, v130
         v_permlane32_swap_b32 v129, v131
         v_add_f32 v128, v128, v{CO}
         v_sub_f32 v129, v129, v{CO}
         v_add_f32 v177, v130, v{CO + 1}
         v_sub_f32 v130, v130, v{CO + 2}
         v_add_f32 v131, v131, v{CO + 2}
         v_cndmask_b32 v130, v130, 0, s[66:67]
         v_cndmask_b32 v131, v131, 0, s[64:65]
         v_sub_f32 v132, v128, v130
         v_sub_f32 v134, v129, v131
         v_add_f32 v133, v128, v130
         v_add_f32 v135, v129, v131
         v_cvt_pk_bf16_f32 v144, v132, v134
         buffer_store_short v144, v{SA0}, s[20:23], 0 offen
         v_cndmask_b32 v136, v133, v160, s[64:65]
         buffer_store_short_d16_hi v144, v{SA0}, s[20:23], s71 offen
         v_cndmask_b32 v139, v135, v161, s[64:65]
         v_cvt_pk_bf16_f32 v145, v136, v139
         v_cndmask_b32 v137, v133, v176, s[74:75]
         buffer_store_short v145, v{SA0 + 1}, s[20:23], 0 offen
         v_cvt_pk_bf16_f32 v146, v137, v135
         buffer_store_short_d16_hi v145, v{SA0 + 1}, s[20:23], s71 offen
         v_cndmask_b32 v138, v132, v160, s[64:65]
         buffer_store_short v146, v{SA0 + 2}, s[20:23], 0 offen
         v_cndmask_b32 v138, v138, v176, s[74:75]
         buffer_store_short_d16_hi v146, v{SA0 + 4}, s[20:23], 0 offen
         v_cndmask_b32 v138, v138, v177, s[68:69]
         v_cndmask_b32 v140, v134, v161, s[64:65]
         v_cvt_pk_bf16_f32 v147, v138, v140
         buffer_store_short v147, v{SA0 + 3}, s[20:23], 0 offen
         buffer_store_short_d16_hi v147, v{SA0 + 5}, s[20:23], 0 offen'''.split('\n')
    if OPT.get('a2sc'):
        V = [x + ' sc1' if 'buffer_store' in x else x for x in V]
    a('s_waitcnt lgkmcnt(0)')
    for x in V:
        a(x)
    stamp(a, 13)
    a('''s_waitcnt vmcnt(8)
         L_op_chk:''')
    for i in range(4):
        a(f'ds_read_b128 {vr(48 + 4 * i)}, v{VRA} offset:{i * 1024}')
    a('''s_waitcnt lgkmcnt(3)
         v_max3_u32 v84, v48, v49, v50
         s_waitcnt lgkmcnt(2)
         v_max3_u32 v84, v84, v51, v52
         v_max3_u32 v84, v84, v53, v54
         s_waitcnt lgkmcnt(1)
         v_max3_u32 v84, v84, v55, v56
         v_max3_u32 v84, v84, v57, v58
         s_waitcnt lgkmcnt(0)
         v_max3_u32 v84, v84, v59, v60
         v_max3_u32 v84, v84, v61, v62
         v_max_u32 v84, v84, v63
         v_cmp_eq_u32 vcc, -1, v84
         s_cbranch_vccnz L_op_retry
         L_op_ok:
         s_barrier''')
    stamp(a, 14)
    NB = 12
    rd = lambda n: a(f'ds_read_b128 {vr(4 * (n % NB))}, v{OSR} offset:{(n >> 1) * 2048 + (n & 1) * 256}')
    for n in range(NB - 2):
        rd(n)
    for n in range(32):
        nxt = n + NB - 2
        if nxt < 32:
            rd(nxt)
        out = min(31, nxt) - n
        acc = vr(72 + 4 * (n & 1))
        a(f'''s_waitcnt lgkmcnt({out})
              v_mfma_f32_16x16x32_bf16 {acc}, {vr(WO + 4 * (n >> 1))}, {vr(4 * (n % NB))}, {acc if n >= 2 else 0}''')
    a(f'''s_nop 7
          v_cvt_pk_bf16_f32 v80, v72, v73
          v_cvt_pk_bf16_f32 v81, v74, v75
          v_cvt_pk_bf16_f32 v82, v76, v77
          v_cvt_pk_bf16_f32 v83, v78, v79
          s_nop 1
          v_permlane16_swap_b32 v80, v82
          v_permlane16_swap_b32 v81, v83
          buffer_store_dwordx4 v[80:83], v{OUTA}, s[20:23], s72 offen''')
    stamp(a, 15)
    if OPT['stamps']:
        a('s_waitcnt vmcnt(0)')
    stamp(a, 16)
    stamp_dump(a)
    return gather, xcode


def build():
    a = A()
    prologue(a)
    a('''s_cmp_ge_u32 s3, 4
         s_cbranch_scc0 L_p1_compute''')
    p1_loader(a)
    a('''s_branch L_p1_join
         L_p1_compute:''')
    p1_compute(a)
    stamp(a, 25)
    a('s_add_u32 s58, s58, 1            ; nonce')
    zero_o(a)
    publish1(a)
    a('L_p1_join:\ns_setprio 0')
    fl = attention(a)
    gather, xcode = tail(a)
    a('''L_end:
         s_endpgm
         L_op_retry:
         s_sub_u32 s5, s5, 1
         s_cbranch_scc1 L_op_ok''')
    for g in gather:
        a(g)
    a('s_waitcnt vmcnt(0)\ns_branch L_op_chk')
    for x in xcode:
        a(x)
    cold_paths(a, fl)
    a('L_code_end:')
    a('s_endpgm')
    return a.text()


def main(path):
    hdr = ''.join(l for l in open(f'cdna_kernels/{NAME}.s.ref') if l.startswith(';') and '@launch' not in l)
    out = hdr + f'; @launch grid=(256,1,1) block=(512,1,1) lds={LDS_BYTES}\n'
    out += f'''; One persistent launch, 256 workgroups x 8 waves (generated by gen/gen3.py):
.amdgcn_target "amdgcn-amd-amdhsa--gfx950"
.text
.globl {NAME}_kernel
.p2align {OPT.get('al', 8)}
.type {NAME}_kernel,@function
{NAME}_kernel:
'''
    out += build()
    out += f'''.section .rodata,"a"
.p2align 6
.amdhsa_kernel {NAME}_kernel
  .amdhsa_next_free_vgpr 256
  .amdhsa_next_free_sgpr {98 if OPT['stamps'] else 96}
  .amdhsa_accum_offset 256
  .amdhsa_group_segment_fixed_size 0
  .amdhsa_kernarg_size 88
  .amdhsa_user_sgpr_count 2
  .amdhsa_user_sgpr_kernarg_segment_ptr 1
  .amdhsa_system_sgpr_workgroup_id_x 1
.end_amdhsa_kernel
'''
    open(path, 'w').write(out)


if __name__ == '__main__':
    for x in sys.argv[1:]:
        if x.startswith('--'):
            k, _, v = x[2:].partition('=')
            OPT[k] = (int(v, 0) if v[0].isdigit() else v) if v else True
    args = [x for x in sys.argv[1:] if not x.startswith('--')]
    main(args[0] if args else f'cdna_kernels/{NAME}.s')
```

```python
import math, struct, sys

NAME = 'concat_heads__spectral_fnet__softmax_full_mha__prompt'
QF, KV, EO, OF, WOF, RR, FLAGS, EPOCH, STAMP, WS_SIZE = (
    0, 0x200000, 0x600000, 0x700000, 0x900000, 0x980000, 0x990000, 0x9A0000, 0x9C0000, 0xB00000)
PFLAGS = 0xA00000
OFFS = 100.0
VLOG = 40
CSCALE = 0.25 * math.log2(math.e)
ONEBF = (127 + VLOG) << 7
SPIN = 400000
NB1 = 4
OPT = dict(stamps=False, cyc=False, stag=0x2424, stsh=2, xm=1)


def f2u(x):
    return struct.unpack('<I', struct.pack('<f', x))[0]


class A:
    def __init__(self):
        self.l = []

    def __call__(self, s):
        for ln in s.strip('\n').split('\n'):
            ln = ln.strip()
            if not ln:
                continue
            self.l.append(ln if ln.endswith(':') or ln.startswith('.') else '    ' + ln)

    def text(self):
        return '\n'.join(self.l) + '\n'


def vr(b, n=4):
    return f'v[{b}:{b + n - 1}]'


def srd(a, d, lo, size):
    a(f'''s_mov_b32 s{d}, s{lo}
          s_mov_b32 s{d + 1}, s{lo + 1}
          s_mov_b32 s{d + 2}, {size}
          s_mov_b32 s{d + 3}, 0x20000''')


STV = 126


def stamp(a, slot):
    if not OPT['stamps']:
        return
    a(f'''{'s_memtime' if OPT['cyc'] else 's_memrealtime'} s[94:95]
          s_waitcnt lgkmcnt(0)
          v_writelane_b32 v{STV}, s94, {slot}''')
    if slot == 0:
        a(f'v_writelane_b32 v{STV}, s96, 30')


def stamp_dump(a):
    if not OPT['stamps']:
        return
    a(f'''v_mbcnt_lo_u32_b32 v{STV + 1}, -1, 0
          v_mbcnt_hi_u32_b32 v{STV + 1}, -1, v{STV + 1}
          v_lshlrev_b32 v{STV + 1}, 2, v{STV + 1}
          s_lshl_b32 s92, s2, 3
          s_add_u32 s92, s92, s3
          s_lshl_b32 s92, s92, 7
          s_add_u32 s92, s92, {STAMP}
          s_mov_b32 exec_hi, 0
          buffer_store_dword v{STV}, v{STV + 1}, s[16:19], s92 offen sc1
          s_mov_b64 exec, -1''')


SA, SB, NMA, NMB, OA, OB, QA, QB, KF, V0, V1 = 0, 16, 32, 48, 64, 80, 96, 100, 104, 108, 112
IDX, KA, VA, VINC, L16, WSA, LN, T0, T1, T2 = 116, 117, 118, 119, 120, 121, 122, 123, 124, 125
A2C, A2S, A2E, A2O, WO = 128, 144, 160, 176, 192
ONES, MRG, WST, CNT = 0x20000, 0x22800, 0x27000, 0x27800
QST = MRG
LDS_BYTES = 0x28000


def prologue(a):
    if OPT['stamps']:
        a(f"{'s_memtime' if OPT['cyc'] else 's_memrealtime'} s[96:97]")
    a(f'''s_cmp_ge_u32 s2, 256
          s_cbranch_scc1 L_end
          s_load_dwordx16 s[36:51], s[0:1], 0
          s_load_dwordx4 s[52:55], s[0:1], 64
          s_load_dwordx2 s[56:57], s[0:1], 80
          v_lshrrev_b32 v1, 6, v0
          v_and_b32 v0, 63, v0
          v_readfirstlane_b32 s3, v1
          s_and_b32 s60, s2, 7
          s_lshr_b32 s61, s2, 3
          s_cmp_eq_u32 s3, 0
          s_cbranch_scc0 L_nopf
          v_min_u32 v22, 5, v0
          v_lshl_add_u32 v22, v22, 5, s61
          v_lshlrev_b32 v22, 7, v22
          v_min_u32 v22, L_code_end - L_pc - 4, v22
          s_getpc_b64 s[6:7]
          L_pc:
          global_load_dword v23, v22, s[6:7]
          L_nopf:
          ; phase-1 roles: s62 kind, s63 rb, s64 cb, s65 rot
          s_lshr_b32 s62, s60, 1
          s_and_b32 s63, s60, 1
          s_lshl_b32 s63, s63, 3
          s_and_b32 s4, s61, 7
          s_add_u32 s63, s63, s4
          s_lshr_b32 s64, s61, 3
          s_lshl_b32 s65, s64, {1 if OPT.get('rot', 3) == 7 else 0}
          s_add_u32 s65, s65, s4
          s_cmp_eq_u32 s62, 3
          s_cselect_b32 s66, 1, 3
          s_lshl_b32 s14, s66, 19
          s_lshl_b32 s66, s66, 10          ; W pitch
          s_lshl_b32 s6, s62, 10
          s_lshl_b32 s7, s64, 8
          s_add_u32 s6, s6, s7
          s_and_b32 s7, s7, 256
          s_cmp_eq_u32 s62, 3
          s_cselect_b32 s67, s7, s6
          s_mov_b32 s10, 0x200000
          s_mov_b32 s11, 0x20000
          s_mov_b32 s15, 0x20000''')


def roles(a):
    a(f'''v_mov_b32 v{LN}, v0
          v_lshlrev_b32 v{L16}, 4, v0
          v_mov_b32 v224, 2.0
          v_mov_b32 v225, 2.0
          s_mov_b32 s75, 0
          s_mov_b32 s92, 0
          s_and_b32 s4, s61, 7
          s_lshl_b32 s76, s60, 2
          s_and_b32 s5, s61, 3
          s_add_u32 s76, s76, s5           ; head
          s_lshr_b32 s77, s61, 2           ; j
          s_and_b32 s78, s3, 3             ; q pair
          s_lshr_b32 s79, s3, 2
          s_lshl_b32 s80, s60, 3
          s_add_u32 s80, s80, s4           ; qt
          s_mov_b32 s81, s64               ; nb''')


def srds(a):
    a('''s_waitcnt lgkmcnt(0)
         s_cmp_lt_u32 s64, 2
         s_cselect_b32 s4, s42, s44
         s_cselect_b32 s5, s43, s45
         s_cmp_eq_u32 s62, 3
         s_cselect_b32 s8, s36, s46
         s_cselect_b32 s9, s37, s47
         s_cselect_b32 s12, s4, s48
         s_cselect_b32 s13, s5, s49''')


def srds_late(a):
    if OPT.get('wsoff'):
        a(f'''s_add_u32 s56, s56, {OPT['wsoff'] << 20}
              s_addc_u32 s57, s57, 0''')
    srd(a, 16, 56, WS_SIZE)
    srd(a, 32, 50, 0x80000)


def srds_attn(a):
    srd(a, 20, 52, 0x400000)
    srd(a, 24, 38, 0x800000)
    srd(a, 28, 40, 0x800000)


def o_offset(a):
    a(f'''s_lshl_b32 s4, s77, 3
          s_lshl_b32 s5, s78, 1
          s_add_u32 s4, s4, s5
          s_add_u32 s4, s4, s79
          s_lshl_b32 s4, s4, 15
          s_lshl_b32 s5, s76, 10
          s_add_u32 s4, s4, s5
          s_add_u32 s82, s4, {OF}''')


def epoch_load(a):
    a(f'''s_add_u32 s4, s56, {EPOCH}
          s_addc_u32 s5, s57, 0
          s_load_dword s58, s[4:5], 0''')


def p1_loader(a):
    a('''s_sub_u32 s68, s3, 4             ; lw
         v_lshrrev_b32 v1, 3, v0
         v_and_b32 v2, 7, v0
         v_lshrrev_b32 v3, 4, v0
         v_xor_b32 v2, v2, v3
         v_lshlrev_b32 v2, 4, v2
         v_xor_b32 v9, 64, v2
         s_cmp_eq_u32 s62, 3
         s_cbranch_scc1 L_p1_rowsA
         s_lshl_b32 s4, s63, 7
         s_lshl_b32 s5, s68, 5
         s_add_u32 s4, s4, s5
         v_add_u32 v1, s4, v1
         v_lshl_add_u32 v4, v1, 10, v2
         v_lshl_add_u32 v5, v1, 10, v9
         v_add_u32 v5, 0x1c00, v5
         v_add_u32 v6, 0x3800, v4
         v_add_u32 v7, 0x3800, v5
         L_p1_rowsdone:
         v_and_b32 v2, 15, v0
         v_lshlrev_b32 v9, 2, v3
         v_xor_b32 v2, v2, v9
         v_lshlrev_b32 v2, 4, v2
         s_lshl_b32 s4, s68, 4
         v_add_u32 v3, s4, v3
         v_mul_lo_u32 v3, v3, s66
         v_add3_u32 v8, v3, v2, s67
         v_xor_b32 v9, 32, v8
         s_lshl_b32 s72, s66, 2
         s_sub_u32 s72, s72, 1024
         s_lshl_b32 s73, s66, 6           ; 64*pitch
         s_lshl_b32 s74, s68, 12''')
    srds(a)

    def issue(stage):
        slot = stage & 3
        rm = OPT.get('rot', 3)
        if OPT.get('stag') and 1 <= stage <= 4:
            a(f'''s_cmp_ge_u32 s59, {stage}
                  s_addc_u32 s4, s65, {stage - 1}
                  s_and_b32 s4, s4, 3
                  s_cmp_eq_u32 s59, {stage}
                  s_cselect_b32 s4, s75, s4''')
        else:
            if stage:
                a(f's_add_u32 s4, s65, {stage}')
            a(f's_and_b32 s4, s{4 if stage else 65}, {rm}')
            if stage & ~rm:
                a(f's_or_b32 s4, s4, {stage & ~rm}')
        a(f'''s_add_u32 m0, s74, {slot * 32768}
              s_lshl_b32 s5, s4, 7''')
        for i in range(4):
            a(f'buffer_load_dwordx4 v{4 + i}, s[8:11], s5 offen offset:{i * 1024} lds')
        a(f'''s_add_u32 m0, s74, {slot * 32768 + 16384}
              s_mul_i32 s6, s4, s73''')
        for i in range(4):
            a(f'buffer_load_dwordx4 v{8 + (i >> 1)}, s[12:15], s6 offen offset:{i * 1024} lds')
            if i < 3:
                a('s_add_u32 s6, s6, s72')

    stamp(a, 0)
    issue(0)
    a('''s_branch L_p1_rowsskip
         L_p1_rowsA:
         s_lshl_b32 s4, s63, 5
         s_lshr_b32 s5, s68, 1
         s_lshl_b32 s5, s5, 4
         s_add_u32 s4, s4, s5
         v_add_u32 v1, s4, v1
         s_and_b32 s5, s68, 1
         s_lshl_b32 s6, s5, 10            ; B
         s_lshl_b32 s7, s5, 9
         v_cmp_eq_u32 vcc, 0, v1
         v_mov_b32 v10, s7
         v_add_u32 v11, s6, v1            ; B + s'
         v_cndmask_b32 v10, 0, v10, vcc
         s_add_u32 s6, s6, 1024
         v_sub_u32 v12, s6, v1            ; B + 1024 - s'
         v_add_u32 v13, 7, v11
         v_subrev_u32 v14, 11, v12
         v_sub_u32 v11, v11, v10
         v_sub_u32 v12, v12, v10
         v_subrev_u32 v12, 2, v12
         v_lshl_add_u32 v4, v11, 10, v2
         v_lshl_add_u32 v5, v13, 10, v9
         v_lshl_add_u32 v6, v12, 10, v2
         v_lshl_add_u32 v7, v14, 10, v9
         s_branch L_p1_rowsdone
         L_p1_rowsskip:''')
    roles(a)
    srds_late(a)
    epoch_load(a)
    o_offset(a)
    a(f'''v_and_b32 v1, 11, v0
          v_cmp_eq_u32 vcc, 0, v1
          v_mov_b32 v2, {ONEBF * 0x10001}
          s_mul_i32 s4, s68, 2560
          v_cndmask_b32 v16, 0, v2, vcc
          v_mov_b32 v17, v16
          v_mov_b32 v18, v16
          v_mov_b32 v19, v16
          s_add_u32 s4, s4, {ONES}
          v_add_u32 v1, s4, v{L16}
          ds_write_b128 v1, v[16:19]
          ds_write_b128 v1, v[16:19] offset:1024
          ds_write_b128 v1, v[16:19] offset:1536
          v_mov_b32 v1, {CNT}
          v_mov_b32 v2, 0
          ds_write2_b32 v1, v2, v2 offset1:1''')
    attn_setup(a)
    zero_o(a)
    if OPT.get('stag'):
        a(f'''s_lshr_b32 s4, s61, {OPT.get('stsh', 0)}
              s_and_b32 s4, s4, 3
              s_lshl_b32 s4, s4, 2
              s_lshr_b32 s59, {OPT['stag']}, s4
              s_and_b32 s59, s59, 7
              s_and_b32 s75, s65, 3
              s_or_b32 s75, s75, 4''')
    issue(1)
    stamp(a, 1)
    for c in range(8):
        if c == 3:
            stamp(a, 28)
        a(f's_waitcnt vmcnt({[8, 8, 8, 8, 8, 8, 8, 0][c]})')
        if c in (0, 3):
            stamp(a, 2 if c == 0 else 29)
        a('s_barrier')
        if c in (0, 7):
            stamp(a, 17 + c)
        if c <= 5:
            issue(c + 2)
    a('''s_waitcnt lgkmcnt(0)
         s_barrier''')
    a('s_add_u32 s58, s58, 1            ; nonce')
    stamp(a, 25)
    a(f'''s_lshr_b32 s4, s76, 3
          s_lshl_b32 s4, s4, 5
          s_add_u32 s4, s4, s61
          s_lshl_b32 s4, s4, 11
          s_add_u32 s4, s4, {PFLAGS}
          s_add_u32 s8, s56, s4
          s_addc_u32 s9, s57, 0
          s_mov_b32 s6, 1024
          s_lshl_b32 s70, s76, 16
          s_lshl_b32 s71, s77, 13
          s_add_u32 s70, s70, s71
          s_mov_b32 s71, {QST}
          s_cmp_eq_u32 s68, 1
          s_cselect_b32 s6, 0, s6
          s_cselect_b32 s70, s88, s70
          s_cselect_b32 s71, 0, s71
          s_cmp_eq_u32 s68, 2
          s_cselect_b32 s6, 1160, s6
          s_cselect_b32 s70, s89, s70
          s_cselect_b32 s71, 0x10000, s71
          s_mov_b32 s5, {SPIN}
          s_mov_b32 s59, s58
          s_mov_b64 s[12:13], 0
          s_mov_b32 m0, s71
          s_add_u32 s72, s70, 0x1000
          s_cmp_eq_u32 s62, 3
          s_cbranch_scc1 L_s1_nogate
          {'' if OPT.get('nogate') else 's_barrier'}                        ; start polling once this workgroup's own stores are on their way
          L_s1_nogate:
          s_cmp_eq_u32 s68, 3
          s_cbranch_scc0 L_s1_poll
          L_s1_poll7:                      ; wave 7: the other K, V blocks''')
    regs = [36, 40, 44][:NB1 - 1]
    for i, r in enumerate(regs):
        a(f's_load_dwordx4 s[{r}:{r + 3}], s[8:9], {128 * (i + 1)} glc')
    a('''s_sub_u32 s5, s5, 1
         s_cbranch_scc1 L_p1_join
         s_mov_b64 s[6:7], 0
         s_waitcnt lgkmcnt(0)''')
    for r in regs:
        for h in (0, 2):
            a(f'''s_xor_b64 s[10:11], s[{r + h}:{r + h + 1}], s[58:59]
                  s_or_b64 s[6:7], s[6:7], s[10:11]''')
    a('''s_cbranch_scc1 L_s1_poll7
         s_branch L_p1_join
         L_s1_poll:
         s_load_dwordx2 s[10:11], s[8:9], s6 glc
         s_sub_u32 s5, s5, 1
         s_cbranch_scc1 L_s1_pdone
         s_waitcnt lgkmcnt(0)
         s_cmp_eq_u64 s[10:11], s[58:59]
         s_cbranch_scc0 L_s1_poll
         L_s1_pdone:''')
    stamp(a, 26)
    for i in range(4):
        a(f'buffer_load_dwordx4 v{L16}, s[16:19], s70 offen offset:{i * 1024} sc1 lds')
    a('''s_add_u32 m0, s71, 0x1000
         s_nop 0''')
    for i in range(4):
        a(f'buffer_load_dwordx4 v{L16}, s[16:19], s72 offen offset:{i * 1024} sc1 lds')
    a('s_waitcnt vmcnt(0)')


def p1_compute(a):
    roles(a)
    a('''s_and_b32 s68, s3, 1             ; wr
         s_lshr_b32 s69, s3, 1            ; wc
         v_and_b32 v1, 15, v0
         v_lshrrev_b32 v2, 4, v0          ; g
         v_lshrrev_b32 v3, 1, v1
         v_xor_b32 v3, v3, v2
         v_lshlrev_b32 v3, 4, v3
         v_lshl_add_u32 v3, v1, 7, v3
         s_lshl_b32 s4, s68, 13
         v_add_u32 v4, s4, v3
         v_xor_b32 v5, 64, v4
         v_bfe_u32 v10, v0, 2, 2          ; r
         v_lshl_add_u32 v11, v2, 3, v10   ; 8g + r
         v_lshlrev_b32 v11, 8, v11
         v_lshlrev_b32 v10, 1, v10
         v_and_b32 v12, 1, v2
         v_or_b32 v10, v10, v12           ; z
         s_lshl_b32 s4, s69, 2
         v_xor_b32 v10, s4, v10
         v_lshl_add_u32 v11, v10, 5, v11
         v_and_b32 v10, 3, v0
         v_lshl_add_u32 v11, v10, 3, v11
         v_add_u32 v6, 16384, v11
         v_xor_b32 v7, 32, v6
         v_xor_b32 v8, 64, v6
         v_xor_b32 v9, 96, v6''')
    for i in range(32):
        a(f'v_mov_b64 {vr(128 + 2 * i, 2)}, 0')
    o_offset(a)
    a('s_waitcnt lgkmcnt(0)')
    stamp(a, 0)
    srds_late(a)
    epoch_load(a)
    if OPT.get('warm', 1):
        a(f'''s_cmp_eq_u32 s3, 1
              s_cbranch_scc0 L_p1_nowarm
              s_lshr_b32 s4, s76, 3
              s_lshl_b32 s4, s4, 5
              s_add_u32 s4, s4, s61
              s_lshl_b32 s4, s4, 11
              s_add_u32 s4, s4, {PFLAGS}
              v_lshlrev_b32 v1, 7, v0
              v_mov_b32 v2, 0
              s_mov_b64 exec, 0x3ff
              buffer_atomic_add v2, v1, s[16:19], s4 offen sc1
              s_mov_b64 exec, -1
              L_p1_nowarm:''')

    def rset(st):
        return 32 + 32 * st

    def reads(st, slot, ks):
        b = rset(st)
        L = []
        for i in range(4):
            L.append(f'ds_read_b128 {vr(b + 4 * i)}, v{4 + ks} offset:{slot * 32768 + i * 2048}')
            L.append(f'ds_read_b64_tr_b16 {vr(b + 16 + 4 * i, 2)}, v{6 + i} offset:{slot * 32768 + ks * 8192}')
            L.append(f'ds_read_b64_tr_b16 {vr(b + 18 + 4 * i, 2)}, v{6 + i} offset:{slot * 32768 + ks * 8192 + 1024}')
        return L

    def step(st, T, rd, extra=(), patch=False):
        b = rset(st)
        rd = list(rd)
        extra = list(extra)
        order = [(rt, ct) for ct in ((1, 2, 3, 0) if patch else range(4)) for rt in range(4)]
        for n, (rt, ct) in enumerate(order):
            acc = vr(128 + 16 * rt + 4 * ct)
            x, w = vr(b + 4 * rt), vr(b + 16 + 4 * ct)
            a(f'v_mfma_f32_16x16x32_bf16 {acc}, {w if T else x}, {x if T else w}, {acc}')
            for _ in range(2):
                if rd:
                    a(rd.pop(0))
            if patch and n < 4:
                a(f'v_cndmask_b32 v{b + 16 + n}, v{b + 16 + n}, v14, s[50:51]')
            if not rd and n >= 7 and extra:
                a(extra.pop(0))
        a('s_waitcnt lgkmcnt(0)')

    def mfma(st, T, rt, ct):
        b = rset(st)
        acc = vr(128 + 16 * rt + 4 * ct)
        x, w = vr(b + 4 * rt), vr(b + 16 + 4 * ct)
        a(f'v_mfma_f32_16x16x32_bf16 {acc}, {w if T else x}, {x if T else w}, {acc}')

    def epi(ct, pk):
        L = []
        for rp in range(2):
            d = 192 + 4 * (2 * ct + rp)
            for u in range(2):
                src = 128 + 16 * (2 * rp + u) + 4 * ct
                if pk:
                    L += [f'v_pk_mul_f32 {vr(src + i, 2)}, {vr(src + i, 2)}, s[52:53]' for i in (0, 2)]
                else:
                    L += [f'v_mul_f32 v{src + i}, s52, v{src + i}' for i in range(4)]
            for i in range(2):
                for u in range(2):
                    src = 128 + 16 * (2 * rp + u) + 4 * ct
                    L.append(f'v_cvt_pk_bf16_f32 v{d + 2 * u + i}, v{src + 2 * i}, v{src + 2 * i + 1}')
            L += [f'v_permlane16_swap_b32 v{d}, v{d + 2}',
                  f's_nop 0\nv_permlane16_swap_b32 v{d + 1}, v{d + 3}',
                  f'buffer_store_dwordx4 {vr(d)}, v{12 + rp}, s[16:19], s73 offen sc1' + ('\ns_add_u32 s73, s73, s74' if rp and ct < 3 else '')]
        return L

    def loop(T, tag):
        stamp(a, 2)
        a('s_barrier')
        stamp(a, 17)
        for r in reads(0, 0, 0):
            a(r)
        a(f'''s_waitcnt lgkmcnt(0)
              .p2align 3
              L_p1_loop{tag}:''')
        P = tag == 'A'
        step(0, T, reads(1, 0, 1), [], P)
        a('s_barrier')
        step(1, T, reads(0, 1, 0), [] if P else ['s_sub_u32 s70, s70, 1'], P)
        if not P:
            a(f's_cbranch_scc1 L_p1_last{tag}')
        step(0, T, reads(1, 1, 1), [f'v_xor_b32 v{r}, 0x10000, v{r}' for r in range(4, 10)], P)
        a('s_barrier')
        step(1, T, reads(0, 0, 0), ['s_sub_u32 s70, s70, 1'] if P else [], P)
        if P:
            a('s_cbranch_scc0 L_p1_loopA')
            stamp(a, 3)
            return
        a(f's_branch L_p1_loop{tag}')
        a(f'L_p1_last{tag}:')
        rd = reads(1, 1, 1)
        for ct in range(2):
            for rt in range(4):
                mfma(0, T, rt, ct)
                for _ in range(3):
                    if rd:
                        a(rd.pop(0))
        a('''s_waitcnt lgkmcnt(0)
             s_barrier''')
        seq = [(1, 0), (1, 1), (0, 2), (1, 2), (0, 3), (1, 3)]
        pend, ready = [], {1: 0, 2: 1, 4: 2}
        PER = OPT.get('eper', 2)
        for k, (st, ct) in enumerate(seq):
            for rt in range(4):
                mfma(st, T, rt, ct)
                if rt == 1 and k in ready:
                    if not pend:
                        a('s_nop 3')
                    pend += epi(ready[k], bool(OPT.get('epk')))
                for _ in range(PER):
                    if pend:
                        a(pend.pop(0))
        stamp(a, 3)
        n = len(pend)
        for x in pend:
            a(x)
        if n < 8:
            a(f's_nop {7 - n}')
        for x in epi(3, True):
            a(x)
        if not OPT.get('nogate'):
            a('s_barrier')

    attn_setup(a)
    a('''s_cmp_eq_u32 s62, 3
         s_cbranch_scc1 L_p1_A''')
    a(f'''s_cmp_eq_u32 s62, 2
          s_cselect_b32 s52, {f2u(2.0 ** VLOG)}, 1.0
          s_cselect_b32 s73, 1024, 0
          s_cselect_b32 s7, 12, 0
          s_add_u32 s73, s73, {KV}
          s_cmp_eq_u32 s62, 0
          s_cselect_b32 s52, {f2u(CSCALE)}, s52
          s_cselect_b32 s71, 16, 17
          s_cselect_b32 s72, 10, 11
          s_cselect_b32 s73, {QF}, s73
          s_mov_b32 s53, s52
          s_lshl_b32 s4, s64, 3
          s_lshl_b32 s5, s69, 2
          s_add_u32 s4, s4, s5             ; head0
          s_lshl_b32 s4, s4, s71
          s_lshl_b32 s5, s63, 2
          s_lshl_b32 s6, s68, 1
          s_add_u32 s5, s5, s6             ; tile0
          s_lshl_b32 s5, s5, s72
          s_add_u32 s73, s73, s4
          s_add_u32 s73, s73, s5
          s_lshl_b32 s74, 1, s71
          s_lshl_b32 s75, 1, s72
          v_lshrrev_b32 v1, 1, v0
          v_xor_b32 v1, v1, v0
          v_and_b32 v1, 4, v1
          v_mul_u32_u24 v1, 3, v1
          v_and_b32 v1, s7, v1
          v_xor_b32 v1, v1, v0
          v_lshlrev_b32 v12, 4, v1
          v_add_u32 v13, s75, v12
          s_mov_b32 s70, 3''')
    a(f'''s_and_b32 s4, s63, 7
          s_cmp_ge_u32 s4, {NB1}
          s_cselect_b32 s12, s62, 0
          s_mov_b32 s13, 0
          s_cmp_lg_u32 s12, 0
          s_cselect_b32 s4, 2.0, 0
          s_mov_b32 s75, s73
          v_mov_b32 v224, v12
          v_mov_b32 v225, v13
          v_or_b32 v12, s4, v12
          v_or_b32 v13, s4, v13''')
    a(f'''s_setprio {OPT.get('cprio', 1)}
          s_cmp_eq_u32 s62, 2
          s_cbranch_scc1 L_p1_N''')
    loop(True, 'T')
    a('''s_branch L_p1_cdone
         L_p1_N:''')
    loop(False, 'N')
    a('''s_branch L_p1_cdone
         L_p1_A:''')
    a(f'''v_lshrrev_b32 v1, 2, v0
          v_and_b32 v2, 3, v0
          v_lshlrev_b32 v3, 4, v2
          v_lshl_add_u32 v15, v1, 10, v3
          v_lshrrev_b32 v3, 4, v0
          v_bfe_u32 v10, v0, 2, 2
          v_lshl_add_u32 v3, v3, 3, v10
          v_lshlrev_b32 v3, 6, v3
          v_lshl_add_u32 v3, v2, 3, v3
          s_lshl_b32 s71, s3, 11
          s_add_u32 s71, s71, {QST + 0x2000}
          v_add_u32 v20, s71, v3
          s_lshl_b32 s6, s64, 2
          s_add_u32 s6, s6, s3
          s_lshl_b32 s4, s63, 15
          s_lshl_b32 s5, s6, 6
          s_add_u32 s72, s4, s5
          s_mov_b32 m0, s71
          s_add_u32 s73, s72, 0x3c00
          buffer_load_dwordx4 v15, s[32:35], s72 offen lds
          buffer_load_dwordx4 v15, s[32:35], s73 offen offset:1024 lds
          s_lshl_b32 s6, s6, 15
          s_lshl_b32 s70, s63, 10
          s_add_u32 s70, s70, s6
          s_add_u32 s92, s70, {WOF}        ; destination
          s_lshl_b32 s4, s64, 1
          s_add_u32 s4, s4, s69
          s_cmp_eq_u32 s4, 4
          s_cselect_b32 s50, 0x10001, 0
          s_mov_b32 s51, s50
          v_mov_b32 v14, 0xbf803f80
          s_mov_b32 s70, 3''')
    loop(False, 'A')
    a(f'''s_waitcnt vmcnt(0)
          ds_read_b64_tr_b16 v[208:209], v20
          ds_read_b64_tr_b16 v[210:211], v20 offset:256
          ds_read_b64_tr_b16 v[212:213], v20 offset:32
          ds_read_b64_tr_b16 v[214:215], v20 offset:288
          s_mov_b32 s12, 0
          s_mov_b32 s13, 1
          s_waitcnt lgkmcnt(0)''')
    a(f'''s_cmp_lt_u32 s64, 2
          s_cselect_b32 s70, 1.0, -1.0
          v_mov_b32 v10, s70
          v_mov_b32 v11, s70
          s_lshl_b32 s4, s64, 1
          s_add_u32 s4, s4, s69
          s_cmp_eq_u32 s4, 4
          s_cselect_b32 s5, 0x10001, 0
          s_mov_b32 vcc_lo, s5
          s_mov_b32 vcc_hi, s5
          v_mov_b32 v3, 1.0
          v_cndmask_b32 v10, v10, v3, vcc
          s_lshl_b32 s5, s63, 1
          s_add_u32 s5, s5, s68
          s_cmp_eq_u32 s5, 0
          s_cbranch_scc0 L_p1_noR
          s_lshl_b32 s6, s4, 8
          s_add_u32 s6, s6, {RR}
          s_mov_b64 exec, 0xffff
          v_lshl_add_u32 v224, v0, 2, s6''')
    for ct in range(4):
        a(f'''v_fma_f32 v{216 + ct}, v{10 if ct == 0 else 11}, v{176 + 4 * ct}, v{160 + 4 * ct}
              v_mov_b32 v{160 + 4 * ct}, 0
              v_mov_b32 v{176 + 4 * ct}, 0''')
    a(f'''s_mov_b64 exec, -1
          L_p1_noR:
          s_lshr_b32 s6, s64, 1
          s_lshl_b32 s6, s6, 19
          s_and_b32 s4, s4, 3
          s_lshl_b32 s4, s4, 16
          s_lshl_b32 s5, s5, 10
          s_add_u32 s73, s4, s5
          s_add_u32 s73, s73, s6
          s_add_u32 s73, s73, {EO}
          s_add_u32 s74, s73, 0x40000''')
    for cp in range(2):
        for u in range(2):
            ct = 2 * cp + u
            sg = 10 if ct == 0 else 11
            for i in range(4):
                a0, a1, a2, a3 = (128 + 16 * k + 4 * ct + i for k in range(4))
                a(f'''v_fmac_f32 v{a0}, v{sg}, v{a3}
                      v_fmac_f32 v{a1}, v{sg}, v{a2}''')
            for i in range(4):
                a0, a1, a2, a3 = (128 + 16 * k + 4 * ct + i for k in range(4))
                a(f'''v_fma_f32 v{a2}, v{sg}, v{a1}, v{a0}
                      v_fma_f32 v{a3}, -v{sg}, v{a1}, v{a0}''')
        for par in range(2):
            d = 192 + 4 * (2 * cp + par)
            for u in range(2):
                src = 160 + 16 * par + 4 * (2 * cp + u)
                for i in range(2):
                    a(f'v_cvt_pk_bf16_f32 v{d + 2 * u + i}, v{src + 2 * i}, v{src + 2 * i + 1}')
            a(f'''s_nop 1
                  v_permlane16_swap_b32 v{d}, v{d + 2}
                  v_permlane16_swap_b32 v{d + 1}, v{d + 3}
                  ''')
    a('L_p1_cdone:')


def attn_setup(a):
    srds_attn(a)
    a(f'''s_lshl_b32 s4, s79, 16
          v_add_u32 v{KA}, s4, v{L16}
          v_add_u32 v2, 4, v{LN}
          v_and_b32 v2, 8, v2
          v_lshrrev_b32 v2, 1, v2
          v_and_b32 v1, 11, v{LN}
          v_min_u32 v1, 1, v1
          v_add_u32 v2, v1, v2
          v_and_b32 v1, 16, v{LN}
          v_cmp_ne_u32 vcc, 0, v1
          s_mov_b32 s48, 0xffff
          s_mov_b32 s49, 0xffff
          v_lshlrev_b32 v2, 4, v2
          v_add_u32 v2, {ONES}, v2
          v_cndmask_b32 v{VA}, v{KA}, v2, vcc
          v_mov_b32 v2, 0x2000
          v_cndmask_b32 v{VINC}, v2, 0, vcc
          v_mov_b32 v{IDX}, 0xdddddddd
          v_and_b32 v1, 31, v{LN}
          s_and_b32 s4, s76, 15
          s_lshl_b32 s4, s4, 6
          s_lshr_b32 s83, s76, 4           ; p
          s_add_u32 s84, s4, s83
          v_lshl_add_u32 v1, v1, 1, s84
          v_lshlrev_b32 v1, 12, v1
          v_lshrrev_b32 v2, 5, v{LN}
          v_lshl_add_u32 v1, v2, 4, v1
          s_lshl_b32 s4, s3, 7
          v_add_u32 v{WSA}, s4, v1
          s_lshl_b32 s85, s83, 18
          s_lshl_b32 s4, s77, 15
          s_add_u32 s85, s85, s4
          s_lshl_b32 s4, s3, 12
          s_add_u32 s85, s85, s4
          s_add_u32 s85, s85, {EO}         ; E fragments
          s_add_u32 s86, s85, 0x80000      ; O fragments
          s_lshl_b32 s87, s81, 3
          s_add_u32 s87, s87, s3
          s_lshl_b32 s87, s87, 14
          s_add_u32 s87, s87, {WOF}
          s_lshl_b32 s88, s76, 17
          s_add_u32 s88, s88, {KV}
          s_lshl_b32 s4, s79, 16
          s_add_u32 s89, s88, s4
          s_lshl_b32 s91, s78, 11
          s_add_u32 s90, s89, s91
          s_add_u32 s5, s91, {QST}
          v_add_u32 v{T0}, s5, v{L16}
          s_add_u32 s91, s91, s4
          s_lshl_b32 s4, s64, 6
          s_lshl_b32 s5, s62, 4
          s_add_u32 s4, s4, s5
          s_add_u32 s4, s4, s63
          s_lshl_b32 s4, s4, 4
          s_add_u32 s93, s4, {FLAGS}
          s_lshr_b32 s4, s76, 3
          s_lshl_b32 s4, s4, 5
          s_add_u32 s4, s4, s61
          s_lshl_b32 s4, s4, 11
          s_add_u32 s55, s4, {PFLAGS}
          s_and_b32 s4, s63, 7
          s_lshl_b32 s5, s4, 7
          s_and_b32 s6, s63, 8
          s_add_u32 s5, s5, s6
          s_lshl_b32 s6, s62, 2
          s_add_u32 s5, s5, s6
          s_lshl_b32 s6, s64, 16
          s_add_u32 s5, s5, s6
          s_add_u32 s5, s5, {PFLAGS - 4}
          s_cmp_ge_u32 s4, {NB1}
          s_cselect_b32 s4, s62, 0
          s_sub_u32 s4, s4, 1
          s_cmp_lt_u32 s4, 2
          s_cselect_b32 s54, s5, 0''')


def zero_o(a):
    for i in range(16):
        a(f'v_mov_b64 {vr(OA + 2 * i, 2)}, 0')


def kv_dma(c):
    return [f's_add_u32 s4, s90, {c * 8192}',
            f's_add_u32 m0, s91, {c * 8192}',
            's_nop 0',
            f'buffer_load_dwordx4 v{L16}, s[16:19], s4 offen sc1 lds',
            f'buffer_load_dwordx4 v{L16}, s[16:19], s4 offen offset:1024 sc1 lds']


def publish1(a):
    a(f'''s_cmp_eq_u32 s62, 3
          s_cbranch_scc1 L_p1_join
          s_and_b32 s4, s63, 7
          s_cmp_eq_u32 s63, 8
          s_cselect_b32 s4, 9, s4
          s_lshl_b32 s4, s4, 7
          s_and_b32 s5, s63, 8
          s_lshl_b32 s6, s62, 2
          s_add_u32 s5, s5, s6
          s_add_u32 s4, s4, s5
          s_sub_u32 s4, s4, 4
          s_and_b32 s5, s63, 1
          s_lshl_b32 s5, s5, 2
          s_lshr_b32 s6, s63, 1
          s_lshl_b32 s6, s6, 13
          s_add_u32 s5, s5, s6
          s_add_u32 s5, s5, 1024
          s_cmp_eq_u32 s62, 0
          s_cselect_b32 s4, s5, s4
          s_cselect_b32 s6, 15, -1
          s_lshl_b32 s5, s64, 16
          s_add_u32 s4, s4, s5
          s_add_u32 s4, s4, {PFLAGS}
          s_cmp_lg_u32 s12, 0
          s_cbranch_scc1 L_p1_join
          v_lshlrev_b32 v1, 11, v{LN}
          v_mov_b32 v2, s58
          v_mov_b32 v3, {CNT}
          v_mov_b32 v4, 1
          s_mov_b64 exec, 1
          s_waitcnt vmcnt(0)
          ds_add_rtn_u32 v4, v3, v4
          s_waitcnt lgkmcnt(0)
          v_readfirstlane_b32 s5, v4
          s_mov_b32 exec_lo, s6
          s_cmp_eq_u32 s5, 3
          s_cbranch_scc0 L_s1_noflag
          buffer_store_dword v2, v1, s[16:19], s4 offen sc1
          L_s1_noflag:
          s_mov_b64 exec, -1''')


def a2mm(D, x, y, ks):
    return f'v_mfma_f32_32x32x16_bf16 {vr(D, 16)}, {vr(x + 4 * ks)}, {vr(y + 4 * ks)}, {vr(D, 16) if ks else 0}'


CC, SS, X3, X4 = NMA, NMB, SA, SB
MG = 0x8000


def unit(a, tau, b, side, last=False):
    X, Y = (SB, SA) if b else (SA, SB)
    OX, OY = (OB, OA) if b else (OA, OB)
    QY, NY = (QA, NMA) if b else (QB, NMB)
    vo = (tau & 3) * 2048
    side = list(side)
    e = lambda i: a(f'v_exp_f32 v{X + i}, v{X + i}')
    u = 2 * tau + b + OPT.get('po', 0)
    pr = OPT.get('pr', 1)
    p0, p1 = {0: (0, 1), 1: (3 - (u & 3), None), 2: (3 - ((2 * u) & 3), 3 - ((2 * u + 1) & 3)), 3: (None if b else 3 - (tau & 3), None),
              4: (None, None), 5: (2 - 2 * (u & 1), 3 - 2 * (u & 1)), 6: (None, 3 - (u & 3)), 7: (2 - 2 * (tau & 1), 3 - 2 * (tau & 1)),
              8: (2 - (u % 3), 3 - (u % 3)), 9: (1, 0)}[pr]
    if p0 is not None:
        a(f's_setprio {p0}')
    e(0); e(1)
    if b:
        a('s_waitcnt lgkmcnt(0)')
    if b or tau > 0:
        a(f'v_smfmac_f32_32x32x32_bf16 {vr(OY, 16)}, {vr(V1)}, {vr(Y + 8, 8)}, v{IDX}')
    XM = OPT.get('xm') and tau > 0
    if not b and XM:
        a(f'''s_mov_b64 exec, s[48:49]
              ds_read_b128 {vr(V1)}, v{KA} offset:{tau * 2048 + 1280}
              s_mov_b64 exec, -1''')
    elif not b:
        a(f'ds_read_b128 {vr(V1)}, v{VA} offset:{vo + 1280}')
    e(2); e(3); e(4)
    if not (b and last):
        a(f'v_mfma_f32_32x32x16_bf16 {vr(Y, 16)}, {vr(KF)}, {vr(QY)}, {vr(NY, 16)}')
    else:
        a(a2mm(CC, A2C, A2E, 2))
    if not b and not last:
        a(f'ds_read_b128 {vr(KF)}, v{KA} offset:{(tau + 1) * 2048}')
    if p1 is not None:
        a(f's_setprio {p1}')
    for i in range(5, 10):
        e(i)
        if last and i == 7:
            a(a2mm(CC, A2C, A2E, 3 if b else 0))
    if not b:
        a(f's_waitcnt lgkmcnt({1 if last else 2})')
    a(f'v_smfmac_f32_32x32x32_bf16 {vr(OX, 16)}, {vr(V0)}, {vr(X, 8)}, v{IDX}')
    if b and not last and XM:
        a(f'''s_mov_b64 exec, s[48:49]
              ds_read_b128 {vr(V0)}, v{KA} offset:{tau * 2048 + 2048 + 1024}
              s_mov_b64 exec, -1''')
    elif b and not last:
        a(f'ds_read_b128 {vr(V0)}, v{VA} offset:{vo + 2048 + 1024}')
        if (tau & 3) == 3:
            a(f'v_add_u32 v{VA}, v{VINC}, v{VA}')
    for i in range(10, 16):
        e(i)
        if i == 12:
            for s in side:
                a(s)


def attention(a):
    stamp(a, 4)
    a('''s_mov_b64 s[14:15], s[54:55]
         s_barrier''')
    stamp(a, 6)
    a(f'''ds_read_b128 {vr(QA)}, v{T0}
          ds_read_b128 {vr(V1)}, v{L16}
          ds_read_b128 {vr(QB)}, v{T0} offset:1024
          ds_read_b128 {vr(KF)}, v{KA}
          ds_read_b128 {vr(V0)}, v{VA} offset:1024''')
    for s_ in kv_dma(1):
        a(s_)
    a(f'''s_waitcnt lgkmcnt(3)
          v_mfma_f32_32x32x16_bf16 {vr(SA, 16)}, {vr(V1)}, {vr(QA)}, 0
          s_waitcnt lgkmcnt(2)
          v_mfma_f32_32x32x16_bf16 {vr(SB, 16)}, {vr(V1)}, {vr(QB)}, 0
          s_nop 0''')
    for s_ in kv_dma(2):
        a(s_)
    a('s_nop 3')
    for S, NM, t in ((SA, NMA, T0), (SB, NMB, T1)):
        a(f'v_max3_f32 v{t}, v{S}, v{S + 1}, v{S + 2}')
        for i in range(3, 15, 2):
            a(f'v_max3_f32 v{t}, v{t}, v{S + i}, v{S + i + 1}')
        a(f'''v_max_f32 v{t}, v{t}, v{S + 15}
              v_mov_b32 v{T2}, v{t}
              s_nop 1
              v_permlane32_swap_b32 v{t}, v{T2}
              v_max_f32 v{t}, v{t}, v{T2}
              v_sub_f32 v{NM}, {f2u(-OFFS)}, v{t}
              v_sub_f32 v{NM + 1}, {f2u(-OFFS)}, v{t}''')
        for i in range(2, 16, 2):
            a(f'v_mov_b64 {vr(NM + i, 2)}, {vr(NM, 2)}')
        if S == SA:
            a(f'''s_waitcnt lgkmcnt(0)
                  s_nop 0
                  v_mfma_f32_32x32x16_bf16 {vr(SA, 16)}, {vr(KF)}, {vr(QA)}, {vr(NMA, 16)}''')
    stamp(a, 7)

    side = {}

    def put(tau, b, ins):
        side.setdefault((tau, b), []).extend(ins)

    assert NB1 == 4
    putu = lambda u, ins: put(u >> 1, u & 1, ins)
    putu(0, kv_dma(3))
    kvs = [[f'buffer_store_dwordx4 {vr(192 + 4 * (2 * ct + rp))}, v{224 + rp}, s[16:19], s75 offen sc1' for rp in range(2)] +
           ['s_add_u32 s75, s75, s74'] for ct in range(4)]
    eo = lambda cp: [f'buffer_store_dwordx4 {vr(192 + 4 * (2 * cp + par))}, v{L16}, s[16:19], s{73 + par} offen sc1' for par in range(2)]
    rs = lambda k: [f'buffer_store_dword v{216 + ct}, v224, s[16:19], 0 offen offset:{ct * 64} sc1' for ct in (k, k + 1)]
    a1s = [eo(0) + ['s_add_u32 s73, s73, 0x8000', 's_add_u32 s74, s74, 0x8000'], eo(1),
           [f'buffer_store_dwordx4 {vr(208)}, v{L16}, s[16:19], s92 offen sc1', 's_add_u32 s92, s92, 0x4000',
            f'buffer_store_dwordx4 {vr(212)}, v{L16}, s[16:19], s92 offen sc1'], rs(0), rs(2)]
    cold = []
    UP, UF, UA = OPT.get('up', 10), OPT.get('uf', 19), OPT.get('ua', 8)
    assert UP % 2 == 0 and UF % 2 == 1
    for k in range(5):
        if k < 4:
            putu(2 + k, ['s_cmp_eq_u32 s12, 0', f's_cbranch_scc1 L_at_nokv{k}'] + kvs[k] + [f'L_at_nokv{k}:'])
        putu(UA + k, ['s_cmp_eq_u32 s13, 0', f's_cbranch_scc0 L_at_a1s{k}', f'L_at_a1r{k}:'])
        cold += [f'L_at_a1s{k}:'] + a1s[k] + [f's_branch L_at_a1r{k}']
    count_in = lambda off: [f'v_mov_b32 v{T0}, {CNT + off}', f'v_mov_b32 v{T1}, 1', 's_mov_b64 exec, 1',
                            f'ds_add_rtn_u32 v{T1}, v{T0}, v{T1}', 's_mov_b64 exec, -1']
    putu(UP, ['s_cmp_eq_u32 s12, 0', 's_cbranch_scc0 L_at_cnt1', 'L_at_cnt1r:'])
    cold += ['L_at_cnt1:', 's_waitcnt vmcnt(0)'] + count_in(0) + ['s_branch L_at_cnt1r']
    putu(UP + 1, ['s_cmp_eq_u32 s12, 0', 's_cbranch_scc0 L_at_pub1', 'L_at_pub1r:'])
    cold += ['L_at_pub1:', f'v_readfirstlane_b32 s4, v{T1}', f'v_mov_b32 v{T0}, s58', 's_cmp_eq_u32 s4, 3', 's_cbranch_scc0 L_at_pub1r',
             f'v_lshlrev_b32 v{T1}, 11, v{LN}', 's_mov_b32 exec_hi, 0',
             f'buffer_store_dword v{T0}, v{T1}, s[16:19], s14 offen sc1', 's_mov_b32 exec_hi, -1', 's_branch L_at_pub1r']
    putu(UP + 2, [f'v_mov_b64 {vr(228, 2)}, -1', f'v_mov_b64 {vr(230, 2)}, -1',
                  f'buffer_store_dwordx4 {vr(228)}, v{L16}, s[16:19], s82 offen sc1'])
    f1 = f'buffer_load_dword v{T0}, v{T2}, s[16:19], s15 offen offset:{128 * NB1} sc1'
    putu(UF - 1, [f'v_bfe_u32 v{T0}, v{LN}, 2, 2', f'v_and_b32 v{T2}, 3, v{LN}', f'v_lshlrev_b32 v{T2}, 2, v{T2}', f'v_lshl_add_u32 v{T2}, v{T0}, 7, v{T2}'])
    putu(UF, [f1])
    putu(UF + 3, ['s_waitcnt vmcnt(0)', f'v_cmp_ne_u32 vcc, s58, v{T0}', 's_cbranch_vccnz L_at_f1retry', 'L_at_f1ok:'] + count_in(4))
    putu(UF + 4, [f'v_readfirstlane_b32 s4, v{T1}', 's_nop 0', 's_cmp_eq_u32 s4, 7', 's_cbranch_scc1 L_at_pub2', 'L_at_pub2r:'])
    cold += ['L_at_pub2:', f'v_mov_b32 v{T0}, s58', 's_mov_b64 exec, 1',
             f'buffer_store_dword v{T0}, v{L16}, s[16:19], s93 offen sc1', 's_mov_b64 exec, -1', 's_branch L_at_pub2r']
    for c in range(4, 8):
        putu(UF + c - 1, kv_dma(c))
    flag_loads = [f'buffer_load_dword v{A2E + i}, v{L16}, s[16:19], s92 offen offset:{i * 1024} sc1' for i in range(4)]
    putu(35, [f's_mov_b32 s92, {FLAGS}'] + flag_loads[:2])
    putu(37, flag_loads[2:])
    putu(43, ['s_waitcnt vmcnt(3)',
              f'v_cmp_ne_u32 vcc, s58, v{A2E}', f'v_cmp_ne_u32 s[4:5], s58, v{A2E + 1}',
              f'v_cmp_ne_u32 s[6:7], s58, v{A2E + 2}', f'v_cmp_ne_u32 s[62:63], s58, v{A2E + 3}',
              's_or_b64 vcc, vcc, s[4:5]', 's_or_b64 s[6:7], s[6:7], s[62:63]', 's_or_b64 vcc, vcc, s[6:7]',
              's_cbranch_vccnz L_at_fretry', 'L_at_fok:', 's_or_b32 s4, s2, s3', 's_cbranch_scc0 L_at_epoch', 'L_at_epochr:'])
    cold += ['L_at_epoch:', f's_mov_b32 s4, {EPOCH}', 's_mov_b64 exec, 1', f'buffer_store_dword v{A2E}, v{L16}, s[16:19], s4 offen sc1',
             's_mov_b64 exec, -1', 's_branch L_at_epochr']
    flag_loads = (flag_loads, f1, cold)
    loads = []
    for m in range(2):
        for ks in range(4):
            loads.append(f'buffer_load_dwordx4 {vr(A2C + 16 * m + 4 * ks)}, v{WSA}, s[{24 + 4 * m}:{27 + 4 * m}], 0 offen offset:{ks * 32}')
    for m in range(2):
        for ks in range(4):
            loads.append(f'buffer_load_dwordx4 {vr(A2E + 16 * m + 4 * ks)}, v{L16}, s[16:19], s{85 + m} offen offset:{ks * 1024} sc1')
    for ks in range(16):
        pre = 's_add_u32 s87, s87, 0x1000\n' if ks and ks % 4 == 0 else ''
        loads.append(pre + f'buffer_load_dwordx4 {vr(WO + 4 * ks)}, v{L16}, s[16:19], s87 offen offset:{(ks & 3) * 1024} sc1')
    for k, uu in enumerate((UP + 4, 32, 34, 36, UF + 7, 38, 40, 42)):
        putu(uu, [loads[k]])
    u = 44
    for k in range(8, 32, 2):
        putu(u, loads[k:k + 2]); u += 1
    put(u >> 1, u & 1, [f'v_and_b32 v{T0}, 31, v{LN}', f'v_lshlrev_b32 v{T0}, 2, v{T0}', f'v_mov_b32 v{T1}, 0',
                        's_lshl_b32 s4, s77, 7', 's_lshl_b32 s5, s83, 10', 's_add_u32 s4, s4, s5',
                        f's_add_u32 s4, s4, {RR}', f's_mov_b32 s5, {RR + 1024}',
                        f'buffer_load_dword v{T0}, v{T0}, s[16:19], s4 offen sc1',
                        f'buffer_load_dword v{T1}, v{T1}, s[16:19], s5 offen sc1'])
    assert u < 60
    put(30, 0, ['s_waitcnt vmcnt(0)', 's_cmp_eq_u32 s76, 0', 's_cbranch_scc0 L_a2_nopatch', 's_mov_b32 exec_lo, 1', 's_mov_b32 exec_hi, 1'] +
        [f'v_mov_b32 v{A2S + i}, 0xbf803f80' for i in range(16)] + ['s_mov_b64 exec, -1', 'L_a2_nopatch:'])
    put(30, 1, ['s_mul_i32 s4, s3, 2304', f's_add_u32 m0, s4, {MG}', 's_xor_b32 s5, s3, 4', 's_mul_i32 s5, s5, 2304',
                f's_add_u32 s70, s5, {MG}', f"s_mov_b32 s71, {0 if OPT.get('forcefb') else f2u(2.0 ** 120)}"])
    put(31, 0, [a2mm(CC, A2C, A2E, 1)])
    put(31, 1, [a2mm(SS, A2S, A2O, 0), 's_cmp_eq_u32 s79, 0'])
    a('.p2align 3')
    for tau in range(32):
        if tau == 3:
            a('''s_waitcnt vmcnt(8)
                 s_cmp_lg_u32 s12, 0
                 s_cbranch_scc1 L_at_w3
                 s_waitcnt vmcnt(0)
                 L_at_w3:
                 s_barrier''')
            stamp(a, 8)
        if OPT.get('bar', 0) >> tau & 1:
            a('s_barrier')
        if tau == 15:
            a('s_waitcnt vmcnt(1)\ns_barrier')
            stamp(a, 9)
        if tau in (8, 11, 19, 22, 26):
            stamp(a, {8: 18, 11: 5, 19: 19, 22: 20, 26: 21}[tau])
        for b in range(2):
            unit(a, tau, b, side.get((tau, b), []), last=(tau == 31))
    a(f'''s_setprio 0
          s_cbranch_scc1 L_mg_k0''')
    R = KF
    for kh in (1, 0):
        snd, kp = (OA, OB) if kh else (OB, OA)
        if kh == 0:
            a('L_mg_k0:')
        a(f'v_smfmac_f32_32x32x32_bf16 {vr(OB, 16)}, {vr(V1)}, {vr(SB + 8, 8)}, v{IDX}')
        stamp(a, 10)
        if kh == 0:
            a('s_nop 11')
        for i in range(9):
            a(f'ds_write_addtid_b32 v{snd + i} offset:{MG + i * 256}')
        a(a2mm(SS, A2S, A2O, 1))
        a('''s_mov_b32 m0, s70
             s_waitcnt lgkmcnt(0)
             s_barrier''')
        for i in (8, 0, 1, 2, 3, 4, 5, 6, 7):
            a(f'ds_read_addtid_b32 v{R + i} offset:{MG + i * 256}')
        a(a2mm(SS, A2S, A2O, 2))
        a(f'''s_waitcnt lgkmcnt(8)
              v_add_f32 v{R + 8}, v{R + 8}, v{kp + 8}
              v_rcp_f32 v{R + 10}, v{R + 8}''')
        for i in range(4):
            a(f'''s_waitcnt lgkmcnt({6 - 2 * i})
                  v_pk_add_f32 {vr(R + 2 * i, 2)}, {vr(R + 2 * i, 2)}, {vr(kp + 2 * i, 2)}''')
        if kh:
            a('s_branch L_mg_j')
    a('L_mg_j:')
    for i in range(4):
        a(f'v_pk_mul_f32 {vr(R + 2 * i, 2)}, {vr(R + 2 * i, 2)}, {vr(R + 10, 2)} op_sel_hi:[1,0]')
    for i in range(4):
        a(f'v_cvt_pk_bf16_f32 v{OB + i}, v{R + 2 * i}, v{R + 2 * i + 1}')
    for i in range(4):
        a(f'v_dot2c_f32_bf16 v{R + 8}, v{OB + i}, v{OB + i}')
    a(a2mm(SS, A2S, A2O, 3))
    a(f'''s_nop 1
          v_cmp_ngt_f32 vcc, s71, v{R + 8}
          s_cbranch_vccnz L_fallback
          L_at_final:
          buffer_store_dwordx4 {vr(OB)}, v{L16}, s[16:19], s82 offen sc1''')
    stamp(a, 11)
    return flag_loads


def cold_paths(a, flag_loads):
    flag_loads, f1, cold = flag_loads
    for x in cold:
        a(x)
    a(f'''L_at_f1retry:
          s_mov_b32 s5, {SPIN}
          L_at_f1retry2:
          {f1}
          s_waitcnt vmcnt(0)
          v_cmp_ne_u32 vcc, s58, v{T0}
          s_cbranch_vccz L_at_f1ok
          s_sub_u32 s5, s5, 1
          s_cbranch_scc0 L_at_f1retry2
          s_branch L_at_f1ok''')
    a(f'''L_at_fretry:
          s_mov_b32 s93, {SPIN}
          L_at_fretry2:''')
    for s in flag_loads:
        a(s)
    a(f'''s_waitcnt vmcnt(0)
          v_cmp_ne_u32 vcc, s58, v{A2E}
          v_cmp_ne_u32 s[4:5], s58, v{A2E + 1}
          v_cmp_ne_u32 s[6:7], s58, v{A2E + 2}
          v_cmp_ne_u32 s[62:63], s58, v{A2E + 3}
          s_or_b64 vcc, vcc, s[4:5]
          s_or_b64 s[6:7], s[6:7], s[62:63]
          s_or_b64 vcc, vcc, s[6:7]
          s_cbranch_vccz L_at_fok
          s_sub_u32 s93, s93, 1
          s_cbranch_scc0 L_at_fretry2
          s_branch L_at_fok''')
    a(f'''L_fallback:
          s_cmp_eq_u32 s79, 0
          s_cbranch_scc1 L_fb_q
          v_mov_b64 {vr(QA, 2)}, {vr(QB, 2)}
          v_mov_b64 {vr(QA + 2, 2)}, {vr(QB + 2, 2)}
          L_fb_q:
          v_mov_b32 v{SB}, 0xff800000
          s_mov_b32 s4, s88
          s_mov_b32 s5, 64
          L_fb_max:
          buffer_load_dwordx4 {vr(KF)}, v{L16}, s[16:19], s4 offen sc1
          s_waitcnt vmcnt(0)
          v_mfma_f32_32x32x16_bf16 {vr(SA, 16)}, {vr(KF)}, {vr(QA)}, 0
          s_nop 11''')
    for i in range(0, 16, 2):
        a(f'v_max3_f32 v{SB}, v{SB}, v{SA + i}, v{SA + i + 1}')
    a(f'''s_add_u32 s4, s4, 2048
          s_sub_u32 s5, s5, 1
          s_cmp_lg_u32 s5, 0
          s_cbranch_scc1 L_fb_max
          v_mov_b32 v{SB + 1}, v{SB}
          s_nop 1
          v_permlane32_swap_b32 v{SB}, v{SB + 1}
          v_max_f32 v{SB}, v{SB}, v{SB + 1}
          v_sub_f32 v{SB}, {f2u(-float(VLOG))}, v{SB}''')
    for i in range(1, 16):
        a(f'v_mov_b32 v{SB + i}, v{SB}')
    for i in range(16):
        a(f'v_mov_b32 v{OA + i}, 0')
    for i in range(8):
        a(f'v_mov_b32 v{V0 + i}, {ONEBF * 0x10001}')
    a(f'''s_mov_b32 s4, s88
          s_mov_b32 s5, 64
          s_mov_b32 s6, 0xffff
          s_mov_b32 s7, 0xffff
          L_fb_pv:
          buffer_load_dwordx4 {vr(KF)}, v{L16}, s[16:19], s4 offen sc1
          s_mov_b64 exec, s[6:7]
          buffer_load_dwordx4 {vr(V0)}, v{L16}, s[16:19], s4 offen offset:1024 sc1
          buffer_load_dwordx4 {vr(V1)}, v{L16}, s[16:19], s4 offen offset:1280 sc1
          s_mov_b64 exec, -1
          s_waitcnt vmcnt(0)
          v_mfma_f32_32x32x16_bf16 {vr(SA, 16)}, {vr(KF)}, {vr(QA)}, {vr(SB, 16)}
          s_nop 11''')
    for i in range(16):
        a(f'v_exp_f32 v{SA + i}, v{SA + i}')
    a(f'''s_nop 1
          v_smfmac_f32_32x32x32_bf16 {vr(OA, 16)}, {vr(V0)}, {vr(SA, 8)}, v{IDX}
          v_smfmac_f32_32x32x32_bf16 {vr(OA, 16)}, {vr(V1)}, {vr(SA + 8, 8)}, v{IDX}
          s_add_u32 s4, s4, 2048
          s_sub_u32 s5, s5, 1
          s_cmp_lg_u32 s5, 0
          s_cbranch_scc1 L_fb_pv
          s_nop 11
          v_rcp_f32 v{SB}, v{OA + 8}
          s_nop 0''')
    for i in range(8):
        a(f'v_mul_f32 v{OA + i}, v{SB}, v{OA + i}')
    for i in range(4):
        a(f'v_cvt_pk_bf16_f32 v{OB + i}, v{OA + 2 * i}, v{OA + 2 * i + 1}')
    for i in range(4):
        a(f'v_min_u32 v{OB + i}, -2, v{OB + i}')
    a('s_branch L_at_final')


def tail(a):
    OST, XP = 0x18000, 0x16000
    PA, XA3, XA4, SA0, CO, OSR, OUTA, VRA = 96, 97, 98, 100, 106, 109, 110, 111
    gather = [f'buffer_load_dwordx4 v{L16}, s[16:19], s70 offen offset:{i * 1024} sc1 lds' for i in range(4)]
    gp = OPT.get('gp', 3)
    a(f'''s_lshl_b32 s4, s3, 13
          v_add_u32 v64, s4, v{L16}
          s_mul_i32 s73, s76, s77
          s_lshl_b32 s4, s80, 15
          s_lshl_b32 s5, s3, 12
          s_add_u32 s70, s4, s5
          s_add_u32 s70, s70, {OF}
          s_add_u32 s5, s5, {OST}
          s_mov_b32 m0, s5
          v_add_u32 v{VRA}, s5, v{L16}''')
    calc = (f'''s_lshl_b32 s4, s3, 7
          s_add_u32 s4, s4, {XP}
          v_lshl_add_u32 v66, v{LN}, 2, s4
          v_lshrrev_b32 v67, 5, v{LN}
          v_and_b32 v71, 31, v{LN}
          s_lshl_b32 s6, s3, 9
          v_lshl_add_u32 v{PA}, v71, 4, s6
          v_lshl_add_u32 v{PA}, v67, 12, v{PA}   ; partial read address
          s_lshl_b32 s6, s3, 2
          v_lshl_add_u32 v73, v67, 1, s6         ; tl (even)
          v_lshlrev_b32 v{XA3}, 2, v73
          v_add_u32 v{XA3}, {XP}, v{XA3}
          v_lshlrev_b32 v{XA4}, 2, v71
          v_add_u32 v{XA4}, {XP + 1024}, v{XA4}
          s_lshl_b32 s4, s80, 5
          v_add_u32 v{OUTA}, s4, v71
          v_lshlrev_b32 v{OUTA}, 11, v{OUTA}
          v_lshl_add_u32 v{OUTA}, v67, 4, v{OUTA}   ; out offset
          s_lshl_b32 s4, s77, 5
          v_add_u32 v71, s4, v71           ; e
          v_lshl_add_u32 v73, v73, 1, s84  ; t0 ; t1 = t0 + 2
          v_cmp_eq_u32 s[74:75], 0, v73
          v_cmp_eq_u32 s[64:65], 0, v71
          v_sub_u32 v84, 0x800, v73
          v_mov_b32 v85, 0x400
          v_cndmask_b32 v85, v84, v85, s[74:75]   ; row2 of t0
          v_subrev_u32 v84, 2, v84                ; row2 of t1
          v_sub_u32 v86, 0x200, v71
          v_mov_b32 v87, 0x100
          v_cndmask_b32 v86, v86, v87, s[64:65]   ; col2
          v_lshlrev_b32 v87, 1, v71
          v_lshlrev_b32 v86, 1, v86
          v_lshl_add_u32 v{SA0}, v73, 11, v87
          v_lshl_add_u32 v{SA0 + 1}, v73, 11, v86
          v_lshl_add_u32 v{SA0 + 2}, v85, 11, v87
          v_lshl_add_u32 v{SA0 + 3}, v85, 11, v86
          v_lshl_add_u32 v{SA0 + 4}, v84, 11, v87
          v_lshl_add_u32 v{SA0 + 5}, v84, 11, v86
          s_cmp_eq_u32 s83, 0
          s_cselect_b64 vcc, -1, 0
          v_cndmask_b32 v{CO}, 0, v{T0}, vcc          ; cos correction
          v_cndmask_b32 v{CO + 1}, 0, v{T1}, vcc      ; column-256 correction
          v_cndmask_b32 v{CO + 2}, v{T0}, 0, vcc      ; sin correction
          s_or_b64 s[66:67], s[74:75], s[64:65]
          s_and_b64 s[68:69], s[74:75], s[64:65]
          s_mov_b32 s71, 4096
          v_lshrrev_b32 v65, 4, v{LN}      ; g
          v_and_b32 v88, 15, v{LN}
          v_lshlrev_b32 v88, 4, v88
          v_lshl_add_u32 v{OSR}, v65, 9, v88
          v_add_u32 v{OSR}, {OST}, v{OSR}  ; staging read address
          s_lshl_b32 s4, s81, 8
          s_lshl_b32 s5, s3, 5
          s_add_u32 s72, s4, s5
          s_add_u32 s72, s72, 1024
          s_mov_b32 s5, {SPIN}''').split('\n')
    per = (len(calc) + 6) // 7
    a('''s_cmp_eq_u32 s73, 0
         s_cbranch_scc1 L_a2_x''')
    for special in (0, 1):
        L = []
        mm = [a2mm(D, x, y, ks) for ks in range(4) for D, x, y in ((X3, A2O, A2C), (X4, A2S, A2E))] if special else []
        for q in range(8):
            if mm and q == 0:
                L.append(mm.pop(0))
            L.append(f'ds_write_b128 v64, {vr(CC + 4 * q)} offset:{q * 1024}')
            if mm:
                L.append(mm.pop(0))
            L += calc[q * per:(q + 1) * per]
        if special:
            xcode = ['L_a2_x:'] + L + ['s_mov_b32 exec_hi, 0', 's_nop 7', f'ds_write_b32 v66, v{X3}', f'ds_write_b32 v66, v{X4} offset:1024',
                                       's_mov_b32 exec_hi, -1', 's_branch L_a2_xr']
            assert len(calc) - 6 * per >= 2
        else:
            for x in L:
                a(x)
    a('''L_a2_xr:
         s_cmp_eq_u32 s73, 0''')
    a('s_waitcnt lgkmcnt(0)')
    if gp == 2:
        for g in gather:
            a(g)
    a('s_barrier')
    stamp(a, 12)
    for w in range(8):
        a(f'ds_read_b128 {vr(128 + 4 * w)}, v{PA} offset:{w * 8192}')
    if gp == 3:
        for g in gather:
            a(g)
    a('s_cbranch_scc0 L_a2_nox3')
    for w in range(8):
        a(f'''ds_read_b64 {vr(160 + 2 * w, 2)}, v{XA3} offset:{w * 128}
              ds_read_b32 v{176 + w}, v{XA4} offset:{w * 128}''')
    a('L_a2_nox3:')
    V = []
    for step in (4, 2, 1):
        for w in range(step):
            for i in (0, 2):
                if OPT.get('nopk'):
                    V.append('\n'.join(f'v_add_f32 v{128 + 4 * w + i + k}, v{128 + 4 * w + i + k}, v{128 + 4 * (w + step) + i + k}' for k in range(2)))
                else:
                    V.append(f'v_pk_add_f32 {vr(128 + 4 * w + i, 2)}, {vr(128 + 4 * w + i, 2)}, {vr(128 + 4 * (w + step) + i, 2)}')
    X = ['s_cbranch_scc0 L_a2_nox4']
    for step in (4, 2, 1):
        for w in range(step):
            X += [f'v_pk_add_f32 {vr(160 + 2 * w, 2)}, {vr(160 + 2 * w, 2)}, {vr(160 + 2 * (w + step), 2)}',
                  f'v_add_f32 v{176 + w}, v{176 + w}, v{176 + w + step}']
    X += [f'v_add_f32 v160, v160, v{CO + 1}', f'v_sub_f32 v161, v161, v{CO + 1}', f'v_add_f32 v176, v176, v{CO}', 'L_a2_nox4:', 's_nop 0']
    V.append('\n'.join(X))
    V += f'''v_permlane32_swap_b32 v128, v130
         v_permlane32_swap_b32 v129, v131
         v_add_f32 v128, v128, v{CO}
         v_sub_f32 v129, v129, v{CO}
         v_add_f32 v177, v130, v{CO + 1}
         v_sub_f32 v130, v130, v{CO + 2}
         v_add_f32 v131, v131, v{CO + 2}
         v_cndmask_b32 v130, v130, 0, s[66:67]
         v_cndmask_b32 v131, v131, 0, s[64:65]
         v_sub_f32 v132, v128, v130
         v_sub_f32 v134, v129, v131
         v_add_f32 v133, v128, v130
         v_add_f32 v135, v129, v131
         v_cvt_pk_bf16_f32 v144, v132, v134
         buffer_store_short v144, v{SA0}, s[20:23], 0 offen
         v_cndmask_b32 v136, v133, v160, s[64:65]
         buffer_store_short_d16_hi v144, v{SA0}, s[20:23], s71 offen
         v_cndmask_b32 v139, v135, v161, s[64:65]
         v_cvt_pk_bf16_f32 v145, v136, v139
         v_cndmask_b32 v137, v133, v176, s[74:75]
         buffer_store_short v145, v{SA0 + 1}, s[20:23], 0 offen
         v_cvt_pk_bf16_f32 v146, v137, v135
         buffer_store_short_d16_hi v145, v{SA0 + 1}, s[20:23], s71 offen
         v_cndmask_b32 v138, v132, v160, s[64:65]
         buffer_store_short v146, v{SA0 + 2}, s[20:23], 0 offen
         v_cndmask_b32 v138, v138, v176, s[74:75]
         buffer_store_short_d16_hi v146, v{SA0 + 4}, s[20:23], 0 offen
         v_cndmask_b32 v138, v138, v177, s[68:69]
         v_cndmask_b32 v140, v134, v161, s[64:65]
         v_cvt_pk_bf16_f32 v147, v138, v140
         buffer_store_short v147, v{SA0 + 3}, s[20:23], 0 offen
         buffer_store_short_d16_hi v147, v{SA0 + 5}, s[20:23], 0 offen'''.split('\n')
    if OPT.get('a2sc'):
        V = [x + ' sc1' if 'buffer_store' in x else x for x in V]
    a('s_waitcnt lgkmcnt(0)')
    for x in V:
        a(x)
    stamp(a, 13)
    a('''s_waitcnt vmcnt(8)
         L_op_chk:''')
    for i in range(4):
        a(f'ds_read_b128 {vr(48 + 4 * i)}, v{VRA} offset:{i * 1024}')
    a('''s_waitcnt lgkmcnt(3)
         v_max3_u32 v84, v48, v49, v50
         s_waitcnt lgkmcnt(2)
         v_max3_u32 v84, v84, v51, v52
         v_max3_u32 v84, v84, v53, v54
         s_waitcnt lgkmcnt(1)
         v_max3_u32 v84, v84, v55, v56
         v_max3_u32 v84, v84, v57, v58
         s_waitcnt lgkmcnt(0)
         v_max3_u32 v84, v84, v59, v60
         v_max3_u32 v84, v84, v61, v62
         v_max_u32 v84, v84, v63
         v_cmp_eq_u32 vcc, -1, v84
         s_cbranch_vccnz L_op_retry
         L_op_ok:
         s_barrier''')
    stamp(a, 14)
    NB = 12
    rd = lambda n: a(f'ds_read_b128 {vr(4 * (n % NB))}, v{OSR} offset:{(n >> 1) * 2048 + (n & 1) * 256}')
    for n in range(NB - 2):
        rd(n)
    for n in range(32):
        nxt = n + NB - 2
        if nxt < 32:
            rd(nxt)
        out = min(31, nxt) - n
        acc = vr(72 + 4 * (n & 1))
        a(f'''s_waitcnt lgkmcnt({out})
              v_mfma_f32_16x16x32_bf16 {acc}, {vr(WO + 4 * (n >> 1))}, {vr(4 * (n % NB))}, {acc if n >= 2 else 0}''')
    a(f'''s_nop 7
          v_cvt_pk_bf16_f32 v80, v72, v73
          v_cvt_pk_bf16_f32 v81, v74, v75
          v_cvt_pk_bf16_f32 v82, v76, v77
          v_cvt_pk_bf16_f32 v83, v78, v79
          s_nop 1
          v_permlane16_swap_b32 v80, v82
          v_permlane16_swap_b32 v81, v83
          buffer_store_dwordx4 v[80:83], v{OUTA}, s[20:23], s72 offen''')
    stamp(a, 15)
    if OPT['stamps']:
        a('s_waitcnt vmcnt(0)')
    stamp(a, 16)
    stamp_dump(a)
    return gather, xcode


def build():
    a = A()
    prologue(a)
    a('''s_cmp_ge_u32 s3, 4
         s_cbranch_scc0 L_p1_compute''')
    p1_loader(a)
    a('''s_branch L_p1_join
         L_p1_compute:''')
    p1_compute(a)
    stamp(a, 25)
    a('s_add_u32 s58, s58, 1            ; nonce')
    zero_o(a)
    publish1(a)
    a('L_p1_join:\ns_setprio 0')
    fl = attention(a)
    gather, xcode = tail(a)
    a('''L_end:
         s_endpgm
         L_op_retry:
         s_sub_u32 s5, s5, 1
         s_cbranch_scc1 L_op_ok''')
    for g in gather:
        a(g)
    a('s_waitcnt vmcnt(0)\ns_branch L_op_chk')
    for x in xcode:
        a(x)
    cold_paths(a, fl)
    a('L_code_end:')
    a('s_endpgm')
    return a.text()


def main(path):
    hdr = ''.join(l for l in open(f'cdna_kernels/{NAME}.s.ref') if l.startswith(';') and '@launch' not in l)
    out = hdr + f'; @launch grid=(256,1,1) block=(512,1,1) lds={LDS_BYTES}\n'
    out += f'''; One persistent launch, 256 workgroups x 8 waves (generated by gen/gen2.py):
.amdgcn_target "amdgcn-amd-amdhsa--gfx950"
.text
.globl {NAME}_kernel
.p2align {OPT.get('al', 8)}
.type {NAME}_kernel,@function
{NAME}_kernel:
'''
    out += build()
    out += f'''.section .rodata,"a"
.p2align 6
.amdhsa_kernel {NAME}_kernel
  .amdhsa_next_free_vgpr 256
  .amdhsa_next_free_sgpr {98 if OPT['stamps'] else 96}
  .amdhsa_accum_offset 256
  .amdhsa_group_segment_fixed_size 0
  .amdhsa_kernarg_size 88
  .amdhsa_user_sgpr_count 2
  .amdhsa_user_sgpr_kernarg_segment_ptr 1
  .amdhsa_system_sgpr_workgroup_id_x 1
.end_amdhsa_kernel
'''
    open(path, 'w').write(out)


if __name__ == '__main__':
    for x in sys.argv[1:]:
        if x.startswith('--'):
            k, _, v = x[2:].partition('=')
            OPT[k] = (int(v, 0) if v[0].isdigit() else v) if v else True
    args = [x for x in sys.argv[1:] if not x.startswith('--')]
    main(args[0] if args else f'cdna_kernels/{NAME}.s')
```
